```python
import torch

def _softmax(x, axis=-1):
    return torch.softmax(x, dim=axis)

def _gelu(x):
    return torch.nn.functional.gelu(x, approximate='tanh')

def _silu(x):
    return torch.nn.functional.silu(x)

def _sigmoid(x):
    return torch.sigmoid(x)

def _layernorm(x, axis=-1, eps=1e-05):
    m = x.mean(dim=axis, keepdim=True)
    v = x.var(dim=axis, keepdim=True, unbiased=False)
    return (x - m) / torch.sqrt(v + eps)

def _scatter_add(tgt, idx, src, axis=0):
    return tgt.clone().index_add_(axis, idx, src)

def _segment_sum(src, seg, n):
    out = torch.zeros((n,) + src.shape[1:], dtype=src.dtype)
    return out.index_add_(0, seg, src)

def _pad(x, pw):
    flat = tuple((v for pair in reversed(pw) for v in pair))
    return torch.nn.functional.pad(x, flat)
kernel_name = 'adaLN_cond__spectral_gfnet__glu_gated_swiglu__prompt'

def setup_inputs():

    _w = lambda a: (lambda t: t.to(torch.bfloat16) if t.is_floating_point() else t)(torch.as_tensor(a))

    def _A_setup():
        B, S, D = (1, 2048, 640)
        Df = D // 2 + 1
        return {'x': _w((lambda *s: torch.randn(*s, dtype=torch.bfloat16) * 0.05)(B, S, D)), 'w_r': _w((lambda *s: torch.randn(*s, dtype=torch.bfloat16) * 1.6)(S, Df) * 0.02), 'w_i': _w((lambda *s: torch.randn(*s, dtype=torch.bfloat16) * 1.6)(S, Df) * 0.02)}
    _A_in = _A_setup()

    def _B_setup():
        B, S, D, F = (1, 2048, 640, 1728)
        return {'x': _w((lambda *s: torch.randn(*s, dtype=torch.bfloat16) * 0.05)(B, S, D)), 'w1': _w((lambda *s: torch.randn(*s, dtype=torch.bfloat16) * 0.4)(D, F) * (2.0 / D) ** 0.5), 'w3': _w((lambda *s: torch.randn(*s, dtype=torch.bfloat16) * 0.4)(D, F) * (2.0 / D) ** 0.5), 'w2': _w((lambda *s: torch.randn(*s, dtype=torch.bfloat16) * 0.4)(F, D) * (2.0 / F) ** 0.5)}
    _B_in = _B_setup()
    return {'A_x': _A_in['x'], 'A_w_r': _A_in['w_r'], 'A_w_i': _A_in['w_i'], 'B_x': _B_in['x'], 'B_w1': _B_in['w1'], 'B_w3': _B_in['w3'], 'B_w2': _B_in['w2'], 'c': _w((lambda *s: torch.randn(*s, dtype=torch.bfloat16) * 0.1)(1, 640) * 8.0), 'w_mod': _w((lambda *s: torch.randn(*s, dtype=torch.bfloat16) * 0.1)(640, 6 * 640) * 640 ** (-0.5) * 8.0)}

def reference(A_x, A_w_r, A_w_i, B_x, B_w1, B_w3, B_w2, c, w_mod):

    def _A_ref(x, w_r, w_i):
        B, S, D = x.shape
        X = (lambda x, axes=(-2, -1): torch.fft.rfft2(x.float(), dim=axes))(x, axes=(-2, -1))
        W = w_r + 1j * w_i
        X = X * W
        y = (lambda x, s, axes=(-2, -1): torch.fft.irfft2(x, s=s, dim=axes).to(torch.bfloat16))(X, (S, D), axes=(-2, -1))
        return y

    def _B_ref(x, w1, w3, w2):
        gate = torch.einsum('bsd,df->bsf', x, w1)
        up = torch.einsum('bsd,df->bsf', x, w3)
        h = _silu(gate) * up
        out = torch.einsum('bsf,fd->bsd', h, w2)
        return out
    x = A_x
    mod = (_silu(c) @ w_mod).reshape(c.shape[0], 6, 1, -1)
    sa, ca, ga, sb, cb, gb = (mod[:, 0].clone(), mod[:, 1].clone(), mod[:, 2].clone(), mod[:, 3].clone(), mod[:, 4].clone(), mod[:, 5].clone())
    h = _layernorm(x, axis=-1) * (1 + ca) + sa
    x = x + ga * _A_ref(h, A_w_r, A_w_i)
    h = _layernorm(x, axis=-1) * (1 + cb) + sb
    x = x + gb * _B_ref(h, B_w1, B_w3, B_w2)
    return x
```

```python
import re

def v(i, n=1): return f"v{i}" if n == 1 else f"v[{i}:{i+n-1}]"
def a(i, n=1): return f"a{i}" if n == 1 else f"a[{i}:{i+n-1}]"
def s(i, n=1): return f"s{i}" if n == 1 else f"s[{i}:{i+n-1}]"

REG = re.compile(r"^-?\|?(abs\()?([vas])(\d+|\[(\d+):(\d+)\])\)?\|?$")
def regs_of(op):
    op = op.strip()
    if op in ("vcc", "vcc_lo", "vcc_hi"): return {("s", "vcc")}
    if op in ("exec", "exec_lo", "exec_hi"): return {("s", "exec")}
    if op == "m0": return {("s", "m0")}
    m = REG.match(op)
    if not m: return set()
    k = m.group(2)
    if m.group(4) is not None:
        return {(k, i) for i in range(int(m.group(4)), int(m.group(5)) + 1)}
    return {(k, int(m.group(3)))}

TRANS = ("v_exp_f32", "v_log_f32", "v_rcp_f32", "v_rsq_f32", "v_sqrt_f32", "v_sin_f32", "v_cos_f32", "v_rcp_iflag_f32")

class Ins:
    __slots__ = ("text", "op", "dst", "src", "kind", "passes", "srcC", "label", "target")
    def __init__(self, text):
        self.text = text
        t = text.split(";")[0].strip()
        self.label = None; self.target = None
        self.dst = set(); self.src = set(); self.kind = "other"; self.passes = 0; self.srcC = set(); self.op = ""
        if not t or t.startswith("."):
            self.kind = "none"; return
        if t.endswith(":"):
            self.kind = "label"; self.label = t[:-1]; return
        parts = t.split(None, 1)
        op = parts[0]; self.op = op
        rest = parts[1] if len(parts) > 1 else ""
        ops = [x.strip() for x in re.split(r",(?![^\[]*\])", rest)] if rest else []
        ops2 = []
        for o in ops:
            ops2.append(o.split()[0] if o else o)
        ops = ops2
        R = [regs_of(o) for o in ops]
        allr = lambda lst: set().union(*lst) if lst else set()
        if op.startswith("v_mfma"):
            self.kind = "mfma"; self.dst = R[0]; self.src = allr(R[1:]); self.srcC = R[3] if len(R) > 3 else set()
            self.passes = 8 if "32x32" in op else 4
            if op.endswith("x2_f32") or "32x32x2" in op: self.passes = 16
            if "16x16x4_f32" in op: self.passes = 8
        elif op.startswith("v_cmp"):
            self.kind = "valu"; self.dst = R[0]; self.src = allr(R[1:])
        elif op.startswith("v_permlane"):
            self.kind = "valu"; self.dst = allr(R[:2]); self.src = allr(R[:2])
        elif op.startswith(("v_add_co", "v_sub_co", "v_subrev_co")):
            self.kind = "valu"; self.dst = allr(R[:2]); self.src = allr(R[2:])
        elif op.startswith(("v_addc_co", "v_subb_co")):
            self.kind = "valu"; self.dst = allr(R[:2]); self.src = allr(R[2:])
        elif op.startswith(("v_fmac", "v_dot2c", "v_pk_fmac", "v_writelane")):
            self.kind = "valu"; self.dst = R[0]; self.src = allr(R)
        elif op.startswith("v_"):
            self.kind = "valu"; self.dst = R[0] if R else set(); self.src = allr(R[1:])
            if op.startswith("v_cndmask") and len(ops) == 3: self.src |= {("s", "vcc")}
        elif op.startswith("ds_"):
            self.kind = "ds"
            if op.startswith(("ds_read", "ds_swizzle", "ds_bpermute", "ds_permute")):
                self.dst = R[0]; self.src = allr(R[1:])
            else:
                self.src = allr(R)
        elif op.startswith(("buffer_", "global_")):
            self.kind = "vmem"
            islds = " lds" in (" " + rest + " ") and re.search(r"\blds\b", rest)
            if op.startswith(("buffer_load", "global_load")):
                if islds or "_lds_" in op:
                    self.src = allr(R) | {("s", "m0")}; self.kind = "vmem_lds"
                else:
                    self.dst = R[0]; self.src = allr(R[1:])
                    if "d16" in op: self.src |= R[0]
            elif "atomic" in op:
                self.src = allr(R)
                if re.search(r"\bsc0\b", rest): self.dst = R[0]
            else:
                self.src = allr(R)
                self.kind = "vmem_st"
        elif op.startswith("s_"):
            self.kind = "salu"
            if op.startswith(("s_cbranch", "s_branch")):
                self.kind = "branch"; self.target = ops[0]
            elif op.startswith(("s_cmp", "s_waitcnt", "s_barrier", "s_nop", "s_endpgm", "s_sleep", "s_setprio", "s_bitcmp")):
                self.src = allr(R)
            elif op.startswith("s_load") or op.startswith("s_memtime") or op.startswith("s_memrealtime"):
                self.dst = R[0]; self.src = allr(R[1:])
            elif "saveexec" in op:
                self.dst = R[0] | {("s", "exec")}; self.src = allr(R[1:]) | {("s", "exec")}
            else:
                self.dst = R[0] if R else set(); self.src = allr(R[1:])
    def nstates(self):
        if self.kind in ("none", "label"): return 0
        if self.op == "s_nop":
            return int(self.text.split(";")[0].split()[1], 0) + 1
        return 1

def need(p, c):
    n = 0
    vreg = lambda S: {r for r in S if r[0] in "va"}
    sreg = lambda S: {r for r in S if r[0] == "s"}
    if p.kind == "valu":
        pv = vreg(p.dst); ps = sreg(p.dst)
        if c.kind == "mfma" and pv & c.src: n = max(n, 2)
        if c.kind == "valu":
            if pv & c.src:
                if c.op.startswith("v_permlane") or "dpp" in c.text or "row_" in c.text or "quad_perm" in c.text: n = max(n, 2)
                if c.op.startswith(("v_readlane", "v_readfirstlane")): n = max(n, 1)
                if p.op in TRANS or (p.op.endswith("_e32") and p.op[:-4] in TRANS):
                    if c.op not in TRANS: n = max(n, 1)
                    else: n = max(n, 1)
            if ps & c.src:
                n = max(n, 4 if c.op.startswith(("v_readlane", "v_writelane")) else 2)
        if c.kind in ("vmem", "vmem_lds", "vmem_st") and ps & c.src: n = max(n, 5)
        if c.kind == "branch" and ("vcc" in c.op or "exec" in c.op) and ps: n = max(n, 5)
        if c.kind == "ds" and False: pass
    if p.kind == "mfma":
        P = p.passes
        tab = {4: (6, 8, 8, 3), 8: (10, 12, 12, 7), 16: (18, 20, 20, 15)}[P]
        if c.kind == "mfma":
            if p.dst & c.srcC:
                if not (p.dst == c.srcC and p.passes == c.passes and p.op == c.op): n = max(n, tab[0])
            ab = c.src - c.srcC if not (c.srcC <= c.src and False) else c.src
            if p.dst & (c.src - c.srcC): n = max(n, tab[1])
            if p.dst & c.dst and not (p.dst & c.srcC): n = max(n, tab[0])
        elif c.kind in ("valu",):
            if p.dst & (c.src | c.dst): n = max(n, tab[2])
            if p.srcC & c.dst: n = max(n, tab[3])
        elif c.kind in ("ds", "vmem", "vmem_st", "vmem_lds"):
            if p.dst & (c.src | c.dst): n = max(n, tab[2])
            if p.srcC & c.dst: n = max(n, tab[3])
    if p.kind == "salu" and ("s", "m0") in p.dst and c.kind == "vmem_lds": n = max(n, 1)
    if p.kind == "vmem_st" and ("x4" in p.op or "x3" in p.op):
        data = p.src
        if c.kind == "valu" and vreg(c.dst) & data: n = max(n, 2)
        elif c.kind in ("ds", "vmem", "mfma") and vreg(c.dst) & data: n = max(n, 1)
    return n

MAXD = 21
class Asm:
    def __init__(self):
        self.lines = []
        self.nlab = 0
    def __call__(self, text):
        for l in text.split("\n"):
            if l.strip(): self.lines.append(l.strip())
    def label(self, name): self.lines.append(name + ":")
    def newlabel(self, base="L"):
        self.nlab += 1
        return f"{base}_{self.nlab}"
    def finalize(self, verbose=False):
        ins = [Ins(l) for l in self.lines]
        labels = {x.label: i for i, x in enumerate(ins) if x.kind == "label"}
        out = []
        nins = 0
        def check(hist, c):
            d = 0; req = 0
            for p in reversed(hist):
                if d >= MAXD: break
                if p.kind in ("none", "label"): continue
                nd = need(p, c)
                if nd > d: req = max(req, nd - d)
                d += p.nstates()
            return req
        def addnop(lst, n):
            while n > 0:
                k = min(n, 16)
                lst.append(Ins(f"s_nop {k-1}")); n -= k
        for i, c in enumerate(ins):
            if c.kind in ("none", "label"):
                out.append(c); continue
            req = check(out[-40:], c)
            if req: addnop(out, req); nins += req
            if c.kind == "branch" and c.target in labels:
                j = labels[c.target]; d = 1; extra = 0; hist = out[-40:] + [c]
                seq = []
                while j < len(ins) and len(seq) < MAXD:
                    t = ins[j]; j += 1
                    if t.kind in ("none", "label"): continue
                    r = check(hist + seq, t)
                    extra = max(extra, r)
                    seq.append(t)
                    if t.kind == "branch" and t.op == "s_branch": break
                    if t.op == "s_endpgm": break
                if extra: addnop(out, extra); nins += extra
            out.append(c)
        if verbose: print(f"; hazard pass inserted {nins} wait states")
        return "\n".join(("" if x.kind == "label" else "  ") + x.text for x in out) + "\n"
```

```python
import sys, math
sys.path.insert(0, "dev")
from asmlib import Asm, v, a, s

KNAME = "adaLN_cond__spectral_gfnet__glu_gated_swiglu__prompt_kernel"
T0_OFF  = 0x0000000
FP_OFF  = 0x0280000
GP_OFF  = 0x0360000
SAP_OFF = 0x0440000
GA_OFF  = 0x0450000
GB_OFF  = 0x0451000
CB1F_OFF= 0x0452000
CB1B_OFF= 0x0453000
SBB_OFF = 0x0454000
A3_OFF  = 0x0460000
W13_OFF = 0x0700000
W2P_OFF = 0x0B40000
UVP_OFF = 0x0D60000
X1C_OFF = 0x0DA0000
ST2_OFF = 0x1020000
HP_OFF  = 0x1040000
BAR_OFF = 0x1700000
WS_END  = 0x1710000

sWG = 2; sW = 3
SX, SWR, SWI, SW1, SW3, SW2, SC, SWM, SOUT, SDBG, SWS = [4 + 4 * i for i in range(11)]
def srd(b): return s(b, 4)
INV640 = "0x3acccccd"
LDS_BYTES = 163840

class Gen:
    def __init__(self, stop_after=99, opts=None):
        self.A = Asm()
        self.stop = stop_after
        self.o = opts or {}
    def mov_s(self, r, val):
        self.A(f"s_mov_b32 {s(r)}, {val if isinstance(val, str) else hex(val)}")
    def rnd_bf16(self, dst, src, tmp=None):
        A = self.A
        A(f"v_cvt_pk_bf16_f32 {v(dst)}, {v(src)}, {v(src)}")
        A(f"v_lshlrev_b32 {v(dst)}, 16, {v(dst)}")
    def sincos_idx(self, idx, inv, dc, ds, tmp):
        A = self.A
        A(f"v_cvt_f32_u32 {v(tmp)}, {v(idx)}")
        A(f"v_mul_f32 {v(tmp)}, {inv}, {v(tmp)}")
        if dc is not None: A(f"v_cos_f32 {v(dc)}, {v(tmp)}")
        if ds is not None: A(f"v_sin_f32 {v(ds)}, {v(tmp)}")
    def mod640(self, dst, src, tmp):
        A = self.A
        A(f"v_lshrrev_b32 {v(tmp)}, 7, {v(src)}")
        A(f"v_mul_u32_u24 {v(tmp)}, 0xcccd, {v(tmp)}")
        A(f"v_lshrrev_b32 {v(tmp)}, 18, {v(tmp)}")
        A(f"v_mul_u32_u24 {v(tmp)}, 640, {v(tmp)}")
        A(f"v_sub_u32 {v(dst)}, {v(src)}, {v(tmp)}")
    def prologue(self):
        A = self.A
        A(f"s_cmp_ge_u32 s2, 256")
        A("s_cbranch_scc1 L_end")
        A("s_load_dwordx16 s[64:79], s[0:1], 0")
        A("s_load_dwordx8 s[80:87], s[0:1], 64")
        A("v_lshrrev_b32 v1, 6, v0")
        A("s_nop 0")
        A(f"v_readfirstlane_b32 {s(sW)}, v1")
        A("v_and_b32 v1, 63, v0")
        A("s_waitcnt lgkmcnt(0)")
        tab = [(SX, 64, 2048 * 1280), (SWR, 66, 2048 * 642), (SWI, 68, 2048 * 642), (SW1, 72, 640 * 3456), (SW3, 74, 640 * 3456),
               (SW2, 76, 1728 * 1280), (SC, 78, 1280), (SWM, 80, 640 * 7680), (SOUT, 82, 2048 * 1280), (SDBG, 84, 256), (SWS, 86, WS_END)]
        for b, p, n in tab:
            A(f"s_mov_b32 {s(b)}, {s(p)}"); A(f"s_mov_b32 {s(b+1)}, {s(p+1)}")
            A(f"s_mov_b32 {s(b+2)}, {hex(n)}"); A(f"s_mov_b32 {s(b+3)}, 0x00020000")
    def gbar(self, idx):
        self.gbar_arrive(idx); self.gbar_wait(idx)
    def gbar_arrive(self, idx):
        A = self.A
        A("s_waitcnt vmcnt(0) lgkmcnt(0)")
        A("s_barrier")
        lab = A.newlabel("L_arr")
        A(f"s_cmp_lg_u32 {s(sW)}, 0"); A(f"s_cbranch_scc1 {lab}")
        A("s_and_b32 s48, s2, 15"); A("s_lshl_b32 s48, s48, 2"); A(f"s_add_u32 s48, s48, {64*idx}")
        A("v_mov_b32 v2, 1"); A("v_mov_b32 v3, 0")
        A("s_mov_b64 s[50:51], exec"); A("s_mov_b64 exec, 1")
        A(f"buffer_atomic_add v2, v3, {srd(SDBG)}, s48 offen sc1")
        A("s_mov_b64 exec, s[50:51]")
        A.label(lab)
    def gbar_wait(self, idx):
        A = self.A
        lab = A.newlabel("L_wdone"); lp = A.newlabel("L_poll"); ex = A.newlabel("L_pexit")
        A(f"s_cmp_lg_u32 {s(sW)}, 0"); A(f"s_cbranch_scc1 {lab}")
        A("v_and_b32 v3, 15, v1"); A("v_lshlrev_b32 v3, 2, v3")
        A("s_mov_b32 s49, 0")
        A.label(lp)
        A("s_add_u32 s49, s49, 1"); A("s_cmp_gt_u32 s49, 200000"); A(f"s_cbranch_scc1 {ex}")
        A(f"buffer_load_dword v2, v3, {srd(SDBG)}, 0 offen offset:{64*idx} sc1")
        A("s_waitcnt vmcnt(0)")
        A("v_cmp_gt_u32 vcc, 16, v2")
        A(f"s_cbranch_vccz {ex}")
        A(f"s_branch {lp}")
        A.label(ex)
        A.label(lab)
        A("s_waitcnt vmcnt(0) lgkmcnt(0)")
        A("s_barrier")
    def end_if_stop(self, k):
        if self.stop == k:
            self.A("s_waitcnt vmcnt(0) lgkmcnt(0)")
            self.A("s_branch L_end")
            return True
        return False

    def p1(self):
        A = self.A
        A("s_and_b32 s52, s2, 7")
        A("s_lshr_b32 s53, s2, 3")
        A("s_cmp_ge_u32 s53, 16")
        A("s_cbranch_scc1 L_p1_gemv")
        self.p1_fft()
        A("s_branch L_p1_done")
        A.label("L_p1_gemv")
        A("s_lshl_b32 s54, s52, 4"); A("s_add_u32 s54, s54, s53"); A("s_sub_u32 s54, s54, 16")
        A("s_cmp_ge_u32 s54, 120")
        A("s_cbranch_scc1 L_p1_done")
        self.p1_gemv()
        A.label("L_p1_done")

    def p1_fft(self):
        A = self.A
        A("s_lshr_b32 s54, s53, 2"); A("s_lshl_b32 s54, s54, 3"); A("s_add_u32 s54, s54, s52")
        A("s_and_b32 s55, s53, 3")
        for n in range(5):
            A(f"v_add_u32 v12, {64*n}, v1")
            A("v_mul_u32_u24 v13, 0xcccd, v12"); A("v_lshrrev_b32 v13, 22, v13")
            A("v_mul_u32_u24 v14, 80, v13"); A("v_sub_u32 v14, v12, v14")
            A("v_lshlrev_b32 v15, 1, v13"); A("v_xor_b32 v14, v14, v15")
            A("v_mul_u32_u24 v13, 0xa000, v13")
            A(f"v_lshl_add_u32 {v(2+n)}, v14, 4, v13")
            A("v_xor_b32 v14, 8, v14")
            A(f"v_lshl_add_u32 {v(7+n)}, v14, 4, v13")
        A("s_mul_i32 s56, s54, 1280"); A(f"s_mul_i32 s57, {s(sW)}, {16*40960}"); A("s_add_u32 s56, s56, s57")
        A(f"s_mul_i32 s57, {s(sW)}, {16*1280}")
        for G in range(4):
            for n in range(5):
                A(f"s_add_u32 m0, s57, {G*4*1280 + n*1024}")
                vo = (7 + n) if G >= 2 else (2 + n)
                A(f"buffer_load_dwordx4 {v(vo)}, {srd(SX)}, s56 offen lds")
            if G < 3: A(f"s_add_u32 s56, s56, {4*40960}")
        A("v_and_b32 v12, 15, v1")
        A("v_lshrrev_b32 v13, 4, v1")
        A(f"s_lshl_b32 s58, {s(sW)}, 4")
        A("v_add_u32 v14, s58, v12")
        A("v_cmp_lt_u32 vcc, 32, v14")
        A("v_subrev_u32 v15, 32, v14")
        A("v_cndmask_b32 v15, v14, v15, vcc")
        A("v_mov_b32 v16, 0"); A("v_mov_b32 v17, 16")
        A("v_cndmask_b32 v16, v16, v17, vcc")
        A("v_lshlrev_b32 v17, 3, v13")
        A("v_mad_u32_u24 v16, v15, v17, v16")
        for u in range(2):
            for jj in range(8):
                k = 32 * u + jj
                A(f"v_mad_u32_u24 v18, v15, {k}, v16") if k <= 64 else None
                A("v_and_b32 v18, 63, v18")
                self.sincos_idx(18, "0x3c800000", 20 + 8 * u + jj, None, 19)
        A("v_and_b32 v14, 3, v12"); A("v_lshlrev_b32 v14, 1, v14"); A("v_and_b32 v15, 8, v12"); A("v_or_b32 v14, v14, v15")
        A("v_add_u32 v15, s58, v12"); A("v_mul_u32_u24 v15, 1280, v15")
        for t in range(4):
            A(f"v_add_u32 v16, {4*t}, v13"); A("v_xor_b32 v16, v16, v14")
            A(f"v_lshl_add_u32 {v(36+t)}, v16, 4, v15")
        A("v_mov_b32 v112, 0x3f803f80"); A("v_mov_b32 v113, v112"); A("v_mov_b32 v114, v112"); A("v_mov_b32 v115, v112")
        A("s_waitcnt vmcnt(0)")
        for t in range(20):
            A(f"ds_read_b128 {v(120+4*t,4)}, {v(36+(t&3))} offset:{(t>>2)*256}")
            if t >= 10:
                tt = t - 10
                A("s_waitcnt lgkmcnt(10)")
                self.stat_mfma(tt)
        for tt in range(10, 20):
            A(f"s_waitcnt lgkmcnt({19-tt})")
            self.stat_mfma(tt)
        A("v_and_b32 v14, 3, v12")
        A("v_cmp_eq_u32 s[60:61], 1, v14"); A("v_cmp_eq_u32 s[62:63], 2, v14"); A("v_cmp_eq_u32 s[64:65], 3, v14")
        for b in (40, 44):
            A(f"v_cndmask_b32 {v(b)}, {v(b)}, {v(b+1)}, s[60:61]")
            A(f"v_cndmask_b32 {v(b)}, {v(b)}, {v(b+2)}, s[62:63]")
            A(f"v_cndmask_b32 {v(b)}, {v(b)}, {v(b+3)}, s[64:65]")
        A(f"v_mul_f32 v44, {hex(0x3acccccd)}, v44")
        A(f"v_mul_f32 v40, {hex(0x3acccccd)}, v40")
        A("v_fma_f32 v40, -v44, v44, v40")
        A("v_max_f32 v40, 0, v40")
        self.rnd_bf16(40, 40)
        A("v_add_f32 v40, 0x3727c5ac, v40")
        self.rnd_bf16(40, 40)
        A("v_sqrt_f32 v40, v40")
        self.rnd_bf16(40, 40)
        A("v_rcp_f32 v40, v40")
        A("v_cvt_pk_bf16_f32 v44, -v44, -v44")
        A("v_add_u32 v15, s58, v12")
        A("v_lshrrev_b32 v14, 2, v12")
        A("v_cmp_eq_u32 vcc, v14, v13")
        A("v_lshlrev_b32 v16, 2, v15"); A("v_lshlrev_b32 v17, 1, v15")
        LR = 81920; LM = 81920 + 256
        A("s_and_saveexec_b64 s[60:61], vcc")
        A(f"ds_write_b32 v16, v40 offset:0")
        self.A.lines.pop()
        A(f"v_add_u32 v16, {LR}, v16"); A(f"v_add_u32 v17, {LM}, v17")
        A("ds_write_b32 v16, v40")
        A("ds_write_b16 v17, v44")
        A("s_mov_b64 exec, s[60:61]")
        A("s_waitcnt lgkmcnt(0)")
        A("s_barrier")
        A("v_lshlrev_b32 v14, 5, v13"); A(f"v_add_u32 v14, {LR}, v14")
        A("v_lshlrev_b32 v15, 4, v13"); A(f"v_add_u32 v15, {LM}, v15")
        for u in range(2):
            A(f"ds_read_b128 {v(48+8*u,4)}, v14 offset:{128*u}")
            A(f"ds_read_b128 {v(52+8*u,4)}, v14 offset:{128*u+16}")
            A(f"ds_read_b128 {v(64+4*u,4)}, v15 offset:{64*u}")
        A("v_lshrrev_b32 v16, 2, v12")
        A("v_and_b32 v17, 3, v12")
        A("v_lshl_add_u32 v18, v13, 3, v16")
        A("v_mul_u32_u24 v18, 1280, v18")
        A("v_and_b32 v19, 1, v13"); A("v_lshl_or_b32 v19, v19, 2, v16")
        A("v_lshl_add_u32 v18, v19, 5, v18")
        A("v_lshl_add_u32 v72, v17, 3, v18")
        A("s_waitcnt lgkmcnt(0)")
        for k in range(8):
            A(f"v_pk_mul_f32 {v(48+2*k,2)}, {v(48+2*k,2)}, {v(20+2*k,2)}")
        for k in range(8):
            A(f"v_cvt_pk_bf16_f32 {v(76+k)}, {v(48+2*k)}, {v(49+2*k)}")
        A(f"v_mfma_f32_16x16x32_bf16 v[84:87], v[64:67], v[76:79], 0")
        A(f"v_mfma_f32_16x16x32_bf16 v[84:87], v[68:71], v[80:83], v[84:87]")
        A("s_mul_i32 s59, s55, 10")
        for dt in range(10):
            A(f"s_add_u32 s60, s59, {dt}")
            A("s_and_b32 s61, s60, 7"); A("s_lshl_b32 s61, s61, 5")
            A("s_lshr_b32 s62, s60, 3"); A("s_lshl_b32 s62, s62, 8")
            A("v_xor_b32 v73, s61, v72"); A("v_add_u32 v73, s62, v73")
            for u in range(2):
                for h in range(2):
                    A(f"ds_read_b64_tr_b16 {v(120+8*dt+4*u+2*h,2)}, v73 offset:{u*32*1280 + h*4*1280}")
            if dt >= 2:
                A("s_waitcnt lgkmcnt(8)")
                self.fft_mfma(dt - 2)
        A("s_waitcnt lgkmcnt(4)"); self.fft_mfma(8)
        A("s_waitcnt lgkmcnt(0)"); self.fft_mfma(9)
        A("s_lshr_b32 s60, s54, 2"); A("s_and_b32 s60, s60, 3")
        A("s_lshr_b32 s61, s60, 1"); A("s_xor_b32 s62, s60, s61"); A("s_and_b32 s62, s62, 1"); A("s_lshl_b32 s62, s62, 1"); A("s_or_b32 s61, s61, s62")
        A("v_xor_b32 v14, s61, v13")
        A("v_add_u32 v15, s58, v12"); A("v_mul_u32_u24 v15, 0xa000, v15")
        A("v_lshl_add_u32 v15, v14, 4, v15")
        A("s_mul_i32 s60, s55, 5"); A("s_lshl_b32 s60, s60, 11"); A("s_lshl_b32 s61, s54, 6"); A("s_add_u32 s60, s60, s61")
        if T0_OFF: A(f"s_add_u32 s60, s60, {hex(T0_OFF)}")
        for tt in range(5):
            d0 = 200 + 8 * tt
            p = 88 + 4 * tt
            for k in range(4):
                A(f"v_cvt_pk_bf16_f32 {v(p+k)}, {v(d0+2*k)}, {v(d0+2*k+1)}")
            A(f"buffer_store_dwordx4 {v(p,4)}, v15, {srd(SWS)}, s60 offen sc1")
            if tt < 4: A("s_add_u32 s60, s60, 2048")
    def stat_mfma(self, t):
        A = self.A
        x = v(120 + 4 * t, 4)
        c1 = "0" if t == 0 else "v[40:43]"; c2 = "0" if t == 0 else "v[44:47]"
        A(f"v_mfma_f32_16x16x32_bf16 v[40:43], {x}, {x}, {c1}")
        A(f"v_mfma_f32_16x16x32_bf16 v[44:47], {x}, v[112:115], {c2}")
    def fft_mfma(self, dt):
        A = self.A
        d = v(200 + 4 * dt, 4)
        A(f"v_mfma_f32_16x16x32_bf16 {d}, {v(120+8*dt,4)}, v[76:79], v[84:87]")
        A(f"v_mfma_f32_16x16x32_bf16 {d}, {v(124+8*dt,4)}, v[80:83], {d}")

    def p1_gemv(self):
        A = self.A
        A("s_mul_i32 s55, s54, 205"); A("s_lshr_b32 s55, s55, 12")
        A("s_mul_i32 s56, s55, 20"); A("s_sub_u32 s56, s54, s56")
        A("v_and_b32 v2, 3, v1"); A("v_lshrrev_b32 v3, 2, v1")
        A(f"s_mul_i32 s57, {s(sW)}, 160")
        A("v_add_u32 v4, s57, v3")
        A("v_mul_u32_u24 v5, 7680, v4"); A("v_lshl_add_u32 v5, v2, 4, v5")
        A("v_lshlrev_b32 v6, 1, v4")
        A("s_lshl_b32 s58, s54, 6")
        for n in range(10):
            A(f"buffer_load_ushort {v(10+n)}, v6, {srd(SC)}, 0 offen offset:{32*n}")
        for n in range(10):
            A(f"buffer_load_dwordx4 {v(20+4*n,4)}, v5, {srd(SWM)}, s58 offen")
            if n < 9: A(f"s_add_u32 s58, s58, {16*7680}")
        A("s_cmp_eq_u32 s55, 2"); A("s_cbranch_scc1 L_gv_ggen")
        A("s_cmp_le_u32 s55, 1"); A("s_cbranch_scc0 L_gv_pre_done")
        self.trig_states()
        A("s_branch L_gv_pre_done")
        A.label("L_gv_ggen")
        self.g_gen()
        A.label("L_gv_pre_done")
        A("s_waitcnt vmcnt(10)") if False else None
        A("s_waitcnt vmcnt(0)")
        for n in range(10):
            x = 10 + n
            A(f"v_lshlrev_b32 {v(x)}, 16, {v(x)}")
            A(f"v_mul_f32 v7, 0xbfb8aa3b, {v(x)}")
            A("v_exp_f32 v7, v7")
            A("v_add_f32 v7, 1.0, v7")
            A("v_rcp_f32 v7, v7")
            A(f"v_mul_f32 {v(x)}, {v(x)}, v7")
            self.rnd_bf16(x, x)
        for q in range(8): A(f"v_mov_b32 {v(60+q)}, 0")
        for n in range(10):
            for q in range(4):
                w = 20 + 4 * n + q
                A(f"v_lshlrev_b32 v7, 16, {v(w)}"); A(f"v_and_b32 v8, 0xffff0000, {v(w)}")
                A(f"v_fmac_f32 {v(60+2*q)}, {v(10+n)}, v7"); A(f"v_fmac_f32 {v(61+2*q)}, {v(10+n)}, v8")
        A(f"s_lshl_b32 s57, {s(sW)}, 4"); A("v_add_u32 v7, s57, v3"); A("v_lshlrev_b32 v7, 7, v7"); A("v_lshl_add_u32 v7, v2, 5, v7")
        A("ds_write_b128 v7, v[60:63]"); A("ds_write_b128 v7, v[64:67] offset:16")
        A("s_waitcnt lgkmcnt(0)"); A("s_barrier")
        A("v_and_b32 v7, 31, v0"); A("v_lshrrev_b32 v8, 5, v0")
        A("v_lshlrev_b32 v9, 10, v8"); A("v_lshl_add_u32 v9, v7, 2, v9")
        for p in range(8): A(f"ds_read_b32 {v(60+p)}, v9 offset:{128*p}")
        A("s_waitcnt lgkmcnt(0)")
        for p in range(1, 8): A(f"v_add_f32 v60, v60, {v(60+p)}")
        A("v_lshlrev_b32 v9, 7, v8"); A("v_lshl_add_u32 v9, v7, 2, v9"); A("v_add_u32 v9, 8192, v9")
        A("ds_write_b32 v9, v60")
        A("s_waitcnt lgkmcnt(0)"); A("s_barrier")
        A("v_lshlrev_b32 v9, 2, v7"); A("v_add_u32 v9, 8192, v9")
        for p in range(8): A(f"ds_read_b32 {v(60+p)}, v9 offset:{128*p}")
        A("s_waitcnt lgkmcnt(0)")
        for p in range(1, 8): A(f"v_add_f32 v60, v60, {v(60+p)}")
        self.rnd_bf16(60, 60)
        A("s_cmp_eq_u32 s55, 1"); A("s_cbranch_scc1 L_gv_add1")
        A("s_cmp_eq_u32 s55, 4"); A("s_cbranch_scc0 L_gv_noadd")
        A.label("L_gv_add1")
        A("v_add_f32 v60, 1.0, v60"); self.rnd_bf16(60, 60)
        A.label("L_gv_noadd")
        A("s_cmp_le_u32 s55, 1"); A("s_cbranch_scc1 L_gv_trig")
        A(f"s_cmp_lg_u32 {s(sW)}, 0"); A("s_cbranch_scc1 L_p1_done")
        A("s_lshl_b32 s57, s56, 7"); A("v_lshlrev_b32 v9, 2, v7"); A("v_add_u32 v9, s57, v9")
        A("v_lshrrev_b32 v62, 1, v9")
        A("v_lshrrev_b32 v61, 16, v60")
        A("s_mov_b64 s[60:61], exec"); A("s_mov_b32 exec_hi, 0")
        A("s_cmp_eq_u32 s55, 2"); A("s_cbranch_scc0 L_gv_n2")
        self.mov_s(58, GA_OFF); A(f"buffer_store_dword v60, v9, {srd(SWS)}, s58 offen sc1")
        A.label("L_gv_n2")
        A("s_cmp_eq_u32 s55, 5"); A("s_cbranch_scc0 L_gv_n5")
        self.mov_s(58, GB_OFF); A(f"buffer_store_dword v60, v9, {srd(SWS)}, s58 offen sc1")
        A.label("L_gv_n5")
        A("s_cmp_eq_u32 s55, 4"); A("s_cbranch_scc0 L_gv_n4")
        self.mov_s(58, CB1F_OFF); A(f"buffer_store_dword v60, v9, {srd(SWS)}, s58 offen sc1")
        self.mov_s(58, CB1B_OFF); A(f"buffer_store_short v61, v62, {srd(SWS)}, s58 offen sc1")
        A.label("L_gv_n4")
        A("s_cmp_eq_u32 s55, 3"); A("s_cbranch_scc0 L_gv_n3")
        self.mov_s(58, SBB_OFF); A(f"buffer_store_short v61, v62, {srd(SWS)}, s58 offen sc1")
        A.label("L_gv_n3")
        A("s_mov_b64 exec, s[60:61]")
        A("s_branch L_p1_done")
        A.label("L_gv_trig")
        A("v_lshlrev_b32 v9, 2, v7"); A("v_add_u32 v9, 12288, v9")
        A("ds_write_b32 v9, v60")
        A("s_waitcnt lgkmcnt(0)"); A("s_barrier")
        A("v_lshrrev_b32 v9, 4, v1"); A("v_lshlrev_b32 v9, 4, v9"); A("v_add_u32 v9, 12288, v9")
        A("ds_read_b128 v[60:63], v9"); A("ds_read_b128 v[64:67], v9 offset:64")
        A("s_waitcnt lgkmcnt(0)")
        A("s_cmp_eq_u32 s55, 0"); A("s_cbranch_scc1 L_gv_sa")
        A("v_lshlrev_b32 v9, 4, v1")
        A(f"s_mul_i32 s57, {s(sW)}, 40960"); A("s_lshl_b32 s58, s56, 11"); A("s_add_u32 s57, s57, s58"); A(f"s_add_u32 s57, s57, {hex(FP_OFF)}")
        for i in range(6):
            if i == 5:
                A(f"s_cmp_lg_u32 {s(sW)}, 0"); A("s_cbranch_scc1 L_p1_done")
            b = 100 + 16 * i
            for jj in range(8):
                A(f"v_pk_mul_f32 {v(b+2*jj,2)}, {v(b+2*jj,2)}, {v(60+(jj&~1),2)} op_sel:[0,{jj&1}] op_sel_hi:[1,{jj&1}]")
            for k in range(4):
                A(f"v_cvt_pk_bf16_f32 {v(70+k)}, {v(b+4*k)}, {v(b+4*k+2)}")
                A(f"v_cvt_pk_bf16_f32 {v(74+k)}, {v(b+4*k+1)}, {v(b+4*k+3)}")
            if i == 5: self.mask_q320(70)
            A(f"buffer_store_dwordx4 v[70:73], v9, {srd(SWS)}, s57 offen sc1")
            A(f"buffer_store_dwordx4 v[74:77], v9, {srd(SWS)}, s57 offen offset:1024 sc1")
            A(f"s_add_u32 s57, s57, {4*40960}")
            A("s_nop 1")
        A("s_branch L_p1_done")
        A.label("L_gv_sa")
        for k in range(4): A(f"v_cvt_pk_bf16_f32 {v(78+k)}, {v(60+2*k)}, {v(61+2*k)}")
        A("v_lshrrev_b32 v9, 4, v1"); A("v_lshlrev_b32 v9, 4, v9")
        A("s_mul_i32 s57, s56, 2688"); A(f"s_lshl_b32 s58, {s(sW)}, 6"); A("s_add_u32 s57, s57, s58"); A(f"s_add_u32 s57, s57, {hex(SAP_OFF)}")
        A("v_and_b32 v8, 15, v1"); A("v_cmp_eq_u32 s[62:63], 0, v8")
        for i in range(6):
            if i == 5:
                A(f"s_cmp_lg_u32 {s(sW)}, 0"); A("s_cbranch_scc1 L_p1_done")
            b = 100 + 16 * i
            for k in range(4):
                A(f"v_cvt_pk_bf16_f32 {v(70+k)}, {v(b+4*k)}, {v(b+4*k+2)}")
                A(f"v_cvt_pk_bf16_f32 {v(74+k)}, {v(b+4*k+1)}, {v(b+4*k+3)}")
            if i == 5: self.mask_q320(70)
            A("v_mfma_f32_16x16x32_bf16 v[84:87], v[70:73], v[78:81], 0")
            A("v_mfma_f32_16x16x32_bf16 v[88:91], v[74:77], v[78:81], 0")
            A("s_mov_b64 s[60:61], exec"); A("s_mov_b64 exec, s[62:63]")
            A(f"buffer_store_dwordx4 v[84:87], v9, {srd(SWS)}, s57 offen sc1")
            A(f"buffer_store_dwordx4 v[88:91], v9, {srd(SWS)}, s57 offen offset:1344 sc1")
            A("s_mov_b64 exec, s[60:61]")
            A(f"s_add_u32 s57, s57, {4*64}")
            A("s_nop 1")
    def mask_q320(self, b):
        A = self.A
        A("v_and_b32 v8, 15, v1"); A("v_cmp_eq_u32 vcc, 0, v8")
        for k in range(8): A(f"v_cndmask_b32 {v(b+k)}, 0, {v(b+k)}, vcc")
    def trig_states(self):
        A = self.A
        A("v_and_b32 v7, 15, v1"); A("v_lshrrev_b32 v8, 4, v1")
        A(f"s_lshl_b32 s57, {s(sW)}, 4"); A("v_add_u32 v7, s57, v7")
        A("s_lshl_b32 s57, s56, 5"); A("v_lshl_add_u32 v8, v8, 2, s57")
        for jj in range(8):
            off = 16 * (jj >> 2) + (jj & 3)
            A(f"v_add_u32 v60, {off}, v8")
            A("v_mul_u32_u24 v61, v7, v60"); self.mod640(61, 61, 62)
            self.sincos_idx(61, INV640, 100 + 2 * jj, 101 + 2 * jj, 62)
            A("v_lshlrev_b32 v61, 6, v60"); self.mod640(61, 61, 62)
            self.sincos_idx(61, INV640, 68 + 2 * jj, 69 + 2 * jj, 62)
        for i in range(1, 6):
            for jj in range(8):
                p = 100 + 16 * (i - 1) + 2 * jj; n = p + 16; r = 68 + 2 * jj
                A(f"v_pk_mul_f32 {v(n,2)}, {v(p,2)}, {v(r,2)} op_sel:[0,0] op_sel_hi:[1,0]")
                A(f"v_pk_fma_f32 {v(n,2)}, {v(p,2)}, {v(r,2)}, {v(n,2)} op_sel:[1,1,0] op_sel_hi:[0,1,1] neg_lo:[0,1,0]")
    def g_gen(self):
        A = self.A
        A(f"s_and_b32 s57, {s(sW)}, 1"); A("s_lshl_b32 s58, s56, 1"); A("s_add_u32 s57, s57, s58")
        A("s_mul_i32 s58, s57, 52"); A("s_lshr_b32 s58, s58, 8")
        A("s_mul_i32 s59, s58, 5"); A("s_sub_u32 s59, s57, s59")
        A(f"s_lshr_b32 s60, {s(sW)}, 1")
        A("s_mul_i32 s58, s58, 21"); A("s_add_u32 s58, s58, s60"); A("s_mul_i32 s58, s58, 5120")
        A("s_lshl_b32 s59, s59, 10"); A("s_add_u32 s58, s58, s59"); A(f"s_add_u32 s58, s58, {hex(GP_OFF)}")
        A("v_and_b32 v7, 15, v1"); A("v_lshrrev_b32 v8, 4, v1")
        A("s_lshl_b32 s57, s57, 4"); A("v_add_u32 v7, s57, v7")
        A("s_lshl_b32 s60, s60, 4"); A("v_lshl_add_u32 v8, v8, 2, s60")
        SC2 = "0x35cccccd"
        for r in range(4):
            A(f"v_add_u32 v60, {r}, v8"); A("v_mul_u32_u24 v61, v7, v60"); self.mod640(61, 61, 62)
            self.sincos_idx(61, INV640, 100 + 2 * r, 101 + 2 * r, 62)
            A(f"v_mul_f32 {v(100+2*r)}, {SC2}, {v(100+2*r)}"); A(f"v_mul_f32 {v(101+2*r)}, {SC2}, {v(101+2*r)}")
        A("v_lshlrev_b32 v61, 5, v7"); self.mod640(61, 61, 62)
        self.sincos_idx(61, INV640, 68, 69, 62)
        A("v_lshlrev_b32 v9, 4, v1")
        for i in range(11):
            if i == 10:
                A(f"s_cmp_ge_u32 {s(sW)}, 2"); A("s_cbranch_scc1 L_gv_pre_done")
            src = 100
            if i in (0, 10):
                for r in range(4):
                    A(f"v_add_u32 v60, {r + 32*i}, v8")
                    A("v_mov_b32 v61, 1.0")
                    A("v_cmp_eq_u32 vcc, 0, v60"); A("v_cndmask_b32 v61, v61, 0.5, vcc") if False else None
                    A("v_mov_b32 v62, 0.5"); A("v_cndmask_b32 v61, v61, v62, vcc")
                    A("v_cmp_eq_u32 vcc, 320, v60"); A("v_cndmask_b32 v61, v61, v62, vcc")
                    A("v_mov_b32 v62, 0"); A("v_cmp_lt_u32 vcc, 320, v60"); A("v_cndmask_b32 v61, v61, v62, vcc")
                    A(f"v_mul_f32 {v(110+2*r)}, {v(100+2*r)}, v61"); A(f"v_mul_f32 {v(111+2*r)}, {v(101+2*r)}, v61")
                src = 110
            A(f"v_cvt_pk_bf16_f32 v70, {v(src)}, {v(src+2)}"); A(f"v_cvt_pk_bf16_f32 v71, {v(src+4)}, {v(src+6)}")
            A(f"v_cvt_pk_bf16_f32 v72, {v(src+1)}, {v(src+3)}"); A(f"v_cvt_pk_bf16_f32 v73, {v(src+5)}, {v(src+7)}")
            A(f"buffer_store_dwordx4 v[70:73], v9, {srd(SWS)}, s58 offen sc1")
            A(f"s_add_u32 s58, s58, {2*5120}")
            if i < 10:
                for r in range(4):
                    p = 100 + 2 * r
                    A(f"v_pk_mul_f32 v[64:65], {v(p,2)}, v[68:69] op_sel:[0,0] op_sel_hi:[1,0]")
                    A(f"v_pk_fma_f32 {v(p,2)}, {v(p,2)}, v[68:69], v[64:65] op_sel:[1,1,0] op_sel_hi:[0,1,1] neg_lo:[0,1,0]")


    def p2_roles(self):
        A = self.A
        A("s_and_b32 s52, s2, 7"); A("s_lshr_b32 s53, s2, 3")
        A("s_mul_i32 s54, s53, 37"); A("s_lshr_b32 s54, s54, 8")
        A("s_mul_i32 s55, s54, 7"); A("s_sub_u32 s55, s53, s55")
        A("s_lshl_b32 s54, s54, 3"); A("s_add_u32 s54, s54, s52")
        A("s_mul_i32 s56, s55, 3"); A(f"s_add_u32 s56, s56, {s(sW)}")
    def p2_pre(self):
        A = self.A
        self.p2_roles()
        A("s_cmp_ge_u32 s53, 28"); A("s_cbranch_scc1 L_p2pre_done")
        A(f"s_cmp_eq_u32 {s(sW)}, 3"); A("s_cbranch_scc1 L_p2pre_done")
        A("s_mov_b32 s57, s54")
        A("s_sub_u32 s58, 2048, s54"); A("s_cmp_eq_u32 s54, 0"); A("s_cselect_b32 s58, 32, s58")
        A("v_and_b32 v4, 15, v1"); A("v_lshrrev_b32 v5, 4, v1")
        A("s_lshl_b32 s59, s56, 4"); A("v_add_u32 v6, s59, v4"); A("v_lshlrev_b32 v6, 1, v6")
        for k in range(32): A(f"v_mov_b32 {v(200+k)}, 0")
        for sg in range(2):
            A(f"v_lshl_add_u32 v7, v5, 8, {s(57+sg)}")
            for mt in range(2):
                for r in range(4):
                    A(f"v_add_u32 v8, {64*(16*mt+r)}, v7"); A("v_and_b32 v8, 2047, v8")
                    A("v_mul_u32_u24 v8, 642, v8"); A(f"v_add_u32 {v(10+8*mt//2*2*0+ (4*mt+r))}, v8, v6")
            for mt in range(2):
                for r in range(4):
                    A(f"buffer_load_short_d16_hi {v(200+16*sg+4*mt+r)}, {v(10+4*mt+r)}, {srd(SWR)}, 0 offen")
                    A(f"buffer_load_short_d16_hi {v(208+16*sg+4*mt+r)}, {v(10+4*mt+r)}, {srd(SWI)}, 0 offen")
        INV = "0x3a000000"
        A("v_lshlrev_b32 v7, 2, v5")
        for inv in range(2):
            for sg in range(2):
                for tl in range(2):
                    base = 160 + 48 * inv + 24 * sg + 12 * tl
                    if inv == 0:
                        A(f"v_add_u32 v8, {16*tl}, v4"); A(f"v_lshl_add_u32 v8, v8, 6, {s(57+sg)}")
                    else:
                        A(f"v_add_u32 v8, {16*tl}, v4")
                    for jj in range(8):
                        o = 16 * (jj >> 2) + (jj & 3)
                        A(f"v_add_u32 v9, {o}, v7")
                        if inv == 1: A(f"v_lshl_add_u32 v9, v9, 6, {s(57+sg)}")
                        A("v_mul_u32_u24 v9, v8, v9"); A("v_and_b32 v9, 2047, v9")
                        self.sincos_idx(9, INV, 20 + jj, 28 + jj, 18)
                    for k in range(4):
                        A(f"v_cvt_pk_bf16_f32 v36, {v(20+2*k)}, {v(21+2*k)}")
                        A(f"v_cvt_pk_bf16_f32 v37, {v(28+2*k)}, {v(29+2*k)}")
                        A("v_xor_b32 v38, 0x80008000, v37")
                        A(f"v_accvgpr_write_b32 {a(base+k)}, v36"); A(f"v_accvgpr_write_b32 {a(base+4+k)}, v37"); A(f"v_accvgpr_write_b32 {a(base+8+k)}, v38")
        A.label("L_p2pre_done")
    def p2_main(self):
        A = self.A
        self.p2_roles()
        A("s_cmp_ge_u32 s53, 28"); A("s_cbranch_scc1 L_p2_idle")
        A("s_waitcnt vmcnt(0)")
        A("v_lshlrev_b32 v2, 4, v1")
        A(f"s_lshr_b32 s57, {s(sW)}, 1"); A("s_lshl_b32 s57, s57, 5"); A("s_add_u32 s57, s57, s54"); A("s_mul_i32 s57, s57, 40960")
        A(f"s_and_b32 s58, {s(sW)}, 1"); A("s_lshl_b32 s58, s58, 10"); A("s_add_u32 s57, s57, s58")
        if T0_OFF: A(f"s_add_u32 s57, s57, {hex(T0_OFF)}")
        A(f"s_lshl_b32 s58, {s(sW)}, 10")
        A("s_mul_i32 s59, s56, 40960"); A(f"s_add_u32 s59, s59, {hex(FP_OFF)}")
        A(f"s_cmp_eq_u32 {s(sW)}, 3"); A("s_cbranch_scc1 L_p2_w3")
        for t in range(20):
            A(f"s_add_u32 m0, s58, {t*4096}")
            A(f"buffer_load_dwordx4 v2, {srd(SWS)}, s57 offen sc1 lds")
            A(f"buffer_load_dwordx4 {a(8*t,4)}, v2, {srd(SWS)}, s59 offen sc1")
            A(f"buffer_load_dwordx4 {a(8*t+4,4)}, v2, {srd(SWS)}, s59 offen offset:1024 sc1")
            if t < 19:
                A("s_add_u32 s57, s57, 2048"); A("s_add_u32 s59, s59, 2048")
        A("v_and_b32 v4, 15, v1"); A("v_lshrrev_b32 v5, 4, v1")
        A("v_lshrrev_b32 v6, 2, v4")
        A("v_lshrrev_b32 v7, 1, v6"); A("v_xor_b32 v8, v6, v7"); A("v_and_b32 v8, 1, v8"); A("v_lshl_or_b32 v7, v8, 1, v7")
        A("v_xor_b32 v7, v7, v5"); A("v_lshlrev_b32 v7, 4, v7"); A("v_lshl_add_u32 v3, v4, 6, v7")
        A("v_add_u32 v9, 40960, v3")
        A("v_mul_u32_u24 v10, 13440, v5"); A("v_lshl_add_u32 v10, v4, 2, v10")
        A("s_lshl_b32 s60, s56, 6"); A(f"s_add_u32 s60, s60, {hex(SAP_OFF)}")
        def rd(t, buf):
            ad = "v3" if t < 10 else "v9"; o = (t % 10) * 4096
            for ab in range(2):
                for st in range(2):
                    A(f"ds_read_b128 {v(40+16*buf+8*ab+4*st,4)}, {ad} offset:{o+ab*2048+st*1024}")
        def mm(t, buf):
            for ab in range(2):
                for st in range(2):
                    for cs in range(2):
                        d = v(72 + 16 * ab + 8 * st + 4 * cs, 4)
                        A(f"v_mfma_f32_16x16x32_bf16 {d}, {v(40+16*buf+8*ab+4*st,4)}, {a(8*t+4*cs,4)}, {'0' if t == 0 else d}")
        waits = [45, 40, 25, 10]
        for gm in range(4):
            A(f"s_waitcnt vmcnt({waits[gm]})"); A("s_barrier")
            if gm == 0:
                pass
            t0 = 5 * gm
            rd(t0, t0 & 1)
            if gm == 0:
                for tt in range(5):
                    for cs in range(2):
                        A(f"buffer_load_dword {v(184+2*tt+cs)}, v10, {srd(SWS)}, s60 offen offset:{cs*1344} sc1")
                    A("s_add_u32 s60, s60, 2688")
            for t in range(t0, t0 + 5):
                if t + 1 < t0 + 5:
                    rd(t + 1, (t + 1) & 1); A("s_waitcnt lgkmcnt(4)")
                else:
                    A("s_waitcnt lgkmcnt(0)")
                mm(t, t & 1)
        A("s_waitcnt vmcnt(0)")
        Ac = lambda st: 72 + 8 * st; As = lambda st: 76 + 8 * st; Bc = lambda st: 88 + 8 * st; Bs = lambda st: 92 + 8 * st
        Z = lambda sg, c, st: 104 + 16 * sg + 8 * c + 4 * st
        def pk(op, d, x, y, negx=0, negy=0):
            m = ""
            if negx or negy: m = f" neg_lo:[{negx},{negy}] neg_hi:[{negx},{negy}]"
            A(f"{op} {v(d,2)}, {v(x,2)}, {v(y,2)}{m}")
        A("s_cmp_eq_u32 s54, 0"); A("s_cbranch_scc1 L_p2_spec1")
        for st in range(2):
            for h in (0, 2):
                pk("v_pk_add_f32", Z(0,0,st)+h, Ac(st)+h, Bs(st)+h)
                pk("v_pk_add_f32", Z(0,1,st)+h, Bc(st)+h, As(st)+h, 0, 1)
                pk("v_pk_add_f32", Z(1,0,st)+h, Ac(st)+h, Bs(st)+h, 0, 1)
                pk("v_pk_add_f32", Z(1,1,st)+h, Bc(st)+h, As(st)+h, 1, 1)
        A("s_branch L_p2_c1")
        A.label("L_p2_spec1")
        for tt in range(1, 5):
            A(f"v_add_f32 v184, v184, {v(184+2*tt)}"); A(f"v_add_f32 v185, v185, {v(185+2*tt)}")
        for xm in (16, 32):
            A(f"v_xor_b32 v10, {xm}, v1"); A("v_lshlrev_b32 v10, 2, v10")
            A("ds_bpermute_b32 v186, v10, v184"); A("ds_bpermute_b32 v187, v10, v185")
            A("s_waitcnt lgkmcnt(0)")
            A("v_add_f32 v184, v184, v186"); A("v_add_f32 v185, v185, v187")
        A("v_mul_f32 v184, 0x42800000, v184"); A("v_mul_f32 v185, 0x42800000, v185")
        for st in range(2):
            for r in range(4):
                A(f"v_add_f32 {v(Z(0,0,st)+r)}, {v(Ac(st)+r)}, v184")
                A(f"v_add_f32 {v(Z(0,1,st)+r)}, {v(As(st)+r)}, v185"); A(f"v_sub_f32 {v(Z(0,1,st)+r)}, 0, {v(Z(0,1,st)+r)}")
                A(f"v_mov_b32 {v(Z(1,0,st)+r)}, {v(Bc(st)+r)}")
                A(f"v_sub_f32 {v(Z(1,1,st)+r)}, 0, {v(Bs(st)+r)}")
        A.label("L_p2_c1")
        ZP = lambda sg, c: 136 + 8 * sg + 4 * c
        def pack():
            for sg in range(2):
                for c in range(2):
                    for k in range(4):
                        A(f"v_cvt_pk_bf16_f32 {v(ZP(sg,c)+k)}, {v(Z(sg,c,0)+2*k)}, {v(Z(sg,c,0)+2*k+1)}")
        pack()
        FW = lambda inv, sg, tl, w: a(160 + 48 * inv + 24 * sg + 12 * tl + 4 * w, 4)
        for sg in range(2):
            for mt in range(2):
                xr = v(Z(sg,0,mt), 4); xi = v(Z(sg,1,mt), 4)
                A(f"v_mfma_f32_16x16x32_bf16 {xr}, {FW(0,sg,mt,0)}, {v(ZP(sg,0),4)}, 0")
                A(f"v_mfma_f32_16x16x32_bf16 {xi}, {FW(0,sg,mt,0)}, {v(ZP(sg,1),4)}, 0")
            for mt in range(2):
                xr = v(Z(sg,0,mt), 4); xi = v(Z(sg,1,mt), 4)
                A(f"v_mfma_f32_16x16x32_bf16 {xr}, {FW(0,sg,mt,1)}, {v(ZP(sg,1),4)}, {xr}")
                A(f"v_mfma_f32_16x16x32_bf16 {xi}, {FW(0,sg,mt,2)}, {v(ZP(sg,0),4)}, {xi}")
        Y = lambda sg, c, mt: 152 + 16 * sg + 8 * c + 4 * mt
        WR = lambda sg, mt: 200 + 16 * sg + 4 * mt; WI = lambda sg, mt: 208 + 16 * sg + 4 * mt
        for sg in range(2):
            for mt in range(2):
                for h in (0, 2):
                    xr = Z(sg,0,mt)+h; xi = Z(sg,1,mt)+h; wr = WR(sg,mt)+h; wi = WI(sg,mt)+h
                    yr = Y(sg,0,mt)+h; yi = Y(sg,1,mt)+h
                    A(f"v_pk_mul_f32 {v(yr,2)}, {v(xi,2)}, {v(wi,2)}")
                    A(f"v_pk_mul_f32 {v(yi,2)}, {v(xi,2)}, {v(wr,2)}")
                    A(f"v_pk_fma_f32 {v(yr,2)}, {v(xr,2)}, {v(wr,2)}, {v(yr,2)} neg_lo:[0,0,1] neg_hi:[0,0,1]")
                    A(f"v_pk_fma_f32 {v(yi,2)}, {v(xr,2)}, {v(wi,2)}, {v(yi,2)}")
        for sg in range(2):
            for c in range(2):
                for k in range(4):
                    A(f"v_cvt_pk_bf16_f32 {v(ZP(sg,c)+k)}, {v(Y(sg,c,0)+2*k)}, {v(Y(sg,c,0)+2*k+1)}")
        for sg in range(2):
            for nt in range(2):
                vr = v(Z(sg,0,nt), 4); vi = v(Z(sg,1,nt), 4)
                A(f"v_mfma_f32_16x16x32_bf16 {vr}, {v(ZP(sg,0),4)}, {FW(1,sg,nt,0)}, 0")
                A(f"v_mfma_f32_16x16x32_bf16 {vi}, {v(ZP(sg,1),4)}, {FW(1,sg,nt,0)}, 0")
            for nt in range(2):
                vr = v(Z(sg,0,nt), 4); vi = v(Z(sg,1,nt), 4)
                A(f"v_mfma_f32_16x16x32_bf16 {vr}, {v(ZP(sg,1),4)}, {FW(1,sg,nt,2)}, {vr}")
                A(f"v_mfma_f32_16x16x32_bf16 {vi}, {v(ZP(sg,0),4)}, {FW(1,sg,nt,1)}, {vi}")
        A("v_lshrrev_b32 v6, 1, v5"); A("v_lshlrev_b32 v6, 7, v6"); A("v_and_b32 v7, 1, v5"); A("v_lshl_or_b32 v6, v7, 4, v6")
        A("s_mov_b32 s60, 86016"); A("v_mul_lo_u32 v7, v4, s60"); A("v_add_u32 v6, v6, v7")
        A("s_lshl_b32 s60, s56, 12")
        A("s_lshr_b32 s61, s54, 3"); A("s_lshl_b32 s61, s61, 10"); A("s_add_u32 s60, s60, s61")
        A("s_and_b32 s61, s54, 7"); A("s_lshr_b32 s61, s61, 1"); A("s_lshl_b32 s61, s61, 8"); A("s_add_u32 s60, s60, s61")
        A("s_and_b32 s61, s54, 1"); A("s_lshl_b32 s61, s61, 6"); A("s_add_u32 s60, s60, s61")
        A(f"s_add_u32 s60, s60, {hex(A3_OFF)}")
        RC = lambda nt: 152 + 16 * nt; RS = lambda nt: 156 + 16 * nt; IC = lambda nt: 160 + 16 * nt; IS = lambda nt: 164 + 16 * nt
        A("s_cmp_eq_u32 s54, 0"); A("s_cbranch_scc1 L_p2_spec2")
        for nt in range(2):
            for h in (0, 2):
                pk("v_pk_add_f32", RC(nt)+h, Z(0,0,nt)+h, Z(1,0,nt)+h)
                pk("v_pk_add_f32", RS(nt)+h, Z(0,1,nt)+h, Z(1,1,nt)+h, 1, 1)
                pk("v_pk_add_f32", IC(nt)+h, Z(0,1,nt)+h, Z(1,1,nt)+h, 0, 1)
                pk("v_pk_add_f32", IS(nt)+h, Z(0,0,nt)+h, Z(1,0,nt)+h, 0, 1)
        A("s_branch L_p2_c2")
        A.label("L_p2_spec2")
        for nt in range(2):
            for r in range(4):
                A(f"v_mov_b32 {v(RC(nt)+r)}, {v(Z(0,0,nt)+r)}"); A(f"v_sub_f32 {v(RS(nt)+r)}, 0, {v(Z(0,1,nt)+r)}")
                A(f"v_mov_b32 {v(IC(nt)+r)}, {v(Z(1,0,nt)+r)}"); A(f"v_sub_f32 {v(IS(nt)+r)}, 0, {v(Z(1,1,nt)+r)}")
        A.label("L_p2_c2")
        for nt in range(2):
            for e in range(2):
                b = 152 + 16 * nt + 8 * e; p = 136 + 8 * nt + 4 * e
                for k in range(4):
                    A(f"v_cvt_pk_bf16_f32 {v(p+k)}, {v(b+2*k)}, {v(b+2*k+1)}")
                A(f"buffer_store_dwordx4 {v(p,4)}, v6, {srd(SWS)}, s60 offen offset:{32*e} sc1")
            if nt == 0: A(f"s_add_u32 s60, s60, {16*86016}")
        A("s_branch L_p2_done")
        A.label("L_p2_w3")
        for t in range(20):
            A(f"s_add_u32 m0, s58, {t*4096}")
            A(f"buffer_load_dwordx4 v2, {srd(SWS)}, s57 offen sc1 lds")
            if t < 19: A("s_add_u32 s57, s57, 2048")
        self.uv_issue()
        for gm in range(4):
            A(f"s_waitcnt vmcnt({25-5*gm})"); A("s_barrier")
        self.uv_compute()
        A("s_branch L_p2_done")
        A.label("L_p2_idle")
        A.label("L_p2_done")


    STG13 = 86016
    STG2 = 106496
    def repack13(self):
        A = self.A
        A("s_cmp_ge_u32 s2, 216"); A("s_cbranch_scc1 L_rp13_done")
        A("s_lshr_b32 s52, s2, 3"); A("s_and_b32 s53, s2, 7")
        A("v_lshrrev_b32 v4, 3, v1"); A("v_and_b32 v5, 7, v1")
        A("v_mul_u32_u24 v4, 3456, v4"); A("v_lshl_add_u32 v4, v5, 4, v4")
        A(f"s_and_b32 s54, {s(sW)}, 1"); A("s_mul_i32 s54, s54, 40")
        A("s_mul_i32 s55, s53, 80"); A("s_add_u32 s54, s54, s55"); A("s_mul_i32 s54, s54, 3456")
        A("s_lshl_b32 s55, s52, 7"); A("s_add_u32 s54, s54, s55")
        A(f"s_mul_i32 s55, {s(sW)}, 5120"); A(f"s_add_u32 s55, s55, {self.STG13}")
        A(f"s_cmp_ge_u32 {s(sW)}, 2"); A("s_cbranch_scc1 L_rp13_w3")
        for n in range(5):
            A(f"s_add_u32 m0, s55, {n*1024}")
            A(f"buffer_load_dwordx4 v4, {srd(SW1)}, s54 offen lds")
            A(f"s_add_u32 s54, s54, {8*3456}")
        A("s_branch L_rp13_c")
        A.label("L_rp13_w3")
        for n in range(5):
            A(f"s_add_u32 m0, s55, {n*1024}")
            A(f"buffer_load_dwordx4 v4, {srd(SW3)}, s54 offen lds")
            A(f"s_add_u32 s54, s54, {8*3456}")
        A.label("L_rp13_c")
        self.rp13_addr(6, 7)
        A(f"s_lshl_b32 s54, {s(sW)}, 5"); A("v_add_u32 v6, s54, v6"); A("v_add_u32 v7, s54, v7")
        A("s_waitcnt vmcnt(0)"); A("s_barrier")
        self.rp13_read(6, 7, 40)
        A("s_lshl_b32 s54, s52, 2"); A(f"s_add_u32 s54, s54, {s(sW)}"); A("s_mul_i32 s54, s54, 40")
        A("s_mul_i32 s55, s53, 5"); A("s_add_u32 s54, s54, s55"); A("s_lshl_b32 s54, s54, 10"); A(f"s_add_u32 s54, s54, {hex(W13_OFF)}")
        A("v_lshlrev_b32 v8, 4, v1")
        A("s_waitcnt lgkmcnt(0)")
        for k5 in range(5):
            A(f"buffer_store_dwordx4 {v(40+4*k5,4)}, v8, {srd(SWS)}, s54 offen sc1")
            if k5 < 4: A("s_add_u32 s54, s54, 1024")
        A.label("L_rp13_done")
    def rp13_addr(self, va, vb):
        A = self.A
        A("v_lshrrev_b32 v10, 4, v1"); A("v_and_b32 v11, 1, v10"); A("v_lshrrev_b32 v10, 1, v10")
        A("v_bfe_u32 v12, v1, 2, 2"); A("v_and_b32 v13, 3, v1")
        A("v_mul_u32_u24 v11, 10240, v11"); A("v_lshl_add_u32 v11, v13, 3, v11"); A(f"v_add_u32 v11, {self.STG13}, v11")
        A(f"v_lshl_add_u32 v13, v10, 2, v12"); A(f"v_lshl_add_u32 {v(va)}, v13, 7, v11")
        A(f"v_lshl_add_u32 v13, v10, 3, v12"); A(f"v_lshl_add_u32 {v(vb)}, v13, 7, v11")
    def rp13_read(self, va, vb, dst, extra=0):
        A = self.A
        for k5 in range(5):
            for h in range(2):
                if k5 < 4:
                    row = 32 * (k5 >> 1) + 16 * h + 8 * (k5 & 1); ad = va
                else:
                    row = 64 + 4 * h; ad = vb
                A(f"ds_read_b64_tr_b16 {v(dst+4*k5+2*h,2)}, {v(ad)} offset:{row*128+extra}")
    def repack2(self):
        A = self.A
        A("s_cmp_ge_u32 s2, 216"); A("s_cbranch_scc1 L_rp2_big")
        A(f"s_cmp_lg_u32 {s(sW)}, 0"); A("s_cbranch_scc1 L_rp2_done")
        A("s_mov_b32 s52, s2"); A("s_mov_b32 s53, 1")
        A("s_branch L_rp2_go")
        A.label("L_rp2_big")
        A("s_sub_u32 s52, s2, 216"); A("s_lshl_b32 s52, s52, 2"); A(f"s_add_u32 s52, s52, {s(sW)}"); A("s_add_u32 s52, s52, 216")
        A("s_mov_b32 s53, 3")
        A.label("L_rp2_go")
        A("v_lshrrev_b32 v4, 3, v1"); A("v_and_b32 v5, 7, v1")
        A("v_mul_u32_u24 v4, 1280, v4"); A("v_lshl_add_u32 v4, v5, 4, v4")
        A("v_lshrrev_b32 v10, 4, v1"); A("v_lshrrev_b32 v11, 1, v10"); A("v_and_b32 v10, 1, v10")
        A("v_lshlrev_b32 v11, 4, v11"); A("v_lshl_add_u32 v11, v10, 2, v11"); A("v_bfe_u32 v12, v1, 2, 2"); A("v_add_u32 v11, v11, v12")
        A("v_and_b32 v13, 3, v1"); A("v_lshlrev_b32 v13, 3, v13"); A("v_lshl_add_u32 v6, v11, 7, v13")
        A(f"s_mul_i32 s54, {s(sW)}, 12288"); A(f"s_add_u32 s54, s54, {self.STG2}")
        A("v_add_u32 v6, s54, v6")
        A("v_lshlrev_b32 v8, 4, v1")
        A.label("L_rp2_loop")
        A("s_cmp_ge_u32 s52, 540"); A("s_cbranch_scc1 L_rp2_done")
        A("s_mul_i32 s55, s52, 205"); A("s_lshr_b32 s55, s55, 11")
        A("s_mul_i32 s56, s55, 10"); A("s_sub_u32 s56, s52, s56")
        A("s_mul_i32 s57, s55, 40960"); A("s_lshl_b32 s58, s56, 7"); A("s_add_u32 s57, s57, s58")
        for n in range(4):
            A(f"s_add_u32 m0, s54, {n*1024}")
            A(f"buffer_load_dwordx4 v4, {srd(SW2)}, s57 offen lds")
            A(f"s_add_u32 s57, s57, {8*1280}")
        A("s_waitcnt vmcnt(0)")
        for dtl in range(4):
            for h in range(2):
                A(f"ds_read_b64_tr_b16 {v(60+4*dtl+2*h,2)}, v6 offset:{dtl*32 + h*8*128}")
        A("s_waitcnt lgkmcnt(0)")
        for dtl in range(4):
            A("s_lshl_b32 s57, s56, 2"); A(f"s_add_u32 s57, s57, {dtl}")
            A("s_mul_i32 s58, s57, 52"); A("s_lshr_b32 s58, s58, 8")
            A("s_mul_i32 s59, s58, 5"); A("s_sub_u32 s59, s57, s59")
            A("s_mul_i32 s58, s58, 54"); A("s_add_u32 s58, s58, s55"); A("s_mul_i32 s58, s58, 5"); A("s_add_u32 s58, s58, s59")
            A("s_lshl_b32 s58, s58, 10"); A(f"s_add_u32 s58, s58, {hex(W2P_OFF)}")
            A(f"buffer_store_dwordx4 {v(60+4*dtl,4)}, v8, {srd(SWS)}, s58 offen sc1")
        A("s_add_u32 s52, s52, 160"); A("s_sub_u32 s53, s53, 1"); A("s_cmp_lg_u32 s53, 0")
        A("s_cbranch_scc1 L_rp2_loop")
        A.label("L_rp2_done")
    def uv_issue(self, vm=None):
        A = self.A
        A("v_and_b32 v10, 31, v1"); A("v_lshrrev_b32 v11, 5, v1")
        A("v_lshlrev_b32 v12, 12, v10")
        A("v_cmp_lt_u32 vcc, 1, v10"); A("v_mov_b32 v13, 0x40000000"); A("v_cndmask_b32 v12, v12, v13, vcc")
        A("v_lshl_add_u32 v14, v11, 3, v12"); A("v_lshl_add_u32 v15, v11, 4, v12")
        A("s_and_b32 s61, s2, 7"); A("s_mul_i32 s61, s61, 160"); A(f"s_add_u32 s61, s61, {hex(CB1B_OFF)}")
        for k5 in range(5):
            for h in range(2):
                if k5 < 4: o = 2 * (32 * (k5 >> 1) + 16 * h + 8 * (k5 & 1)); ad = "v14"
                else: o = 2 * (64 + 4 * h); ad = "v15"
                A(f"buffer_load_dwordx2 {v(120+4*k5+2*h,2)}, {ad}, {srd(SWS)}, s61 offen offset:{o} sc1")
    def uv_compute(self):
        A = self.A
        lab = A.newlabel("L_uv_skip")
        A("s_cmp_ge_u32 s2, 216"); A(f"s_cbranch_scc1 {lab}")
        self.rp13_addr(6, 7)
        A("s_lshr_b32 s62, s2, 3"); A("s_and_b32 s63, s2, 7")
        A("v_and_b32 v10, 31, v1"); A("v_lshrrev_b32 v11, 5, v1")
        A("v_lshlrev_b32 v12, 7, v10"); A("v_lshl_add_u32 v12, v11, 4, v12")
        A("v_cmp_gt_u32 s[64:65], 2, v10")
        A("s_mul_i32 s63, s63, 108"); A("s_lshl_b32 s62, s62, 2"); A("s_add_u32 s62, s62, s63"); A("s_lshl_b32 s62, s62, 8"); A(f"s_add_u32 s62, s62, {hex(UVP_OFF)}")
        A("s_waitcnt vmcnt(0)")
        for tl in range(4):
            self.rp13_read(6, 7, 40, extra=32 * tl)
            A("s_waitcnt lgkmcnt(0)")
            for k5 in range(5):
                A(f"v_mfma_f32_32x32x16_bf16 v[64:79], {v(40+4*k5,4)}, {v(120+4*k5,4)}, {'0' if k5 == 0 else 'v[64:79]'}")
            A("s_mov_b64 s[66:67], exec"); A("s_mov_b64 exec, s[64:65]")
            for q in range(4):
                A(f"buffer_store_dwordx4 {v(64+4*q,4)}, v12, {srd(SWS)}, s62 offen offset:{32*q} sc1")
            A("s_mov_b64 exec, s[66:67]")
            A("s_add_u32 s62, s62, 256")
            A("s_nop 1")
        A.label(lab)


    X1 = 232
    def p35_roles(self):
        A = self.A
        A("s_and_b32 s52, s2, 7"); A("s_lshr_b32 s53, s2, 3")
        A("s_lshr_b32 s54, s53, 3"); A("s_lshl_b32 s54, s54, 3"); A("s_add_u32 s54, s54, s52")
        A("s_and_b32 s55, s53, 7")
    def p3_pre(self):
        A = self.A
        self.p35_roles()
        A("v_lshlrev_b32 v2, 4, v1")
        A("s_mul_i32 s56, s55, 107520"); A(f"s_lshl_b32 s57, {s(sW)}, 10"); A("s_add_u32 s56, s56, s57"); A(f"s_add_u32 s56, s56, {hex(GP_OFF)}")
        for k in range(27):
            A(f"s_add_u32 m0, s57, {k*4096}")
            A(f"buffer_load_dwordx4 v2, {srd(SWS)}, s56 offen sc1 lds")
            if k < 26: A("s_add_u32 s56, s56, 4096")
        A("v_and_b32 v4, 15, v1"); A("v_lshrrev_b32 v5, 4, v1")
        A("v_mul_u32_u24 v6, 0xa000, v4"); A("v_lshl_add_u32 v6, v5, 3, v6")
        A(f"s_lshl_b32 s56, {s(sW)}, 9"); A("s_add_u32 s56, s56, s54"); A("s_mul_i32 s56, s56, 1280"); A("s_mul_i32 s57, s55, 160"); A("s_add_u32 s56, s56, s57")
        for dt in range(5):
            A(f"buffer_load_dwordx2 {v(200+2*dt,2)}, v6, {srd(SX)}, s56 offen offset:{32*dt}")
        A("v_lshlrev_b32 v7, 4, v5")
        A("s_mul_i32 s56, s55, 320"); A(f"s_add_u32 s57, s56, {hex(GA_OFF)}"); A(f"s_add_u32 s58, s56, {hex(CB1F_OFF)}")
        for dt in range(5):
            A(f"buffer_load_dwordx4 {v(160+4*dt,4)}, v7, {srd(SWS)}, s57 offen offset:{64*dt} sc1")
            A(f"buffer_load_dwordx4 {v(180+4*dt,4)}, v7, {srd(SWS)}, s58 offen offset:{64*dt} sc1")
        A(f"s_lshl_b32 s56, {s(sW)}, 4"); A("v_add_u32 v8, s56, v4")
        A("v_lshlrev_b32 v9, 2, v5")
        for u in range(2):
            for jj in range(8):
                o = 32 * u + 16 * (jj >> 2) + (jj & 3)
                A(f"v_add_u32 v10, {o}, v9")
                A("v_lshrrev_b32 v11, 1, v10"); A("v_and_b32 v12, 1, v10")
                if o == 1:
                    A("v_cmp_eq_u32 vcc, 1, v10")
                    A("v_mov_b32 v13, 32"); A("v_cndmask_b32 v11, v11, v13, vcc")
                    A("v_mov_b32 v13, 0"); A("v_cndmask_b32 v12, v12, v13, vcc")
                A("v_lshlrev_b32 v12, 4, v12"); A("v_mad_u32_u24 v11, v11, v8, v12"); A("v_and_b32 v11, 63, v11")
                self.sincos_idx(11, "0x3c800000", 20 + jj, None, 13)
            for k in range(4):
                A(f"v_cvt_pk_bf16_f32 {v(210+4*u+k)}, {v(20+2*k)}, {v(21+2*k)}")
    def p3_main(self):
        A = self.A
        self.p35_roles()
        A("v_and_b32 v4, 15, v1"); A("v_lshrrev_b32 v5, 4, v1")
        A("v_lshrrev_b32 v6, 2, v4"); A("v_lshlrev_b32 v6, 8, v6"); A("v_lshrrev_b32 v7, 1, v5"); A("v_lshl_add_u32 v6, v7, 7, v6")
        A("v_and_b32 v7, 3, v4"); A("v_lshl_add_u32 v6, v7, 5, v6"); A("v_and_b32 v7, 1, v5"); A("v_lshl_add_u32 v6, v7, 4, v6")
        A("s_mul_i32 s56, s54, 86016"); A(f"s_lshl_b32 s57, {s(sW)}, 10"); A("s_add_u32 s56, s56, s57"); A(f"s_add_u32 s56, s56, {hex(A3_OFF)}")
        for tau in range(21):
            A(f"buffer_load_dwordx4 {a(4*tau,4)}, v6, {srd(SWS)}, s56 offen sc1")
            if tau < 20: A("s_add_u32 s56, s56, 4096")
        A("v_lshlrev_b32 v2, 4, v1"); A("v_add_u32 v3, 56320, v2")
        def rd(tau):
            ad = "v2" if tau < 11 else "v3"; o = (tau if tau < 11 else tau - 11) * 5120
            for dt in range(5):
                A(f"ds_read_b128 {v(60+20*(tau&1)+4*dt,4)}, {ad} offset:{o+dt*1024}")
        rd(0)
        for tau in range(21):
            if tau < 20:
                rd(tau + 1); A(f"s_waitcnt vmcnt({20-tau}) lgkmcnt(5)")
            else:
                A("s_waitcnt vmcnt(0) lgkmcnt(0)")
            for dt in range(5):
                d = v(40 + 4 * dt, 4)
                A(f"v_mfma_f32_16x16x32_bf16 {d}, {a(4*tau,4)}, {v(60+20*(tau&1)+4*dt,4)}, {'0' if tau == 0 else d}")
        XB = 107520
        A(f"s_lshr_b32 s56, {s(sW)}, 1"); A("s_mul_i32 s56, s56, 5120"); A(f"s_and_b32 s57, {s(sW)}, 1"); A("s_lshl_b32 s57, s57, 3")
        A("s_add_u32 s56, s56, s57"); A(f"s_add_u32 s56, s56, {XB}")
        A("v_add_u32 v8, s56, v2")
        for dt in range(5):
            A(f"v_cvt_pk_bf16_f32 {v(60+2*dt)}, {v(40+4*dt)}, {v(41+4*dt)}")
            A(f"v_cvt_pk_bf16_f32 {v(61+2*dt)}, {v(42+4*dt)}, {v(43+4*dt)}")
            A(f"ds_write_b64 v8, {v(60+2*dt,2)} offset:{dt*1024}")
        A("s_waitcnt lgkmcnt(0)"); A("s_barrier")
        A(f"v_add_u32 v8, {XB}, v2")
        for u in range(2):
            for dt in range(5):
                A(f"ds_read_b128 {v(60+20*u+4*dt,4)}, v8 offset:{(5*u+dt)*1024}")
        A("s_waitcnt lgkmcnt(5)")
        for dt in range(5):
            A(f"v_mfma_f32_16x16x32_bf16 {v(100+4*dt,4)}, {v(60+4*dt,4)}, v[210:213], 0")
        A("s_waitcnt lgkmcnt(0)")
        for dt in range(5):
            A(f"v_mfma_f32_16x16x32_bf16 {v(100+4*dt,4)}, {v(80+4*dt,4)}, v[214:217], {v(100+4*dt,4)}")
        X1 = self.X1
        for dt in range(5):
            for h in range(2):
                xr = 200 + 2 * dt + h
                A(f"v_lshlrev_b32 {v(X1+4*dt+2*h)}, 16, {v(xr)}")
                A(f"v_and_b32 {v(X1+4*dt+2*h+1)}, 0xffff0000, {v(xr)}")
        for dt in range(5):
            for h in (0, 2):
                A(f"v_pk_fma_f32 {v(X1+4*dt+h,2)}, {v(160+4*dt+h,2)}, {v(100+4*dt+h,2)}, {v(X1+4*dt+h,2)}")
        A(f"v_pk_add_f32 v[20:21], {v(X1,2)}, {v(X1+2,2)}")
        A(f"v_pk_mul_f32 v[22:23], {v(X1,2)}, {v(X1,2)}")
        A(f"v_pk_fma_f32 v[22:23], {v(X1+2,2)}, {v(X1+2,2)}, v[22:23]")
        for k in range(2, 10):
            A(f"v_pk_add_f32 v[20:21], v[20:21], {v(X1+2*k,2)}")
            A(f"v_pk_fma_f32 v[22:23], {v(X1+2*k,2)}, {v(X1+2*k,2)}, v[22:23]")
        A("v_add_f32 v20, v20, v21"); A("v_add_f32 v21, v22, v23")
        for sw in ("v_permlane16_swap_b32", "v_permlane32_swap_b32"):
            A("v_mov_b32 v22, v20"); A("v_mov_b32 v23, v21")
            A(f"{sw} v20, v22"); A(f"{sw} v21, v23")
            A("v_add_f32 v20, v20, v22"); A("v_add_f32 v21, v21, v23")
        for dt in range(5):
            for h in (0, 2):
                A(f"v_pk_mul_f32 {v(100+4*dt+h,2)}, {v(X1+4*dt+h,2)}, {v(180+4*dt+h,2)}")
        for dt in range(5):
            A(f"v_cvt_pk_bf16_f32 {v(60+2*dt)}, {v(100+4*dt)}, {v(101+4*dt)}")
            A(f"v_cvt_pk_bf16_f32 {v(61+2*dt)}, {v(102+4*dt)}, {v(103+4*dt)}")
        A("v_lshrrev_b32 v6, 1, v5"); A("v_and_b32 v7, 1, v5")
        A("v_lshlrev_b32 v8, 10, v6"); A("v_lshl_add_u32 v8, v7, 9, v8"); A("v_lshl_add_u32 v8, v4, 4, v8")
        A("v_lshlrev_b32 v9, 9, v6"); A("v_lshl_add_u32 v9, v4, 4, v9"); A("v_lshl_add_u32 v9, v7, 3, v9"); A("v_add_u32 v9, 4096, v9")
        A("s_lshl_b32 s56, s54, 1"); A(f"s_lshr_b32 s57, {s(sW)}, 1"); A("s_add_u32 s56, s56, s57"); A("s_mul_i32 s56, s56, 40960")
        A("s_mul_i32 s57, s55, 5120"); A("s_add_u32 s56, s56, s57")
        A(f"s_and_b32 s57, {s(sW)}, 1"); A("s_lshl_b32 s57, s57, 8"); A("s_add_u32 s56, s56, s57"); A(f"s_add_u32 s56, s56, {hex(X1C_OFF)}")
        A(f"buffer_store_dwordx4 v[60:63], v8, {srd(SWS)}, s56 offen sc1")
        A(f"buffer_store_dwordx4 v[64:67], v8, {srd(SWS)}, s56 offen offset:2048 sc1")
        A(f"buffer_store_dwordx2 v[68:69], v9, {srd(SWS)}, s56 offen sc1")
        A("s_lshl_b32 s56, s55, 14"); A("s_lshl_b32 s57, s54, 9"); A("s_add_u32 s56, s56, s57"); A(f"s_lshl_b32 s57, {s(sW)}, 7"); A("s_add_u32 s56, s56, s57")
        A(f"s_add_u32 s56, s56, {hex(ST2_OFF)}")
        A("v_lshlrev_b32 v8, 3, v4")
        A("s_mov_b64 s[60:61], exec"); A("s_mov_b64 exec, 0xffff")
        A(f"buffer_store_dwordx2 v[20:21], v8, {srd(SWS)}, s56 offen sc1")
        A("s_mov_b64 exec, s[60:61]")

    P4_NS = 120; P4_GS = 20; EXT = 122880
    def p4_roles(self):
        A = self.A
        A("s_and_b32 s52, s2, 7"); A("s_lshr_b32 s53, s2, 3")
        A("s_lshr_b32 s54, s52, 2"); A("s_lshl_b32 s54, s54, 3"); A("s_and_b32 s55, s53, 7"); A("s_add_u32 s54, s54, s55")
        A("s_and_b32 s55, s52, 3"); A("s_lshl_b32 s55, s55, 2"); A("s_lshr_b32 s56, s53, 3"); A("s_add_u32 s55, s55, s56")
    def p4_seq(self):
        seq = []
        for k in range(40):
            for tl in range(4): seq.append((tl, k))
        for k in range(40):
            for tl in (4, 5): seq.append((tl, k))
        for k in range(40): seq.append((6, k))
        return seq
    def p4_dma_group(self, g, vm):
        A = self.A
        GS, NS = self.P4_GS, self.P4_NS
        if g * GS >= 280: return
        for k in range(GS // 4):
            e0 = g * GS + 4 * k
            slot = e0 % NS
            A(f"s_add_u32 m0, s71, {slot*1024}")
            if e0 < 160: r, inc = 68, 1024
            elif e0 < 240: r, inc = 69, 2048
            else: r, inc = 70, 4096
            A(f"buffer_load_dwordx4 v2, {srd(SWS)}, {s(r)} offen sc1 lds")
            A(f"s_add_u32 {s(r)}, {s(r)}, {inc}")
            vm.append(("dma", g))
    def p4_pre(self):
        A = self.A
        self.p4_roles()
        self.vm4 = []
        A("v_lshlrev_b32 v2, 4, v1")
        A("s_mul_i32 s57, s55, 286720"); A(f"s_add_u32 s57, s57, {hex(W13_OFF)}")
        A(f"s_mul_i32 s58, {s(sW)}, 40960"); A("s_add_u32 s68, s57, s58")
        A(f"s_and_b32 s58, {s(sW)}, 1"); A("s_add_u32 s58, s58, 4"); A("s_mul_i32 s58, s58, 40960"); A("s_add_u32 s69, s57, s58")
        A(f"s_lshr_b32 s58, {s(sW)}, 1"); A("s_lshl_b32 s58, s58, 10"); A("s_add_u32 s69, s69, s58")
        A(f"s_lshl_b32 s58, {s(sW)}, 10"); A("s_add_u32 s70, s57, s58"); A(f"s_add_u32 s70, s70, {6*40960}")
        A(f"s_lshl_b32 s71, {s(sW)}, 10")
        for g in range(self.P4_NS // self.P4_GS):
            self.p4_dma_group(g, self.vm4)
        A("v_lshrrev_b32 v4, 5, v0"); A("v_and_b32 v5, 31, v0")
        A("v_lshlrev_b32 v6, 8, v4"); A("v_lshl_add_u32 v6, v5, 2, v6")
        A("s_mul_i32 s57, s55, 1792"); A(f"s_add_u32 s57, s57, {hex(UVP_OFF)}")
        for p in range(8):
            A(f"buffer_load_dword {v(10+p)}, v6, {srd(SWS)}, s57 offen sc1")
            A(f"buffer_load_dword {v(18+p)}, v6, {srd(SWS)}, s57 offen offset:128 sc1")
            if p < 7: A(f"s_add_u32 s57, s57, {108*256}")
        A("s_waitcnt vmcnt(0)")
        for p in range(1, 8):
            A(f"v_add_f32 v10, v10, {v(10+p)}"); A(f"v_add_f32 v18, v18, {v(18+p)}")
        for x, dst in ((10, 26), (18, 27)):
            A(f"v_cvt_pk_bf16_f32 v11, {v(x)}, {v(x)}"); A("v_lshlrev_b32 v12, 16, v11")
            A(f"v_sub_f32 v12, {v(x)}, v12")
            A(f"v_cvt_pk_bf16_f32 v12, v12, v12")
            A("v_and_b32 v11, 0xffff, v11"); A(f"v_lshl_or_b32 {v(dst)}, v12, 16, v11")
        A("v_mov_b32 v28, 0"); A("v_mov_b32 v29, 0")
        A("v_lshlrev_b32 v6, 9, v4"); A("v_lshl_add_u32 v6, v5, 4, v6"); A(f"v_add_u32 v6, {self.EXT}, v6")
        A("v_cmp_gt_u32 vcc, 224, v0"); A("s_and_saveexec_b64 s[60:61], vcc")
        A("ds_write_b128 v6, v[26:29]")
        A("s_mov_b64 exec, s[60:61]")
        self.vm4 = []
    def p4_main(self):
        A = self.A
        vm = self.vm4
        def vwait(pred):
            idx = max(i for i, x in enumerate(vm) if pred(x))
            n = len(vm) - 1 - idx
            return min(n, 63)
        self.p4_roles()
        A("v_lshlrev_b32 v2, 4, v1")
        A("v_and_b32 v4, 31, v1"); A("v_lshlrev_b32 v5, 3, v4")
        A("s_lshl_b32 s57, s54, 2"); A(f"s_add_u32 s57, s57, {s(sW)}")
        A("s_lshl_b32 s58, s57, 8"); A(f"s_add_u32 s58, s58, {hex(ST2_OFF)}")
        for c in range(8):
            A(f"buffer_load_dwordx2 {v(10+2*c,2)}, v5, {srd(SWS)}, s58 offen sc1"); vm.append(("st", c))
            if c < 7: A("s_add_u32 s58, s58, 16384")
        A("s_mul_i32 s58, s57, 40960"); A(f"s_add_u32 s58, s58, {hex(X1C_OFF)}")
        for k in range(40):
            A(f"buffer_load_dwordx4 {a(4*k,4)}, v2, {srd(SWS)}, s58 offen sc1"); vm.append(("tok", k))
            if k < 39: A("s_add_u32 s58, s58, 1024")
        A(f"s_waitcnt vmcnt({vwait(lambda x: x[0]=='st')})")
        for c in range(1, 8):
            A(f"v_pk_add_f32 v[10:11], v[10:11], {v(10+2*c,2)}")
        A("v_mul_f32 v10, 0x3acccccd, v10"); A("v_mul_f32 v11, 0x3acccccd, v11")
        A("v_fma_f32 v11, -v10, v10, v11"); A("v_max_f32 v11, 0, v11")
        self.rnd_bf16(11, 11); A("v_add_f32 v11, 0x3727c5ac, v11"); self.rnd_bf16(11, 11)
        A("v_sqrt_f32 v11, v11"); A("s_nop 0")
        A("v_cvt_pk_bf16_f32 v12, v11, v11")
        A("v_lshlrev_b32 v11, 16, v12")
        A("v_rcp_f32 v11, v11")
        A("v_cvt_pk_bf16_f32 v13, -v10, -v10")
        A("v_cmp_gt_u32 vcc, 32, v1")
        A("v_cndmask_b32 v13, 0, v13, vcc"); A("v_cndmask_b32 v12, 0, v12, vcc")
        A("v_mov_b32 v14, 0")
        A("v_accvgpr_write_b32 a160, v13"); A("v_accvgpr_write_b32 a161, v12"); A("v_accvgpr_write_b32 a162, v14"); A("v_accvgpr_write_b32 a163, v14")
        A("v_mul_f32 v176, 0xbfb8aa3b, v11")
        A("v_mul_f32 v177, v11, v11")
        A("v_bfe_u32 v5, v1, 4, 1"); A("v_mul_u32_u24 v5, 55296, v5"); A("v_lshrrev_b32 v6, 5, v1"); A("v_lshl_add_u32 v5, v6, 8, v5")
        A("v_and_b32 v6, 15, v1"); A("v_lshl_add_u32 v178, v6, 4, v5")
        A("s_mul_i32 s72, s57, 110592"); A(f"s_add_u32 s72, s72, {hex(HP_OFF)}")
        A("s_mul_i32 s73, s55, 7")
        A("v_and_b32 v6, 31, v1"); A("v_lshlrev_b32 v6, 4, v6"); A(f"v_add_u32 v179, {self.EXT}, v6")
        A("v_add_u32 v3, 61440, v2")
        seq = self.p4_seq()
        GS, NS = self.P4_GS, self.P4_NS
        ACC = {0: 40, 1: 56, 2: 72, 3: 88, 4: 104, 5: 120, 6: 40}
        WB = 136
        fill = []
        def rd(e):
            slot = e % NS
            ad = "v2" if slot < 60 else "v3"; o = (slot % 60) * 1024
            A(f"ds_read_b128 {v(WB+4*(e&3),4)}, {ad} offset:{o}")
        def epilogue(tl):
            L = []
            b = ACC[tl]; T = 152
            for h in range(0, 8, 2):
                L.append(f"v_pk_mul_f32 {v(T+h,2)}, {v(b+h,2)}, v[176:177] op_sel:[0,0] op_sel_hi:[1,0]")
            for h in range(8): L.append(f"v_exp_f32 {v(T+h)}, {v(T+h)}")
            for h in range(0, 8, 2):
                L.append(f"v_pk_mul_f32 {v(b+h,2)}, {v(b+h,2)}, {v(b+8+h,2)}")
            for h in range(0, 8, 2):
                L.append(f"v_pk_add_f32 {v(T+h,2)}, {v(T+h,2)}, 1.0 op_sel_hi:[1,0]")
            for h in range(0, 8, 2):
                L.append(f"v_pk_mul_f32 {v(b+h,2)}, {v(b+h,2)}, v[176:177] op_sel:[0,1] op_sel_hi:[1,1]")
            for h in range(8): L.append(f"v_rcp_f32 {v(T+h)}, {v(T+h)}")
            L.append("s_nop 0")
            for h in range(0, 8, 2):
                L.append(f"v_pk_mul_f32 {v(b+h,2)}, {v(b+h,2)}, {v(T+h,2)}")
            for k in range(4): L.append(f"v_cvt_pk_bf16_f32 {v(160+k)}, {v(b+2*k)}, {v(b+2*k+1)}")
            L.append(f"s_add_u32 s74, s73, {tl}")
            L.append("s_lshl_b32 s75, s74, 9")
            L.append("s_add_u32 s75, s75, s72")
            L.append("s_cmp_lt_u32 s74, 108")
            L.append("s_cselect_b32 s75, s75, 0x7000000")
            L.append(("STORE", f"buffer_store_dwordx4 v[160:163], v178, {srd(SWS)}, s75 offen sc1"))
            return L
        def emit_fill(n):
            while n > 0 and fill:
                x = fill.pop(0)
                if isinstance(x, tuple): A(x[1]); vm.append(("hst", 0))
                else: A(x)
                n -= 1
        inter = self.o.get("p4_inter", 1)
        ng = 280 // GS
        PD = NS // GS - 1
        done_tiles = []
        for g in range(ng):
            if g >= NS // GS:
                A(f"s_waitcnt vmcnt({vwait(lambda x: x == ('dma', g))})")
            A("s_barrier")
            if g >= 1: self.p4_dma_group(g + PD, vm)
            es = list(range(g * GS, (g + 1) * GS))
            rd(es[0]); rd(es[1])
            for idx, e in enumerate(es):
                tl, k = seq[e]
                if idx + 2 < GS: rd(es[idx + 2]); lg = 2
                else: lg = GS - 1 - idx
                w = f"lgkmcnt({lg})"
                if e < 160 and tl == 0:
                    w = f"vmcnt({vwait(lambda x: x == ('tok', k))}) " + w
                A(f"s_waitcnt {w}")
                d = v(ACC[tl], 16)
                A(f"v_mfma_f32_32x32x16_bf16 {d}, {v(WB+4*(e&3),4)}, {a(4*k,4)}, {'0' if k == 0 else d}")
                if inter: emit_fill(2)
                if k == 39 and (e in (159, 239, 279)):
                    tiles = {159: (0, 1, 2, 3), 239: (4, 5), 279: (6,)}[e]
                    emit_fill(10000)
                    for t2 in tiles:
                        A(f"ds_read_b128 {v(164+4*(t2&1),4)}, v179 offset:{t2*512}")
                        A("s_waitcnt lgkmcnt(0)")
                        d = v(ACC[t2], 16)
                        A(f"v_mfma_f32_32x32x16_bf16 {d}, {v(164+4*(t2&1),4)}, a[160:163], {d}")
                    for t2 in tiles: fill += epilogue(t2)
                    if not inter or e == 279: emit_fill(10000)

    P5_NG = 6
    def p5_dma_group(self, g, vm):
        A = self.A
        if g >= 14: return
        base = (g % self.P5_NG) * 20480
        A(f"s_add_u32 m0, s71, {base}")
        for ct in range(4):
            A(f"buffer_load_dwordx4 v2, {srd(SWS)}, s68 offen offset:{ct*1024} sc1 lds"); vm.append(("dma", g))
        A(f"s_add_u32 m0, s71, {base + 4096}")
        A("s_add_u32 s69, s68, 4096")
        A(f"buffer_load_dwordx4 v2, {srd(SWS)}, s69 offen sc1 lds"); vm.append(("dma", g))
        A(f"s_add_u32 s68, s68, {2*5120}")
    def p5_h_group(self, g, vm):
        A = self.A
        for sp in range(2):
            sg = 2 * g + sp
            if sg >= 27: return
            for tt in range(2):
                A(f"buffer_load_dwordx4 {a(8*sg+4*tt,4)}, v2, {srd(SWS)}, {s(72+tt)} offen sc1"); vm.append(("h", sg))
                A(f"s_add_u32 {s(72+tt)}, {s(72+tt)}, 1024")
    def p5_pre(self):
        A = self.A
        self.p35_roles()
        self.vm5 = []
        A("v_lshlrev_b32 v2, 4, v1")
        A(f"s_and_b32 s56, {s(sW)}, 1"); A("s_mul_i32 s56, s56, 27"); A(f"s_lshr_b32 s57, {s(sW)}, 1"); A("s_add_u32 s56, s56, s57")
        A("s_mul_i32 s57, s55, 54"); A("s_add_u32 s56, s56, s57"); A("s_mul_i32 s68, s56, 5120"); A(f"s_add_u32 s68, s68, {hex(W2P_OFF)}")
        A(f"s_mul_i32 s71, {s(sW)}, 5120")
        for g in range(self.P5_NG): self.p5_dma_group(g, self.vm5)
        A("v_lshrrev_b32 v5, 4, v1"); A("v_lshlrev_b32 v7, 4, v5")
        A("s_mul_i32 s56, s55, 320"); A(f"s_add_u32 s57, s56, {hex(GB_OFF)}")
        for dt in range(5):
            A(f"buffer_load_dwordx4 {v(160+4*dt,4)}, v7, {srd(SWS)}, s57 offen offset:{64*dt} sc1")
        self.vm5 = []
    def p5_main(self):
        A = self.A
        vm = self.vm5
        def vwait(pred):
            idx = max(i for i, x in enumerate(vm) if pred(x))
            return min(len(vm) - 1 - idx, 63)
        self.p35_roles()
        A("v_lshlrev_b32 v2, 4, v1")
        A(f"s_lshr_b32 s56, {s(sW)}, 1"); A("s_lshl_b32 s56, s56, 1"); A("s_lshl_b32 s57, s54, 2"); A("s_add_u32 s56, s56, s57"); A("s_mul_i32 s56, s56, 55296")
        A(f"s_and_b32 s57, {s(sW)}, 1"); A("s_mul_i32 s58, s57, 27648"); A("s_add_u32 s56, s56, s58"); A(f"s_add_u32 s72, s56, {hex(HP_OFF)}")
        A("s_add_u32 s73, s72, 55296")
        A("s_mul_i32 s58, s57, 5120"); A("v_add_u32 v3, s58, v2"); A("v_add_u32 v4, 61440, v3")
        NG = self.P5_NG
        PH = 5
        for g in range(PH): self.p5_h_group(g, vm)
        def rd(sg):
            g, sp = divmod(sg, 2)
            o = (g % NG) * 20480 + sp * 10240
            ad = "v3"
            if o >= 61440: ad = "v4"; o -= 61440
            for ct in range(5):
                A(f"ds_read_b128 {v(100+20*(sg&1)+4*ct,4)}, {ad} offset:{o+ct*1024}")
        for g in range(14):
            if g >= NG: A(f"s_waitcnt vmcnt({vwait(lambda x: x == ('dma', g))})")
            A("s_barrier")
            if g >= 1: self.p5_dma_group(g + NG - 1, vm)
            self.p5_h_group(g + PH, vm)
            steps = [sg for sg in (2 * g, 2 * g + 1) if sg < 27]
            rd(steps[0])
            for idx, sg in enumerate(steps):
                if idx + 1 < len(steps): rd(steps[idx + 1]); lg = 5
                else: lg = 0
                A(f"s_waitcnt vmcnt({vwait(lambda x: x == ('h', sg))}) lgkmcnt({lg})")
                for ct in range(5):
                    for tt in range(2):
                        d = v(40 + 8 * ct + 4 * tt, 4)
                        A(f"v_mfma_f32_16x16x32_bf16 {d}, {v(100+20*(sg&1)+4*ct,4)}, {a(8*sg+4*tt,4)}, {'0' if sg == 0 else d}")
        A("s_barrier")
        A(f"s_mul_i32 s56, {s(sW)}, 5120"); A("v_add_u32 v5, s56, v2")
        A(f"s_xor_b32 s57, {s(sW)}, 1"); A("s_mul_i32 s57, s57, 5120"); A("v_add_u32 v6, s57, v2")
        A(f"s_and_b32 s58, {s(sW)}, 1"); A("s_cmp_eq_u32 s58, 0"); A("s_cbranch_scc0 L_p5_kh1")
        for ct in range(5): A(f"ds_write_b128 v5, {v(44+8*ct,4)} offset:{ct*1024}")
        for ct in range(5):
            for r in range(4): A(f"v_mov_b32 {v(100+4*ct+r)}, {v(40+8*ct+r)}")
        A("s_branch L_p5_c")
        A.label("L_p5_kh1")
        for ct in range(5): A(f"ds_write_b128 v5, {v(40+8*ct,4)} offset:{ct*1024}")
        for ct in range(5):
            for r in range(4): A(f"v_mov_b32 {v(100+4*ct+r)}, {v(44+8*ct+r)}")
        A.label("L_p5_c")
        A("s_waitcnt lgkmcnt(0)"); A("s_barrier")
        for ct in range(5): A(f"ds_read_b128 {v(120+4*ct,4)}, v6 offset:{ct*1024}")
        A("s_waitcnt vmcnt(0) lgkmcnt(0)")
        X1 = self.X1
        for k in range(10):
            A(f"v_pk_add_f32 {v(100+2*k,2)}, {v(100+2*k,2)}, {v(120+2*k,2)}")
            A(f"v_pk_fma_f32 {v(100+2*k,2)}, {v(100+2*k,2)}, {v(160+2*k,2)}, {v(X1+2*k,2)}")
        for dt in range(5):
            A(f"v_cvt_pk_bf16_f32 {v(60+2*dt)}, {v(100+4*dt)}, {v(101+4*dt)}")
            A(f"v_cvt_pk_bf16_f32 {v(61+2*dt)}, {v(102+4*dt)}, {v(103+4*dt)}")
        for p in range(2):
            A(f"v_permlane16_swap_b32 {v(60+4*p)}, {v(62+4*p)}")
            A(f"v_permlane16_swap_b32 {v(61+4*p)}, {v(63+4*p)}")
        A("v_and_b32 v4, 15, v1"); A("v_lshrrev_b32 v5, 4, v1")
        A("v_mul_u32_u24 v6, 0xa000, v4")
        A("v_and_b32 v7, 1, v5"); A("v_lshl_add_u32 v8, v7, 5, v6"); A("v_lshrrev_b32 v7, 1, v5"); A("v_lshl_add_u32 v8, v7, 4, v8")
        A("v_lshl_add_u32 v9, v5, 3, v6")
        A(f"s_lshl_b32 s56, {s(sW)}, 9"); A("s_add_u32 s56, s56, s54"); A("s_mul_i32 s56, s56, 1280"); A("s_mul_i32 s57, s55, 160"); A("s_add_u32 s56, s56, s57")
        A(f"buffer_store_dwordx4 v[60:63], v8, {srd(SOUT)}, s56 offen")
        A(f"buffer_store_dwordx4 v[64:67], v8, {srd(SOUT)}, s56 offen offset:64")
        A(f"buffer_store_dwordx2 v[68:69], v9, {srd(SOUT)}, s56 offen offset:128")

    def build(self):
        A = self.A
        self.prologue()
        self.p1()
        if not self.end_if_stop(1):
            self.gbar_arrive(0)
            self.repack13()
            self.repack2()
            self.p2_pre()
            self.gbar_wait(0)
            self.p2_main()
            if not self.end_if_stop(2):
                self.rest()
        A.label("L_end")
        A("s_endpgm")
        return self.text()
    def rest(self):
        self.gbar_arrive(1); self.p3_pre(); self.gbar_wait(1); self.p3_main()
        if self.end_if_stop(3): return
        self.gbar_arrive(2); self.p4_pre(); self.gbar_wait(2); self.p4_main()
        if self.end_if_stop(4): return
        self.gbar_arrive(3); self.p5_pre(); self.gbar_wait(3); self.p5_main()
    def text(self):
        hdr = open("adaLN_cond__spectral_gfnet__glu_gated_swiglu__prompt.s.ref").read().split("\n")
        com = [l for l in hdr if l.startswith(";") and "@launch" not in l and "Override launch" not in l and "grid=ceil" not in l][:14]
        out = com + [f"; @launch grid=(256,1,1) block=(256,1,1) lds={LDS_BYTES}",
                     '.amdgcn_target "amdgcn-amd-amdhsa--gfx950"', ".text", f".globl {KNAME}", ".p2align 8", f".type {KNAME},@function", f"{KNAME}:"]
        body = self.A.finalize(verbose=False)
        tail = ['.section .rodata,"a"', ".p2align 6", f".amdhsa_kernel {KNAME}", "  .amdhsa_next_free_vgpr 512", "  .amdhsa_next_free_sgpr 102",
                "  .amdhsa_accum_offset 256", "  .amdhsa_group_segment_fixed_size 0", "  .amdhsa_kernarg_size 96", "  .amdhsa_user_sgpr_count 2",
                "  .amdhsa_user_sgpr_kernarg_segment_ptr 1", "  .amdhsa_system_sgpr_workgroup_id_x 1", ".end_amdhsa_kernel"]
        return "\n".join(out) + "\n" + body + "\n".join(tail) + "\n"

if __name__ == "__main__":
    out = sys.argv[1]; stop = int(sys.argv[2]) if len(sys.argv) > 2 else 99
    open(out, "w").write(Gen(stop).build())
```

```python
import sys, math
sys.path.insert(0, "dev")
from asmlib import Asm, v, a, s

KNAME = "adaLN_cond__spectral_gfnet__glu_gated_swiglu__prompt_kernel"
T0_OFF  = 0x0000000
FP_OFF  = 0x0280000
GP_OFF  = 0x0360000
SAP_OFF = 0x0440000
GA_OFF  = 0x0450000
GB_OFF  = 0x0451000
CB1F_OFF= 0x0452000
CB1B_OFF= 0x0453000
SBB_OFF = 0x0454000
A3_OFF  = 0x0460000
W13_OFF = 0x0700000
W2P_OFF = 0x0B40000
UVP_OFF = 0x0D60000
X1C_OFF = 0x0DA0000
ST2_OFF = 0x1020000
HP_OFF  = 0x1040000
BAR_OFF = 0x1700000
TS_OFF  = 0x1710000
WS_END  = 0x1750000

sWG = 2; sW = 3
SX, SWR, SWI, SW1, SW3, SW2, SC, SWM, SOUT, SDBG, SWS = [4 + 4 * i for i in range(11)]
def srd(b): return s(b, 4)
INV640 = "0x3acccccd"
LDS_BYTES = 163840

class Gen:
    def __init__(self, stop_after=99, opts=None):
        self.A = Asm()
        self.stop = stop_after
        self.o = opts or {}
    def mov_s(self, r, val):
        self.A(f"s_mov_b32 {s(r)}, {val if isinstance(val, str) else hex(val)}")
    def rnd_bf16(self, dst, src, tmp=None):
        A = self.A
        A(f"v_cvt_pk_bf16_f32 {v(dst)}, {v(src)}, {v(src)}")
        A(f"v_lshlrev_b32 {v(dst)}, 16, {v(dst)}")
    def sincos_idx(self, idx, inv, dc, ds, tmp):
        A = self.A
        A(f"v_cvt_f32_u32 {v(tmp)}, {v(idx)}")
        A(f"v_mul_f32 {v(tmp)}, {inv}, {v(tmp)}")
        if dc is not None: A(f"v_cos_f32 {v(dc)}, {v(tmp)}")
        if ds is not None: A(f"v_sin_f32 {v(ds)}, {v(tmp)}")
    def mod640(self, dst, src, tmp):
        A = self.A
        A(f"v_lshrrev_b32 {v(tmp)}, 7, {v(src)}")
        A(f"v_mul_u32_u24 {v(tmp)}, 0xcccd, {v(tmp)}")
        A(f"v_lshrrev_b32 {v(tmp)}, 18, {v(tmp)}")
        A(f"v_mul_u32_u24 {v(tmp)}, 640, {v(tmp)}")
        A(f"v_sub_u32 {v(dst)}, {v(src)}, {v(tmp)}")
    def prologue(self):
        A = self.A
        A(f"s_cmp_ge_u32 s2, 256")
        A("s_cbranch_scc1 L_end")
        A("s_load_dwordx16 s[64:79], s[0:1], 0")
        A("s_load_dwordx8 s[80:87], s[0:1], 64")
        A("v_lshrrev_b32 v1, 6, v0")
        A("s_nop 0")
        A(f"v_readfirstlane_b32 {s(sW)}, v1")
        A("v_and_b32 v1, 63, v0")
        A("s_waitcnt lgkmcnt(0)")
        tab = [(SX, 64, 2048 * 1280), (SWR, 66, 2048 * 642), (SWI, 68, 2048 * 642), (SW1, 72, 640 * 3456), (SW3, 74, 640 * 3456),
               (SW2, 76, 1728 * 1280), (SC, 78, 1280), (SWM, 80, 640 * 7680), (SOUT, 82, 2048 * 1280), (SDBG, 84, 256), (SWS, 86, WS_END)]
        for b, p, n in tab:
            A(f"s_mov_b32 {s(b)}, {s(p)}"); A(f"s_mov_b32 {s(b+1)}, {s(p+1)}")
            A(f"s_mov_b32 {s(b+2)}, {hex(n)}"); A(f"s_mov_b32 {s(b+3)}, 0x00020000")
    def gbar(self, idx):
        self.gbar_arrive(idx); self.gbar_wait(idx)
    def gbar_arrive(self, idx):
        A = self.A
        A("s_waitcnt vmcnt(0) lgkmcnt(0)")
        A("s_barrier")
        lab = A.newlabel("L_arr")
        A(f"s_cmp_lg_u32 {s(sW)}, 0"); A(f"s_cbranch_scc1 {lab}")
        A("s_and_b32 s48, s2, 15"); A("s_lshl_b32 s48, s48, 2"); A(f"s_add_u32 s48, s48, {64*idx}")
        A("v_mov_b32 v2, 1"); A("v_mov_b32 v3, 0")
        A("s_mov_b64 s[50:51], exec"); A("s_mov_b64 exec, 1")
        A(f"buffer_atomic_add v2, v3, {srd(SDBG)}, s48 offen sc1")
        A("s_mov_b64 exec, s[50:51]")
        A.label(lab)
    def gbar_wait(self, idx):
        A = self.A
        lab = A.newlabel("L_wdone"); lp = A.newlabel("L_poll"); ex = A.newlabel("L_pexit")
        A(f"s_cmp_lg_u32 {s(sW)}, 0"); A(f"s_cbranch_scc1 {lab}")
        A("v_and_b32 v3, 15, v1"); A("v_lshlrev_b32 v3, 2, v3")
        A("s_mov_b32 s49, 0")
        A.label(lp)
        A("s_add_u32 s49, s49, 1"); A("s_cmp_gt_u32 s49, 200000"); A(f"s_cbranch_scc1 {ex}")
        A(f"buffer_load_dword v2, v3, {srd(SDBG)}, 0 offen offset:{64*idx} sc1")
        A("s_waitcnt vmcnt(0)")
        A("v_cmp_gt_u32 vcc, 16, v2")
        A(f"s_cbranch_vccz {ex}")
        A(f"s_branch {lp}")
        A.label(ex)
        A.label(lab)
        A("s_waitcnt vmcnt(0) lgkmcnt(0)")
        A("s_barrier")
    def stamp(self, k, real=False):
        if not self.o.get("ts"): return
        A = self.A
        A("s_memrealtime s[88:89]" if real else "s_memtime s[88:89]")
        A("s_waitcnt lgkmcnt(0)")
        A(f"v_writelane_b32 v252, s88, {k}")
    def ts_flush(self):
        if not self.o.get("ts"): return
        A = self.A
        self.stamp(62, real=True)
        A("s_lshl_b32 s88, s2, 2"); A(f"s_add_u32 s88, s88, {s(sW)}"); A("s_lshl_b32 s88, s88, 8"); A(f"s_add_u32 s88, s88, {hex(TS_OFF)}")
        A("v_lshlrev_b32 v2, 2, v1")
        A(f"buffer_store_dword v252, v2, {srd(SWS)}, s88 offen")
        A("s_waitcnt vmcnt(0)")
    def end_if_stop(self, k):
        if self.stop == k:
            self.A("s_waitcnt vmcnt(0) lgkmcnt(0)")
            self.A("s_branch L_end")
            return True
        return False

    def p1(self):
        A = self.A
        A("s_and_b32 s52, s2, 7")
        A("s_lshr_b32 s53, s2, 3")
        A("s_cmp_ge_u32 s53, 16")
        A("s_cbranch_scc1 L_p1_gemv")
        self.p1_fft()
        A("s_branch L_p1_done")
        A.label("L_p1_gemv")
        A("s_lshl_b32 s54, s52, 4"); A("s_add_u32 s54, s54, s53"); A("s_sub_u32 s54, s54, 16")
        A("s_cmp_ge_u32 s54, 120")
        A("s_cbranch_scc1 L_p1_done")
        self.p1_gemv()
        A.label("L_p1_done")

    def p1_fft(self):
        A = self.A
        A("s_lshr_b32 s54, s53, 2"); A("s_lshl_b32 s54, s54, 3"); A("s_add_u32 s54, s54, s52")
        A("s_and_b32 s55, s53, 3")
        for n in range(5):
            A(f"v_add_u32 v12, {64*n}, v1")
            A("v_mul_u32_u24 v13, 0xcccd, v12"); A("v_lshrrev_b32 v13, 22, v13")
            A("v_mul_u32_u24 v14, 80, v13"); A("v_sub_u32 v14, v12, v14")
            A("v_lshlrev_b32 v15, 1, v13"); A("v_xor_b32 v14, v14, v15")
            A("v_mul_u32_u24 v13, 0xa000, v13")
            A(f"v_lshl_add_u32 {v(2+n)}, v14, 4, v13")
            A("v_xor_b32 v14, 8, v14")
            A(f"v_lshl_add_u32 {v(7+n)}, v14, 4, v13")
        A("s_mul_i32 s56, s54, 1280"); A(f"s_mul_i32 s57, {s(sW)}, {16*40960}"); A("s_add_u32 s56, s56, s57")
        A(f"s_mul_i32 s57, {s(sW)}, {16*1280}")
        for G in range(4):
            for n in range(5):
                A(f"s_add_u32 m0, s57, {G*4*1280 + n*1024}")
                vo = (7 + n) if G >= 2 else (2 + n)
                A(f"buffer_load_dwordx4 {v(vo)}, {srd(SX)}, s56 offen lds")
            if G < 3: A(f"s_add_u32 s56, s56, {4*40960}")
        if self.o.get('ts') == 6: self.stamp(30)
        A("v_and_b32 v12, 15, v1")
        A("v_lshrrev_b32 v13, 4, v1")
        A(f"s_lshl_b32 s58, {s(sW)}, 4")
        A("v_add_u32 v14, s58, v12")
        A("v_cmp_lt_u32 vcc, 32, v14")
        A("v_subrev_u32 v15, 32, v14")
        A("v_cndmask_b32 v15, v14, v15, vcc")
        A("v_mov_b32 v16, 0"); A("v_mov_b32 v17, 16")
        A("v_cndmask_b32 v16, v16, v17, vcc")
        A("v_lshlrev_b32 v17, 3, v13")
        A("v_mad_u32_u24 v16, v15, v17, v16")
        for u in range(2):
            for jj in range(8):
                k = 32 * u + jj
                A(f"v_mad_u32_u24 v18, v15, {k}, v16") if k <= 64 else None
                A("v_and_b32 v18, 63, v18")
                self.sincos_idx(18, "0x3c800000", 20 + 8 * u + jj, None, 19)
        A("v_and_b32 v14, 3, v12"); A("v_lshlrev_b32 v14, 1, v14"); A("v_and_b32 v15, 8, v12"); A("v_or_b32 v14, v14, v15")
        A("v_add_u32 v15, s58, v12"); A("v_mul_u32_u24 v15, 1280, v15")
        for t in range(4):
            A(f"v_add_u32 v16, {4*t}, v13"); A("v_xor_b32 v16, v16, v14")
            A(f"v_lshl_add_u32 {v(36+t)}, v16, 4, v15")
        A("v_mov_b32 v112, 0x3f803f80"); A("v_mov_b32 v113, v112"); A("v_mov_b32 v114, v112"); A("v_mov_b32 v115, v112")
        if self.o.get('ts') == 6: self.stamp(31)
        A("s_waitcnt vmcnt(0)")
        if self.o.get('ts') == 6: self.stamp(32)
        for t in range(20):
            A(f"ds_read_b128 {v(120+4*t,4)}, {v(36+(t&3))} offset:{(t>>2)*256}")
            if t >= 10:
                tt = t - 10
                A("s_waitcnt lgkmcnt(10)")
                self.stat_mfma(tt)
        for tt in range(10, 20):
            A(f"s_waitcnt lgkmcnt({19-tt})")
            self.stat_mfma(tt)
        A("v_and_b32 v14, 3, v12")
        A("v_cmp_eq_u32 s[60:61], 1, v14"); A("v_cmp_eq_u32 s[62:63], 2, v14"); A("v_cmp_eq_u32 s[64:65], 3, v14")
        for b in (40, 44):
            A(f"v_cndmask_b32 {v(b)}, {v(b)}, {v(b+1)}, s[60:61]")
            A(f"v_cndmask_b32 {v(b)}, {v(b)}, {v(b+2)}, s[62:63]")
            A(f"v_cndmask_b32 {v(b)}, {v(b)}, {v(b+3)}, s[64:65]")
        A(f"v_mul_f32 v44, {hex(0x3acccccd)}, v44")
        A(f"v_mul_f32 v40, {hex(0x3acccccd)}, v40")
        A("v_fma_f32 v40, -v44, v44, v40")
        A("v_max_f32 v40, 0, v40")
        self.rnd_bf16(40, 40)
        A("v_add_f32 v40, 0x3727c5ac, v40")
        self.rnd_bf16(40, 40)
        A("v_sqrt_f32 v40, v40")
        self.rnd_bf16(40, 40)
        A("v_rcp_f32 v40, v40")
        A("v_cvt_pk_bf16_f32 v44, -v44, -v44")
        A("v_add_u32 v15, s58, v12")
        A("v_lshrrev_b32 v14, 2, v12")
        A("v_cmp_eq_u32 vcc, v14, v13")
        A("v_lshlrev_b32 v16, 2, v15"); A("v_lshlrev_b32 v17, 1, v15")
        LR = 81920; LM = 81920 + 256
        A("s_and_saveexec_b64 s[60:61], vcc")
        A(f"ds_write_b32 v16, v40 offset:0")
        self.A.lines.pop()
        A(f"v_add_u32 v16, {LR}, v16"); A(f"v_add_u32 v17, {LM}, v17")
        A("ds_write_b32 v16, v40")
        A("ds_write_b16 v17, v44")
        A("s_mov_b64 exec, s[60:61]")
        A("s_waitcnt lgkmcnt(0)")
        A("s_barrier")
        if self.o.get('ts') == 6: self.stamp(33)
        A("v_lshlrev_b32 v14, 5, v13"); A(f"v_add_u32 v14, {LR}, v14")
        A("v_lshlrev_b32 v15, 4, v13"); A(f"v_add_u32 v15, {LM}, v15")
        for u in range(2):
            A(f"ds_read_b128 {v(48+8*u,4)}, v14 offset:{128*u}")
            A(f"ds_read_b128 {v(52+8*u,4)}, v14 offset:{128*u+16}")
            A(f"ds_read_b128 {v(64+4*u,4)}, v15 offset:{64*u}")
        A("v_lshrrev_b32 v16, 2, v12")
        A("v_and_b32 v17, 3, v12")
        A("v_lshl_add_u32 v18, v13, 3, v16")
        A("v_mul_u32_u24 v18, 1280, v18")
        A("v_and_b32 v19, 1, v13"); A("v_lshl_or_b32 v19, v19, 2, v16")
        A("v_lshl_add_u32 v18, v19, 5, v18")
        A("v_lshl_add_u32 v72, v17, 3, v18")
        A("s_waitcnt lgkmcnt(0)")
        for k in range(8):
            A(f"v_pk_mul_f32 {v(48+2*k,2)}, {v(48+2*k,2)}, {v(20+2*k,2)}")
        for k in range(8):
            A(f"v_cvt_pk_bf16_f32 {v(76+k)}, {v(48+2*k)}, {v(49+2*k)}")
        A(f"v_mfma_f32_16x16x32_bf16 v[84:87], v[64:67], v[76:79], 0")
        A(f"v_mfma_f32_16x16x32_bf16 v[84:87], v[68:71], v[80:83], v[84:87]")
        A("s_mul_i32 s59, s55, 10")
        for dt in range(10):
            A(f"s_add_u32 s60, s59, {dt}")
            A("s_and_b32 s61, s60, 7"); A("s_lshl_b32 s61, s61, 5")
            A("s_lshr_b32 s62, s60, 3"); A("s_lshl_b32 s62, s62, 8")
            A("v_xor_b32 v73, s61, v72"); A("v_add_u32 v73, s62, v73")
            for u in range(2):
                for h in range(2):
                    A(f"ds_read_b64_tr_b16 {v(120+8*dt+4*u+2*h,2)}, v73 offset:{u*32*1280 + h*4*1280}")
            if dt >= 2:
                A("s_waitcnt lgkmcnt(8)")
                self.fft_mfma(dt - 2)
        A("s_waitcnt lgkmcnt(4)"); self.fft_mfma(8)
        A("s_waitcnt lgkmcnt(0)"); self.fft_mfma(9)
        if self.o.get('ts') == 6: self.stamp(34)
        A("s_lshr_b32 s60, s54, 2"); A("s_and_b32 s60, s60, 3")
        A("s_lshr_b32 s61, s60, 1"); A("s_xor_b32 s62, s60, s61"); A("s_and_b32 s62, s62, 1"); A("s_lshl_b32 s62, s62, 1"); A("s_or_b32 s61, s61, s62")
        A("v_xor_b32 v14, s61, v13")
        A("v_add_u32 v15, s58, v12"); A("v_mul_u32_u24 v15, 0xa000, v15")
        A("v_lshl_add_u32 v15, v14, 4, v15")
        A("s_mul_i32 s60, s55, 5"); A("s_lshl_b32 s60, s60, 11"); A("s_lshl_b32 s61, s54, 6"); A("s_add_u32 s60, s60, s61")
        if T0_OFF: A(f"s_add_u32 s60, s60, {hex(T0_OFF)}")
        for tt in range(5):
            d0 = 200 + 8 * tt
            p = 88 + 4 * tt
            for k in range(4):
                A(f"v_cvt_pk_bf16_f32 {v(p+k)}, {v(d0+2*k)}, {v(d0+2*k+1)}")
            A(f"buffer_store_dwordx4 {v(p,4)}, v15, {srd(SWS)}, s60 offen sc1")
            if tt < 4: A("s_add_u32 s60, s60, 2048")
    def stat_mfma(self, t):
        A = self.A
        x = v(120 + 4 * t, 4)
        c1 = "0" if t == 0 else "v[40:43]"; c2 = "0" if t == 0 else "v[44:47]"
        A(f"v_mfma_f32_16x16x32_bf16 v[40:43], {x}, {x}, {c1}")
        A(f"v_mfma_f32_16x16x32_bf16 v[44:47], {x}, v[112:115], {c2}")
    def fft_mfma(self, dt):
        A = self.A
        d = v(200 + 4 * dt, 4)
        A(f"v_mfma_f32_16x16x32_bf16 {d}, {v(120+8*dt,4)}, v[76:79], v[84:87]")
        A(f"v_mfma_f32_16x16x32_bf16 {d}, {v(124+8*dt,4)}, v[80:83], {d}")

    def p1_gemv(self):
        A = self.A
        A("s_mul_i32 s55, s54, 205"); A("s_lshr_b32 s55, s55, 12")
        A("s_mul_i32 s56, s55, 20"); A("s_sub_u32 s56, s54, s56")
        A("v_and_b32 v2, 3, v1"); A("v_lshrrev_b32 v3, 2, v1")
        A(f"s_mul_i32 s57, {s(sW)}, 160")
        A("v_add_u32 v4, s57, v3")
        A("v_mul_u32_u24 v5, 7680, v4"); A("v_lshl_add_u32 v5, v2, 4, v5")
        A("v_lshlrev_b32 v6, 1, v4")
        A("s_lshl_b32 s58, s54, 6")
        for n in range(10):
            A(f"buffer_load_ushort {v(10+n)}, v6, {srd(SC)}, 0 offen offset:{32*n}")
        for n in range(10):
            A(f"buffer_load_dwordx4 {v(20+4*n,4)}, v5, {srd(SWM)}, s58 offen")
            if n < 9: A(f"s_add_u32 s58, s58, {16*7680}")
        if self.o.get('ts') == 6: self.stamp(40)
        A("s_cmp_eq_u32 s55, 2"); A("s_cbranch_scc1 L_gv_ggen")
        A("s_cmp_le_u32 s55, 1"); A("s_cbranch_scc0 L_gv_pre_done")
        self.trig_states()
        A("s_branch L_gv_pre_done")
        A.label("L_gv_ggen")
        self.g_gen()
        A.label("L_gv_pre_done")
        if self.o.get('ts') == 6: self.stamp(41)
        A("s_waitcnt vmcnt(10)") if False else None
        A("s_waitcnt vmcnt(0)")
        if self.o.get('ts') == 6: self.stamp(42)
        for n in range(10):
            x = 10 + n
            A(f"v_lshlrev_b32 {v(x)}, 16, {v(x)}")
            A(f"v_mul_f32 v7, 0xbfb8aa3b, {v(x)}")
            A("v_exp_f32 v7, v7")
            A("v_add_f32 v7, 1.0, v7")
            A("v_rcp_f32 v7, v7")
            A(f"v_mul_f32 {v(x)}, {v(x)}, v7")
            self.rnd_bf16(x, x)
        for q in range(8): A(f"v_mov_b32 {v(60+q)}, 0")
        for n in range(10):
            for q in range(4):
                w = 20 + 4 * n + q
                A(f"v_lshlrev_b32 v7, 16, {v(w)}"); A(f"v_and_b32 v8, 0xffff0000, {v(w)}")
                A(f"v_fmac_f32 {v(60+2*q)}, {v(10+n)}, v7"); A(f"v_fmac_f32 {v(61+2*q)}, {v(10+n)}, v8")
        if self.o.get('ts') == 6: self.stamp(43)
        A(f"s_lshl_b32 s57, {s(sW)}, 4"); A("v_add_u32 v7, s57, v3"); A("v_lshlrev_b32 v7, 7, v7"); A("v_lshl_add_u32 v7, v2, 5, v7")
        A("ds_write_b128 v7, v[60:63]"); A("ds_write_b128 v7, v[64:67] offset:16")
        A("s_waitcnt lgkmcnt(0)"); A("s_barrier")
        A("v_and_b32 v7, 31, v0"); A("v_lshrrev_b32 v8, 5, v0")
        A("v_lshlrev_b32 v9, 10, v8"); A("v_lshl_add_u32 v9, v7, 2, v9")
        for p in range(8): A(f"ds_read_b32 {v(60+p)}, v9 offset:{128*p}")
        A("s_waitcnt lgkmcnt(0)")
        for p in range(1, 8): A(f"v_add_f32 v60, v60, {v(60+p)}")
        A("v_lshlrev_b32 v9, 7, v8"); A("v_lshl_add_u32 v9, v7, 2, v9"); A("v_add_u32 v9, 8192, v9")
        A("ds_write_b32 v9, v60")
        A("s_waitcnt lgkmcnt(0)"); A("s_barrier")
        A("v_lshlrev_b32 v9, 2, v7"); A("v_add_u32 v9, 8192, v9")
        for p in range(8): A(f"ds_read_b32 {v(60+p)}, v9 offset:{128*p}")
        A("s_waitcnt lgkmcnt(0)")
        for p in range(1, 8): A(f"v_add_f32 v60, v60, {v(60+p)}")
        self.rnd_bf16(60, 60)
        if self.o.get('ts') == 6: self.stamp(44)
        A("s_cmp_eq_u32 s55, 1"); A("s_cbranch_scc1 L_gv_add1")
        A("s_cmp_eq_u32 s55, 4"); A("s_cbranch_scc0 L_gv_noadd")
        A.label("L_gv_add1")
        A("v_add_f32 v60, 1.0, v60"); self.rnd_bf16(60, 60)
        A.label("L_gv_noadd")
        A("s_cmp_le_u32 s55, 1"); A("s_cbranch_scc1 L_gv_trig")
        A(f"s_cmp_lg_u32 {s(sW)}, 0"); A("s_cbranch_scc1 L_p1_done")
        A("s_lshl_b32 s57, s56, 7"); A("v_lshlrev_b32 v9, 2, v7"); A("v_add_u32 v9, s57, v9")
        A("v_lshrrev_b32 v62, 1, v9")
        A("v_lshrrev_b32 v61, 16, v60")
        A("s_mov_b64 s[60:61], exec"); A("s_mov_b32 exec_hi, 0")
        A("s_cmp_eq_u32 s55, 2"); A("s_cbranch_scc0 L_gv_n2")
        self.mov_s(58, GA_OFF); A(f"buffer_store_dword v60, v9, {srd(SWS)}, s58 offen sc1")
        A.label("L_gv_n2")
        A("s_cmp_eq_u32 s55, 5"); A("s_cbranch_scc0 L_gv_n5")
        self.mov_s(58, GB_OFF); A(f"buffer_store_dword v60, v9, {srd(SWS)}, s58 offen sc1")
        A.label("L_gv_n5")
        A("s_cmp_eq_u32 s55, 4"); A("s_cbranch_scc0 L_gv_n4")
        self.mov_s(58, CB1F_OFF); A(f"buffer_store_dword v60, v9, {srd(SWS)}, s58 offen sc1")
        self.mov_s(58, CB1B_OFF); A(f"buffer_store_short v61, v62, {srd(SWS)}, s58 offen sc1")
        A.label("L_gv_n4")
        A("s_cmp_eq_u32 s55, 3"); A("s_cbranch_scc0 L_gv_n3")
        self.mov_s(58, SBB_OFF); A(f"buffer_store_short v61, v62, {srd(SWS)}, s58 offen sc1")
        A.label("L_gv_n3")
        A("s_mov_b64 exec, s[60:61]")
        A("s_branch L_p1_done")
        A.label("L_gv_trig")
        A("v_lshlrev_b32 v9, 2, v7"); A("v_add_u32 v9, 12288, v9")
        A("ds_write_b32 v9, v60")
        A("s_waitcnt lgkmcnt(0)"); A("s_barrier")
        A("v_lshrrev_b32 v9, 4, v1"); A("v_lshlrev_b32 v9, 4, v9"); A("v_add_u32 v9, 12288, v9")
        A("ds_read_b128 v[60:63], v9"); A("ds_read_b128 v[64:67], v9 offset:64")
        A("s_waitcnt lgkmcnt(0)")
        A("s_cmp_eq_u32 s55, 0"); A("s_cbranch_scc1 L_gv_sa")
        A("v_lshlrev_b32 v9, 4, v1")
        A(f"s_mul_i32 s57, {s(sW)}, 40960"); A("s_lshl_b32 s58, s56, 11"); A("s_add_u32 s57, s57, s58"); A(f"s_add_u32 s57, s57, {hex(FP_OFF)}")
        for i in range(6):
            if i == 5:
                A(f"s_cmp_lg_u32 {s(sW)}, 0"); A("s_cbranch_scc1 L_p1_done")
            b = 100 + 16 * i
            for jj in range(8):
                A(f"v_pk_mul_f32 {v(b+2*jj,2)}, {v(b+2*jj,2)}, {v(60+(jj&~1),2)} op_sel:[0,{jj&1}] op_sel_hi:[1,{jj&1}]")
            for k in range(4):
                A(f"v_cvt_pk_bf16_f32 {v(70+k)}, {v(b+4*k)}, {v(b+4*k+2)}")
                A(f"v_cvt_pk_bf16_f32 {v(74+k)}, {v(b+4*k+1)}, {v(b+4*k+3)}")
            if i == 5: self.mask_q320(70)
            A(f"buffer_store_dwordx4 v[70:73], v9, {srd(SWS)}, s57 offen sc1")
            A(f"buffer_store_dwordx4 v[74:77], v9, {srd(SWS)}, s57 offen offset:1024 sc1")
            A(f"s_add_u32 s57, s57, {4*40960}")
            A("s_nop 1")
        A("s_branch L_p1_done")
        A.label("L_gv_sa")
        for k in range(4): A(f"v_cvt_pk_bf16_f32 {v(78+k)}, {v(60+2*k)}, {v(61+2*k)}")
        A("v_lshrrev_b32 v9, 4, v1"); A("v_lshlrev_b32 v9, 4, v9")
        A("s_mul_i32 s57, s56, 2688"); A(f"s_lshl_b32 s58, {s(sW)}, 6"); A("s_add_u32 s57, s57, s58"); A(f"s_add_u32 s57, s57, {hex(SAP_OFF)}")
        A("v_and_b32 v8, 15, v1"); A("v_cmp_eq_u32 s[62:63], 0, v8")
        for i in range(6):
            if i == 5:
                A(f"s_cmp_lg_u32 {s(sW)}, 0"); A("s_cbranch_scc1 L_p1_done")
            b = 100 + 16 * i
            for k in range(4):
                A(f"v_cvt_pk_bf16_f32 {v(70+k)}, {v(b+4*k)}, {v(b+4*k+2)}")
                A(f"v_cvt_pk_bf16_f32 {v(74+k)}, {v(b+4*k+1)}, {v(b+4*k+3)}")
            if i == 5: self.mask_q320(70)
            A("v_mfma_f32_16x16x32_bf16 v[84:87], v[70:73], v[78:81], 0")
            A("v_mfma_f32_16x16x32_bf16 v[88:91], v[74:77], v[78:81], 0")
            A("s_mov_b64 s[60:61], exec"); A("s_mov_b64 exec, s[62:63]")
            A(f"buffer_store_dwordx4 v[84:87], v9, {srd(SWS)}, s57 offen sc1")
            A(f"buffer_store_dwordx4 v[88:91], v9, {srd(SWS)}, s57 offen offset:1344 sc1")
            A("s_mov_b64 exec, s[60:61]")
            A(f"s_add_u32 s57, s57, {4*64}")
            A("s_nop 1")
    def mask_q320(self, b):
        A = self.A
        A("v_and_b32 v8, 15, v1"); A("v_cmp_eq_u32 vcc, 0, v8")
        for k in range(8): A(f"v_cndmask_b32 {v(b+k)}, 0, {v(b+k)}, vcc")
    def trig_states(self):
        A = self.A
        A("v_and_b32 v7, 15, v1"); A("v_lshrrev_b32 v8, 4, v1")
        A(f"s_lshl_b32 s57, {s(sW)}, 4"); A("v_add_u32 v7, s57, v7")
        A("s_lshl_b32 s57, s56, 5"); A("v_lshl_add_u32 v8, v8, 2, s57")
        for jj in range(8):
            off = 16 * (jj >> 2) + (jj & 3)
            A(f"v_add_u32 v60, {off}, v8")
            A("v_mul_u32_u24 v61, v7, v60"); self.mod640(61, 61, 62)
            self.sincos_idx(61, INV640, 100 + 2 * jj, 101 + 2 * jj, 62)
            A("v_lshlrev_b32 v61, 6, v60"); self.mod640(61, 61, 62)
            self.sincos_idx(61, INV640, 68 + 2 * jj, 69 + 2 * jj, 62)
        for i in range(1, 6):
            for jj in range(8):
                p = 100 + 16 * (i - 1) + 2 * jj; n = p + 16; r = 68 + 2 * jj
                A(f"v_pk_mul_f32 {v(n,2)}, {v(p,2)}, {v(r,2)} op_sel:[0,0] op_sel_hi:[1,0]")
                A(f"v_pk_fma_f32 {v(n,2)}, {v(p,2)}, {v(r,2)}, {v(n,2)} op_sel:[1,1,0] op_sel_hi:[0,1,1] neg_lo:[0,1,0]")
    def g_gen(self):
        A = self.A
        A(f"s_and_b32 s57, {s(sW)}, 1"); A("s_lshl_b32 s58, s56, 1"); A("s_add_u32 s57, s57, s58")
        A("s_mul_i32 s58, s57, 52"); A("s_lshr_b32 s58, s58, 8")
        A("s_mul_i32 s59, s58, 5"); A("s_sub_u32 s59, s57, s59")
        A(f"s_lshr_b32 s60, {s(sW)}, 1")
        A("s_mul_i32 s58, s58, 21"); A("s_add_u32 s58, s58, s60"); A("s_mul_i32 s58, s58, 5120")
        A("s_lshl_b32 s59, s59, 10"); A("s_add_u32 s58, s58, s59"); A(f"s_add_u32 s58, s58, {hex(GP_OFF)}")
        A("v_and_b32 v7, 15, v1"); A("v_lshrrev_b32 v8, 4, v1")
        A("s_lshl_b32 s57, s57, 4"); A("v_add_u32 v7, s57, v7")
        A("s_lshl_b32 s60, s60, 4"); A("v_lshl_add_u32 v8, v8, 2, s60")
        SC2 = "0x35cccccd"
        for r in range(4):
            A(f"v_add_u32 v60, {r}, v8"); A("v_mul_u32_u24 v61, v7, v60"); self.mod640(61, 61, 62)
            self.sincos_idx(61, INV640, 100 + 2 * r, 101 + 2 * r, 62)
            A(f"v_mul_f32 {v(100+2*r)}, {SC2}, {v(100+2*r)}"); A(f"v_mul_f32 {v(101+2*r)}, {SC2}, {v(101+2*r)}")
        A("v_lshlrev_b32 v61, 5, v7"); self.mod640(61, 61, 62)
        self.sincos_idx(61, INV640, 68, 69, 62)
        A("v_lshlrev_b32 v9, 4, v1")
        for i in range(11):
            if i == 10:
                A(f"s_cmp_ge_u32 {s(sW)}, 2"); A("s_cbranch_scc1 L_gv_pre_done")
            src = 100
            if i in (0, 10):
                for r in range(4):
                    A(f"v_add_u32 v60, {r + 32*i}, v8")
                    A("v_mov_b32 v61, 1.0")
                    A("v_cmp_eq_u32 vcc, 0, v60"); A("v_cndmask_b32 v61, v61, 0.5, vcc") if False else None
                    A("v_mov_b32 v62, 0.5"); A("v_cndmask_b32 v61, v61, v62, vcc")
                    A("v_cmp_eq_u32 vcc, 320, v60"); A("v_cndmask_b32 v61, v61, v62, vcc")
                    A("v_mov_b32 v62, 0"); A("v_cmp_lt_u32 vcc, 320, v60"); A("v_cndmask_b32 v61, v61, v62, vcc")
                    A(f"v_mul_f32 {v(110+2*r)}, {v(100+2*r)}, v61"); A(f"v_mul_f32 {v(111+2*r)}, {v(101+2*r)}, v61")
                src = 110
            A(f"v_cvt_pk_bf16_f32 v70, {v(src)}, {v(src+2)}"); A(f"v_cvt_pk_bf16_f32 v71, {v(src+4)}, {v(src+6)}")
            A(f"v_cvt_pk_bf16_f32 v72, {v(src+1)}, {v(src+3)}"); A(f"v_cvt_pk_bf16_f32 v73, {v(src+5)}, {v(src+7)}")
            A(f"buffer_store_dwordx4 v[70:73], v9, {srd(SWS)}, s58 offen sc1")
            A(f"s_add_u32 s58, s58, {2*5120}")
            if i < 10:
                for r in range(4):
                    p = 100 + 2 * r
                    A(f"v_pk_mul_f32 v[64:65], {v(p,2)}, v[68:69] op_sel:[0,0] op_sel_hi:[1,0]")
                    A(f"v_pk_fma_f32 {v(p,2)}, {v(p,2)}, v[68:69], v[64:65] op_sel:[1,1,0] op_sel_hi:[0,1,1] neg_lo:[0,1,0]")


    def p2_roles(self):
        A = self.A
        A("s_and_b32 s52, s2, 7"); A("s_lshr_b32 s53, s2, 3")
        A("s_mul_i32 s54, s53, 37"); A("s_lshr_b32 s54, s54, 8")
        A("s_mul_i32 s55, s54, 7"); A("s_sub_u32 s55, s53, s55")
        A("s_lshl_b32 s54, s54, 3"); A("s_add_u32 s54, s54, s52")
        A("s_mul_i32 s56, s55, 3"); A(f"s_add_u32 s56, s56, {s(sW)}")
    def p2_pre(self):
        A = self.A
        self.p2_roles()
        A("s_cmp_ge_u32 s53, 28"); A("s_cbranch_scc1 L_p2pre_done")
        A(f"s_cmp_eq_u32 {s(sW)}, 3"); A("s_cbranch_scc1 L_p2pre_done")
        A("s_mov_b32 s57, s54")
        A("s_sub_u32 s58, 2048, s54"); A("s_cmp_eq_u32 s54, 0"); A("s_cselect_b32 s58, 32, s58")
        A("v_and_b32 v4, 15, v1"); A("v_lshrrev_b32 v5, 4, v1")
        A("s_lshl_b32 s59, s56, 4"); A("v_add_u32 v6, s59, v4"); A("v_lshlrev_b32 v6, 1, v6")
        for k in range(32): A(f"v_mov_b32 {v(200+k)}, 0")
        for sg in range(2):
            A(f"v_lshl_add_u32 v7, v5, 8, {s(57+sg)}")
            for mt in range(2):
                for r in range(4):
                    A(f"v_add_u32 v8, {64*(16*mt+r)}, v7"); A("v_and_b32 v8, 2047, v8")
                    A("v_mul_u32_u24 v8, 642, v8"); A(f"v_add_u32 {v(10+8*mt//2*2*0+ (4*mt+r))}, v8, v6")
            for mt in range(2):
                for r in range(4):
                    A(f"buffer_load_short_d16_hi {v(200+16*sg+4*mt+r)}, {v(10+4*mt+r)}, {srd(SWR)}, 0 offen")
                    A(f"buffer_load_short_d16_hi {v(208+16*sg+4*mt+r)}, {v(10+4*mt+r)}, {srd(SWI)}, 0 offen")
        INV = "0x3a000000"
        A("v_lshlrev_b32 v7, 2, v5")
        for inv in range(2):
            for sg in range(2):
                for tl in range(2):
                    base = 160 + 48 * inv + 24 * sg + 12 * tl
                    if inv == 0:
                        A(f"v_add_u32 v8, {16*tl}, v4"); A(f"v_lshl_add_u32 v8, v8, 6, {s(57+sg)}")
                    else:
                        A(f"v_add_u32 v8, {16*tl}, v4")
                    for jj in range(8):
                        o = 16 * (jj >> 2) + (jj & 3)
                        A(f"v_add_u32 v9, {o}, v7")
                        if inv == 1: A(f"v_lshl_add_u32 v9, v9, 6, {s(57+sg)}")
                        A("v_mul_u32_u24 v9, v8, v9"); A("v_and_b32 v9, 2047, v9")
                        self.sincos_idx(9, INV, 20 + jj, 28 + jj, 18)
                    for k in range(4):
                        A(f"v_cvt_pk_bf16_f32 v36, {v(20+2*k)}, {v(21+2*k)}")
                        A(f"v_cvt_pk_bf16_f32 v37, {v(28+2*k)}, {v(29+2*k)}")
                        A("v_xor_b32 v38, 0x80008000, v37")
                        A(f"v_accvgpr_write_b32 {a(base+k)}, v36"); A(f"v_accvgpr_write_b32 {a(base+4+k)}, v37"); A(f"v_accvgpr_write_b32 {a(base+8+k)}, v38")
        A.label("L_p2pre_done")
    def p2_main(self):
        A = self.A
        self.p2_roles()
        A("s_cmp_ge_u32 s53, 28"); A("s_cbranch_scc1 L_p2_idle")
        A("s_waitcnt vmcnt(0)")
        A("v_lshlrev_b32 v2, 4, v1")
        A(f"s_lshr_b32 s57, {s(sW)}, 1"); A("s_lshl_b32 s57, s57, 5"); A("s_add_u32 s57, s57, s54"); A("s_mul_i32 s57, s57, 40960")
        A(f"s_and_b32 s58, {s(sW)}, 1"); A("s_lshl_b32 s58, s58, 10"); A("s_add_u32 s57, s57, s58")
        if T0_OFF: A(f"s_add_u32 s57, s57, {hex(T0_OFF)}")
        A(f"s_lshl_b32 s58, {s(sW)}, 10")
        A("s_mul_i32 s59, s56, 40960"); A(f"s_add_u32 s59, s59, {hex(FP_OFF)}")
        A(f"s_cmp_eq_u32 {s(sW)}, 3"); A("s_cbranch_scc1 L_p2_w3")
        for t in range(20):
            A(f"s_add_u32 m0, s58, {t*4096}")
            A(f"buffer_load_dwordx4 v2, {srd(SWS)}, s57 offen sc1 lds")
            A(f"buffer_load_dwordx4 {a(8*t,4)}, v2, {srd(SWS)}, s59 offen sc1")
            A(f"buffer_load_dwordx4 {a(8*t+4,4)}, v2, {srd(SWS)}, s59 offen offset:1024 sc1")
            if t < 19:
                A("s_add_u32 s57, s57, 2048"); A("s_add_u32 s59, s59, 2048")
        A("v_and_b32 v4, 15, v1"); A("v_lshrrev_b32 v5, 4, v1")
        A("v_lshrrev_b32 v6, 2, v4")
        A("v_lshrrev_b32 v7, 1, v6"); A("v_xor_b32 v8, v6, v7"); A("v_and_b32 v8, 1, v8"); A("v_lshl_or_b32 v7, v8, 1, v7")
        A("v_xor_b32 v7, v7, v5"); A("v_lshlrev_b32 v7, 4, v7"); A("v_lshl_add_u32 v3, v4, 6, v7")
        A("v_add_u32 v9, 40960, v3")
        A("v_mul_u32_u24 v10, 13440, v5"); A("v_lshl_add_u32 v10, v4, 2, v10")
        A("s_lshl_b32 s60, s56, 6"); A(f"s_add_u32 s60, s60, {hex(SAP_OFF)}")
        def rd(t, buf):
            ad = "v3" if t < 10 else "v9"; o = (t % 10) * 4096
            for ab in range(2):
                for st in range(2):
                    A(f"ds_read_b128 {v(40+16*buf+8*ab+4*st,4)}, {ad} offset:{o+ab*2048+st*1024}")
        def mm(t, buf):
            for ab in range(2):
                for st in range(2):
                    for cs in range(2):
                        d = v(72 + 16 * ab + 8 * st + 4 * cs, 4)
                        A(f"v_mfma_f32_16x16x32_bf16 {d}, {v(40+16*buf+8*ab+4*st,4)}, {a(8*t+4*cs,4)}, {'0' if t == 0 else d}")
        waits = [45, 40, 25, 10]
        for gm in range(4):
            A(f"s_waitcnt vmcnt({waits[gm]})"); A("s_barrier")
            if self.o.get("ts") == 2: self.stamp(20 + gm)
            t0 = 5 * gm
            rd(t0, t0 & 1)
            if gm == 0:
                for tt in range(5):
                    for cs in range(2):
                        A(f"buffer_load_dword {v(184+2*tt+cs)}, v10, {srd(SWS)}, s60 offen offset:{cs*1344} sc1")
                    A("s_add_u32 s60, s60, 2688")
            for t in range(t0, t0 + 5):
                if t + 1 < t0 + 5:
                    rd(t + 1, (t + 1) & 1); A("s_waitcnt lgkmcnt(4)")
                else:
                    A("s_waitcnt lgkmcnt(0)")
                mm(t, t & 1)
        A("s_waitcnt vmcnt(0)")
        if self.o.get("ts") == 2: self.stamp(24)
        Ac = lambda st: 72 + 8 * st; As = lambda st: 76 + 8 * st; Bc = lambda st: 88 + 8 * st; Bs = lambda st: 92 + 8 * st
        Z = lambda sg, c, st: 104 + 16 * sg + 8 * c + 4 * st
        def pk(op, d, x, y, negx=0, negy=0):
            m = ""
            if negx or negy: m = f" neg_lo:[{negx},{negy}] neg_hi:[{negx},{negy}]"
            A(f"{op} {v(d,2)}, {v(x,2)}, {v(y,2)}{m}")
        A("s_cmp_eq_u32 s54, 0"); A("s_cbranch_scc1 L_p2_spec1")
        for st in range(2):
            for h in (0, 2):
                pk("v_pk_add_f32", Z(0,0,st)+h, Ac(st)+h, Bs(st)+h)
                pk("v_pk_add_f32", Z(0,1,st)+h, Bc(st)+h, As(st)+h, 0, 1)
                pk("v_pk_add_f32", Z(1,0,st)+h, Ac(st)+h, Bs(st)+h, 0, 1)
                pk("v_pk_add_f32", Z(1,1,st)+h, Bc(st)+h, As(st)+h, 1, 1)
        A("s_branch L_p2_c1")
        A.label("L_p2_spec1")
        for tt in range(1, 5):
            A(f"v_add_f32 v184, v184, {v(184+2*tt)}"); A(f"v_add_f32 v185, v185, {v(185+2*tt)}")
        for xm in (16, 32):
            A(f"v_xor_b32 v10, {xm}, v1"); A("v_lshlrev_b32 v10, 2, v10")
            A("ds_bpermute_b32 v186, v10, v184"); A("ds_bpermute_b32 v187, v10, v185")
            A("s_waitcnt lgkmcnt(0)")
            A("v_add_f32 v184, v184, v186"); A("v_add_f32 v185, v185, v187")
        A("v_mul_f32 v184, 0x42800000, v184"); A("v_mul_f32 v185, 0x42800000, v185")
        for st in range(2):
            for r in range(4):
                A(f"v_add_f32 {v(Z(0,0,st)+r)}, {v(Ac(st)+r)}, v184")
                A(f"v_add_f32 {v(Z(0,1,st)+r)}, {v(As(st)+r)}, v185"); A(f"v_sub_f32 {v(Z(0,1,st)+r)}, 0, {v(Z(0,1,st)+r)}")
                A(f"v_mov_b32 {v(Z(1,0,st)+r)}, {v(Bc(st)+r)}")
                A(f"v_sub_f32 {v(Z(1,1,st)+r)}, 0, {v(Bs(st)+r)}")
        A.label("L_p2_c1")
        ZP = lambda sg, c: 136 + 8 * sg + 4 * c
        def pack():
            for sg in range(2):
                for c in range(2):
                    for k in range(4):
                        A(f"v_cvt_pk_bf16_f32 {v(ZP(sg,c)+k)}, {v(Z(sg,c,0)+2*k)}, {v(Z(sg,c,0)+2*k+1)}")
        pack()
        FW = lambda inv, sg, tl, w: a(160 + 48 * inv + 24 * sg + 12 * tl + 4 * w, 4)
        for sg in range(2):
            for mt in range(2):
                xr = v(Z(sg,0,mt), 4); xi = v(Z(sg,1,mt), 4)
                A(f"v_mfma_f32_16x16x32_bf16 {xr}, {FW(0,sg,mt,0)}, {v(ZP(sg,0),4)}, 0")
                A(f"v_mfma_f32_16x16x32_bf16 {xi}, {FW(0,sg,mt,0)}, {v(ZP(sg,1),4)}, 0")
            for mt in range(2):
                xr = v(Z(sg,0,mt), 4); xi = v(Z(sg,1,mt), 4)
                A(f"v_mfma_f32_16x16x32_bf16 {xr}, {FW(0,sg,mt,1)}, {v(ZP(sg,1),4)}, {xr}")
                A(f"v_mfma_f32_16x16x32_bf16 {xi}, {FW(0,sg,mt,2)}, {v(ZP(sg,0),4)}, {xi}")
        Y = lambda sg, c, mt: 152 + 16 * sg + 8 * c + 4 * mt
        WR = lambda sg, mt: 200 + 16 * sg + 4 * mt; WI = lambda sg, mt: 208 + 16 * sg + 4 * mt
        for sg in range(2):
            for mt in range(2):
                for h in (0, 2):
                    xr = Z(sg,0,mt)+h; xi = Z(sg,1,mt)+h; wr = WR(sg,mt)+h; wi = WI(sg,mt)+h
                    yr = Y(sg,0,mt)+h; yi = Y(sg,1,mt)+h
                    A(f"v_pk_mul_f32 {v(yr,2)}, {v(xi,2)}, {v(wi,2)}")
                    A(f"v_pk_mul_f32 {v(yi,2)}, {v(xi,2)}, {v(wr,2)}")
                    A(f"v_pk_fma_f32 {v(yr,2)}, {v(xr,2)}, {v(wr,2)}, {v(yr,2)} neg_lo:[0,0,1] neg_hi:[0,0,1]")
                    A(f"v_pk_fma_f32 {v(yi,2)}, {v(xr,2)}, {v(wi,2)}, {v(yi,2)}")
        for sg in range(2):
            for c in range(2):
                for k in range(4):
                    A(f"v_cvt_pk_bf16_f32 {v(ZP(sg,c)+k)}, {v(Y(sg,c,0)+2*k)}, {v(Y(sg,c,0)+2*k+1)}")
        for sg in range(2):
            for nt in range(2):
                vr = v(Z(sg,0,nt), 4); vi = v(Z(sg,1,nt), 4)
                A(f"v_mfma_f32_16x16x32_bf16 {vr}, {v(ZP(sg,0),4)}, {FW(1,sg,nt,0)}, 0")
                A(f"v_mfma_f32_16x16x32_bf16 {vi}, {v(ZP(sg,1),4)}, {FW(1,sg,nt,0)}, 0")
            for nt in range(2):
                vr = v(Z(sg,0,nt), 4); vi = v(Z(sg,1,nt), 4)
                A(f"v_mfma_f32_16x16x32_bf16 {vr}, {v(ZP(sg,1),4)}, {FW(1,sg,nt,2)}, {vr}")
                A(f"v_mfma_f32_16x16x32_bf16 {vi}, {v(ZP(sg,0),4)}, {FW(1,sg,nt,1)}, {vi}")
        if self.o.get("ts") == 2: self.stamp(25)
        A("v_lshrrev_b32 v6, 1, v5"); A("v_lshlrev_b32 v6, 7, v6"); A("v_and_b32 v7, 1, v5"); A("v_lshl_or_b32 v6, v7, 4, v6")
        A("s_mov_b32 s60, 86016"); A("v_mul_lo_u32 v7, v4, s60"); A("v_add_u32 v6, v6, v7")
        A("s_lshl_b32 s60, s56, 12")
        A("s_lshr_b32 s61, s54, 3"); A("s_lshl_b32 s61, s61, 10"); A("s_add_u32 s60, s60, s61")
        A("s_and_b32 s61, s54, 7"); A("s_lshr_b32 s61, s61, 1"); A("s_lshl_b32 s61, s61, 8"); A("s_add_u32 s60, s60, s61")
        A("s_and_b32 s61, s54, 1"); A("s_lshl_b32 s61, s61, 6"); A("s_add_u32 s60, s60, s61")
        A(f"s_add_u32 s60, s60, {hex(A3_OFF)}")
        RC = lambda nt: 152 + 16 * nt; RS = lambda nt: 156 + 16 * nt; IC = lambda nt: 160 + 16 * nt; IS = lambda nt: 164 + 16 * nt
        A("s_cmp_eq_u32 s54, 0"); A("s_cbranch_scc1 L_p2_spec2")
        for nt in range(2):
            for h in (0, 2):
                pk("v_pk_add_f32", RC(nt)+h, Z(0,0,nt)+h, Z(1,0,nt)+h)
                pk("v_pk_add_f32", RS(nt)+h, Z(0,1,nt)+h, Z(1,1,nt)+h, 1, 1)
                pk("v_pk_add_f32", IC(nt)+h, Z(0,1,nt)+h, Z(1,1,nt)+h, 0, 1)
                pk("v_pk_add_f32", IS(nt)+h, Z(0,0,nt)+h, Z(1,0,nt)+h, 0, 1)
        A("s_branch L_p2_c2")
        A.label("L_p2_spec2")
        for nt in range(2):
            for r in range(4):
                A(f"v_mov_b32 {v(RC(nt)+r)}, {v(Z(0,0,nt)+r)}"); A(f"v_sub_f32 {v(RS(nt)+r)}, 0, {v(Z(0,1,nt)+r)}")
                A(f"v_mov_b32 {v(IC(nt)+r)}, {v(Z(1,0,nt)+r)}"); A(f"v_sub_f32 {v(IS(nt)+r)}, 0, {v(Z(1,1,nt)+r)}")
        A.label("L_p2_c2")
        for nt in range(2):
            for e in range(2):
                b = 152 + 16 * nt + 8 * e; p = 136 + 8 * nt + 4 * e
                for k in range(4):
                    A(f"v_cvt_pk_bf16_f32 {v(p+k)}, {v(b+2*k)}, {v(b+2*k+1)}")
                A(f"buffer_store_dwordx4 {v(p,4)}, v6, {srd(SWS)}, s60 offen offset:{32*e} sc1")
            if nt == 0: A(f"s_add_u32 s60, s60, {16*86016}")
        A("s_branch L_p2_done")
        A.label("L_p2_w3")
        for t in range(20):
            A(f"s_add_u32 m0, s58, {t*4096}")
            A(f"buffer_load_dwordx4 v2, {srd(SWS)}, s57 offen sc1 lds")
            if t < 19: A("s_add_u32 s57, s57, 2048")
        self.uv_issue()
        for gm in range(4):
            A(f"s_waitcnt vmcnt({25-5*gm})"); A("s_barrier")
        self.uv_compute()
        A("s_branch L_p2_done")
        A.label("L_p2_idle")
        A.label("L_p2_done")


    STG13 = 86016
    STG2 = 106496
    def repack13(self):
        A = self.A
        A("s_cmp_ge_u32 s2, 216"); A("s_cbranch_scc1 L_rp13_done")
        A("s_lshr_b32 s52, s2, 3"); A("s_and_b32 s53, s2, 7")
        A("v_lshrrev_b32 v4, 3, v1"); A("v_and_b32 v5, 7, v1")
        A("v_mul_u32_u24 v4, 3456, v4"); A("v_lshl_add_u32 v4, v5, 4, v4")
        A(f"s_and_b32 s54, {s(sW)}, 1"); A("s_mul_i32 s54, s54, 40")
        A("s_mul_i32 s55, s53, 80"); A("s_add_u32 s54, s54, s55"); A("s_mul_i32 s54, s54, 3456")
        A("s_lshl_b32 s55, s52, 7"); A("s_add_u32 s54, s54, s55")
        A(f"s_mul_i32 s55, {s(sW)}, 5120"); A(f"s_add_u32 s55, s55, {self.STG13}")
        A(f"s_cmp_ge_u32 {s(sW)}, 2"); A("s_cbranch_scc1 L_rp13_w3")
        for n in range(5):
            A(f"s_add_u32 m0, s55, {n*1024}")
            A(f"buffer_load_dwordx4 v4, {srd(SW1)}, s54 offen lds")
            A(f"s_add_u32 s54, s54, {8*3456}")
        A("s_branch L_rp13_c")
        A.label("L_rp13_w3")
        for n in range(5):
            A(f"s_add_u32 m0, s55, {n*1024}")
            A(f"buffer_load_dwordx4 v4, {srd(SW3)}, s54 offen lds")
            A(f"s_add_u32 s54, s54, {8*3456}")
        A.label("L_rp13_c")
        self.rp13_addr(6, 7)
        A(f"s_lshl_b32 s54, {s(sW)}, 5"); A("v_add_u32 v6, s54, v6"); A("v_add_u32 v7, s54, v7")
        A("s_waitcnt vmcnt(0)"); A("s_barrier")
        self.rp13_read(6, 7, 40)
        A("s_lshl_b32 s54, s52, 2"); A(f"s_add_u32 s54, s54, {s(sW)}"); A("s_mul_i32 s54, s54, 40")
        A("s_mul_i32 s55, s53, 5"); A("s_add_u32 s54, s54, s55"); A("s_lshl_b32 s54, s54, 10"); A(f"s_add_u32 s54, s54, {hex(W13_OFF)}")
        A("v_lshlrev_b32 v8, 4, v1")
        A("s_waitcnt lgkmcnt(0)")
        for k5 in range(5):
            A(f"buffer_store_dwordx4 {v(40+4*k5,4)}, v8, {srd(SWS)}, s54 offen sc1")
            if k5 < 4: A("s_add_u32 s54, s54, 1024")
        A.label("L_rp13_done")
    def rp13_addr(self, va, vb):
        A = self.A
        A("v_lshrrev_b32 v10, 4, v1"); A("v_and_b32 v11, 1, v10"); A("v_lshrrev_b32 v10, 1, v10")
        A("v_bfe_u32 v12, v1, 2, 2"); A("v_and_b32 v13, 3, v1")
        A("v_mul_u32_u24 v11, 10240, v11"); A("v_lshl_add_u32 v11, v13, 3, v11"); A(f"v_add_u32 v11, {self.STG13}, v11")
        A(f"v_lshl_add_u32 v13, v10, 2, v12"); A(f"v_lshl_add_u32 {v(va)}, v13, 7, v11")
        A(f"v_lshl_add_u32 v13, v10, 3, v12"); A(f"v_lshl_add_u32 {v(vb)}, v13, 7, v11")
    def rp13_read(self, va, vb, dst, extra=0):
        A = self.A
        for k5 in range(5):
            for h in range(2):
                if k5 < 4:
                    row = 32 * (k5 >> 1) + 16 * h + 8 * (k5 & 1); ad = va
                else:
                    row = 64 + 4 * h; ad = vb
                A(f"ds_read_b64_tr_b16 {v(dst+4*k5+2*h,2)}, {v(ad)} offset:{row*128+extra}")
    def repack2(self):
        A = self.A
        A("s_cmp_ge_u32 s2, 216"); A("s_cbranch_scc1 L_rp2_big")
        A(f"s_cmp_lg_u32 {s(sW)}, 0"); A("s_cbranch_scc1 L_rp2_done")
        A("s_mov_b32 s52, s2"); A("s_mov_b32 s53, 1")
        A("s_branch L_rp2_go")
        A.label("L_rp2_big")
        A("s_sub_u32 s52, s2, 216"); A("s_lshl_b32 s52, s52, 2"); A(f"s_add_u32 s52, s52, {s(sW)}"); A("s_add_u32 s52, s52, 216")
        A("s_mov_b32 s53, 3")
        A.label("L_rp2_go")
        A("v_lshrrev_b32 v4, 3, v1"); A("v_and_b32 v5, 7, v1")
        A("v_mul_u32_u24 v4, 1280, v4"); A("v_lshl_add_u32 v4, v5, 4, v4")
        A("v_lshrrev_b32 v10, 4, v1"); A("v_lshrrev_b32 v11, 1, v10"); A("v_and_b32 v10, 1, v10")
        A("v_lshlrev_b32 v11, 4, v11"); A("v_lshl_add_u32 v11, v10, 2, v11"); A("v_bfe_u32 v12, v1, 2, 2"); A("v_add_u32 v11, v11, v12")
        A("v_and_b32 v13, 3, v1"); A("v_lshlrev_b32 v13, 3, v13"); A("v_lshl_add_u32 v6, v11, 7, v13")
        A(f"s_mul_i32 s54, {s(sW)}, 12288"); A(f"s_add_u32 s54, s54, {self.STG2}")
        A("v_add_u32 v6, s54, v6")
        A("v_lshlrev_b32 v8, 4, v1")
        A.label("L_rp2_loop")
        A("s_cmp_ge_u32 s52, 540"); A("s_cbranch_scc1 L_rp2_done")
        A("s_mul_i32 s55, s52, 205"); A("s_lshr_b32 s55, s55, 11")
        A("s_mul_i32 s56, s55, 10"); A("s_sub_u32 s56, s52, s56")
        A("s_mul_i32 s57, s55, 40960"); A("s_lshl_b32 s58, s56, 7"); A("s_add_u32 s57, s57, s58")
        for n in range(4):
            A(f"s_add_u32 m0, s54, {n*1024}")
            A(f"buffer_load_dwordx4 v4, {srd(SW2)}, s57 offen lds")
            A(f"s_add_u32 s57, s57, {8*1280}")
        A("s_waitcnt vmcnt(0)")
        for dtl in range(4):
            for h in range(2):
                A(f"ds_read_b64_tr_b16 {v(60+4*dtl+2*h,2)}, v6 offset:{dtl*32 + h*8*128}")
        A("s_waitcnt lgkmcnt(0)")
        for dtl in range(4):
            A("s_lshl_b32 s57, s56, 2"); A(f"s_add_u32 s57, s57, {dtl}")
            A("s_mul_i32 s58, s57, 52"); A("s_lshr_b32 s58, s58, 8")
            A("s_mul_i32 s59, s58, 5"); A("s_sub_u32 s59, s57, s59")
            A("s_mul_i32 s58, s58, 54"); A("s_add_u32 s58, s58, s55"); A("s_mul_i32 s58, s58, 5"); A("s_add_u32 s58, s58, s59")
            A("s_lshl_b32 s58, s58, 10"); A(f"s_add_u32 s58, s58, {hex(W2P_OFF)}")
            A(f"buffer_store_dwordx4 {v(60+4*dtl,4)}, v8, {srd(SWS)}, s58 offen sc1")
        A("s_add_u32 s52, s52, 160"); A("s_sub_u32 s53, s53, 1"); A("s_cmp_lg_u32 s53, 0")
        A("s_cbranch_scc1 L_rp2_loop")
        A.label("L_rp2_done")
    def uv_issue(self, vm=None):
        A = self.A
        A("v_and_b32 v10, 31, v1"); A("v_lshrrev_b32 v11, 5, v1")
        A("v_lshlrev_b32 v12, 12, v10")
        A("v_cmp_lt_u32 vcc, 1, v10"); A("v_mov_b32 v13, 0x40000000"); A("v_cndmask_b32 v12, v12, v13, vcc")
        A("v_lshl_add_u32 v14, v11, 3, v12"); A("v_lshl_add_u32 v15, v11, 4, v12")
        A("s_and_b32 s61, s2, 7"); A("s_mul_i32 s61, s61, 160"); A(f"s_add_u32 s61, s61, {hex(CB1B_OFF)}")
        for k5 in range(5):
            for h in range(2):
                if k5 < 4: o = 2 * (32 * (k5 >> 1) + 16 * h + 8 * (k5 & 1)); ad = "v14"
                else: o = 2 * (64 + 4 * h); ad = "v15"
                A(f"buffer_load_dwordx2 {v(120+4*k5+2*h,2)}, {ad}, {srd(SWS)}, s61 offen offset:{o} sc1")
    def uv_compute(self):
        A = self.A
        lab = A.newlabel("L_uv_skip")
        A("s_cmp_ge_u32 s2, 216"); A(f"s_cbranch_scc1 {lab}")
        self.rp13_addr(6, 7)
        A("s_lshr_b32 s62, s2, 3"); A("s_and_b32 s63, s2, 7")
        A("v_and_b32 v10, 31, v1"); A("v_lshrrev_b32 v11, 5, v1")
        A("v_lshlrev_b32 v12, 7, v10"); A("v_lshl_add_u32 v12, v11, 4, v12")
        A("v_cmp_gt_u32 s[64:65], 2, v10")
        A("s_mul_i32 s63, s63, 108"); A("s_lshl_b32 s62, s62, 2"); A("s_add_u32 s62, s62, s63"); A("s_lshl_b32 s62, s62, 8"); A(f"s_add_u32 s62, s62, {hex(UVP_OFF)}")
        A("s_waitcnt vmcnt(0)")
        for tl in range(4):
            self.rp13_read(6, 7, 40, extra=32 * tl)
            A("s_waitcnt lgkmcnt(0)")
            for k5 in range(5):
                A(f"v_mfma_f32_32x32x16_bf16 v[64:79], {v(40+4*k5,4)}, {v(120+4*k5,4)}, {'0' if k5 == 0 else 'v[64:79]'}")
            A("s_mov_b64 s[66:67], exec"); A("s_mov_b64 exec, s[64:65]")
            for q in range(4):
                A(f"buffer_store_dwordx4 {v(64+4*q,4)}, v12, {srd(SWS)}, s62 offen offset:{32*q} sc1")
            A("s_mov_b64 exec, s[66:67]")
            A("s_add_u32 s62, s62, 256")
            A("s_nop 1")
        A.label(lab)


    X1 = 232
    def p35_roles(self):
        A = self.A
        A("s_and_b32 s52, s2, 7"); A("s_lshr_b32 s53, s2, 3")
        A("s_lshr_b32 s54, s53, 3"); A("s_lshl_b32 s54, s54, 3"); A("s_add_u32 s54, s54, s52")
        A("s_and_b32 s55, s53, 7")
    def p3_pre(self):
        A = self.A
        self.p35_roles()
        A("v_lshlrev_b32 v2, 4, v1")
        A("s_mul_i32 s56, s55, 107520"); A(f"s_lshl_b32 s57, {s(sW)}, 10"); A("s_add_u32 s56, s56, s57"); A(f"s_add_u32 s56, s56, {hex(GP_OFF)}")
        for k in range(27):
            A(f"s_add_u32 m0, s57, {k*4096}")
            A(f"buffer_load_dwordx4 v2, {srd(SWS)}, s56 offen sc1 lds")
            if k < 26: A("s_add_u32 s56, s56, 4096")
        A("v_and_b32 v4, 15, v1"); A("v_lshrrev_b32 v5, 4, v1")
        A("v_mul_u32_u24 v6, 0xa000, v4"); A("v_lshl_add_u32 v6, v5, 3, v6")
        A(f"s_lshl_b32 s56, {s(sW)}, 9"); A("s_add_u32 s56, s56, s54"); A("s_mul_i32 s56, s56, 1280"); A("s_mul_i32 s57, s55, 160"); A("s_add_u32 s56, s56, s57")
        for dt in range(5):
            A(f"buffer_load_dwordx2 {v(200+2*dt,2)}, v6, {srd(SX)}, s56 offen offset:{32*dt}")
        A("v_lshlrev_b32 v7, 4, v5")
        A("s_mul_i32 s56, s55, 320"); A(f"s_add_u32 s57, s56, {hex(GA_OFF)}"); A(f"s_add_u32 s58, s56, {hex(CB1F_OFF)}")
        for dt in range(5):
            A(f"buffer_load_dwordx4 {v(160+4*dt,4)}, v7, {srd(SWS)}, s57 offen offset:{64*dt} sc1")
            A(f"buffer_load_dwordx4 {v(180+4*dt,4)}, v7, {srd(SWS)}, s58 offen offset:{64*dt} sc1")
        A(f"s_lshl_b32 s56, {s(sW)}, 4"); A("v_add_u32 v8, s56, v4")
        A("v_lshlrev_b32 v9, 2, v5")
        for u in range(2):
            for jj in range(8):
                o = 32 * u + 16 * (jj >> 2) + (jj & 3)
                A(f"v_add_u32 v10, {o}, v9")
                A("v_lshrrev_b32 v11, 1, v10"); A("v_and_b32 v12, 1, v10")
                if o == 1:
                    A("v_cmp_eq_u32 vcc, 1, v10")
                    A("v_mov_b32 v13, 32"); A("v_cndmask_b32 v11, v11, v13, vcc")
                    A("v_mov_b32 v13, 0"); A("v_cndmask_b32 v12, v12, v13, vcc")
                A("v_lshlrev_b32 v12, 4, v12"); A("v_mad_u32_u24 v11, v11, v8, v12"); A("v_and_b32 v11, 63, v11")
                self.sincos_idx(11, "0x3c800000", 20 + jj, None, 13)
            for k in range(4):
                A(f"v_cvt_pk_bf16_f32 {v(210+4*u+k)}, {v(20+2*k)}, {v(21+2*k)}")
    def p3_main(self):
        A = self.A
        self.p35_roles()
        A("v_and_b32 v4, 15, v1"); A("v_lshrrev_b32 v5, 4, v1")
        A("v_lshrrev_b32 v6, 2, v4"); A("v_lshlrev_b32 v6, 8, v6"); A("v_lshrrev_b32 v7, 1, v5"); A("v_lshl_add_u32 v6, v7, 7, v6")
        A("v_and_b32 v7, 3, v4"); A("v_lshl_add_u32 v6, v7, 5, v6"); A("v_and_b32 v7, 1, v5"); A("v_lshl_add_u32 v6, v7, 4, v6")
        A("s_mul_i32 s56, s54, 86016"); A(f"s_lshl_b32 s57, {s(sW)}, 10"); A("s_add_u32 s56, s56, s57"); A(f"s_add_u32 s56, s56, {hex(A3_OFF)}")
        for tau in range(21):
            A(f"buffer_load_dwordx4 {a(4*tau,4)}, v6, {srd(SWS)}, s56 offen sc1")
            if tau < 20: A("s_add_u32 s56, s56, 4096")
        A("v_lshlrev_b32 v2, 4, v1"); A("v_add_u32 v3, 56320, v2")
        def rd(tau):
            ad = "v2" if tau < 11 else "v3"; o = (tau if tau < 11 else tau - 11) * 5120
            for dt in range(5):
                A(f"ds_read_b128 {v(60+20*(tau&1)+4*dt,4)}, {ad} offset:{o+dt*1024}")
        rd(0)
        for tau in range(21):
            if tau < 20:
                rd(tau + 1); A(f"s_waitcnt vmcnt({20-tau}) lgkmcnt(5)")
            else:
                A("s_waitcnt vmcnt(0) lgkmcnt(0)")
            for dt in range(5):
                d = v(40 + 4 * dt, 4)
                A(f"v_mfma_f32_16x16x32_bf16 {d}, {a(4*tau,4)}, {v(60+20*(tau&1)+4*dt,4)}, {'0' if tau == 0 else d}")
        XB = 107520
        A(f"s_lshr_b32 s56, {s(sW)}, 1"); A("s_mul_i32 s56, s56, 5120"); A(f"s_and_b32 s57, {s(sW)}, 1"); A("s_lshl_b32 s57, s57, 3")
        A("s_add_u32 s56, s56, s57"); A(f"s_add_u32 s56, s56, {XB}")
        A("v_add_u32 v8, s56, v2")
        for dt in range(5):
            A(f"v_cvt_pk_bf16_f32 {v(60+2*dt)}, {v(40+4*dt)}, {v(41+4*dt)}")
            A(f"v_cvt_pk_bf16_f32 {v(61+2*dt)}, {v(42+4*dt)}, {v(43+4*dt)}")
            A(f"ds_write_b64 v8, {v(60+2*dt,2)} offset:{dt*1024}")
        A("s_waitcnt lgkmcnt(0)"); A("s_barrier")
        A(f"v_add_u32 v8, {XB}, v2")
        for u in range(2):
            for dt in range(5):
                A(f"ds_read_b128 {v(60+20*u+4*dt,4)}, v8 offset:{(5*u+dt)*1024}")
        A("s_waitcnt lgkmcnt(5)")
        for dt in range(5):
            A(f"v_mfma_f32_16x16x32_bf16 {v(100+4*dt,4)}, {v(60+4*dt,4)}, v[210:213], 0")
        A("s_waitcnt lgkmcnt(0)")
        for dt in range(5):
            A(f"v_mfma_f32_16x16x32_bf16 {v(100+4*dt,4)}, {v(80+4*dt,4)}, v[214:217], {v(100+4*dt,4)}")
        X1 = self.X1
        for dt in range(5):
            for h in range(2):
                xr = 200 + 2 * dt + h
                A(f"v_lshlrev_b32 {v(X1+4*dt+2*h)}, 16, {v(xr)}")
                A(f"v_and_b32 {v(X1+4*dt+2*h+1)}, 0xffff0000, {v(xr)}")
        for dt in range(5):
            for h in (0, 2):
                A(f"v_pk_fma_f32 {v(X1+4*dt+h,2)}, {v(160+4*dt+h,2)}, {v(100+4*dt+h,2)}, {v(X1+4*dt+h,2)}")
        A(f"v_pk_add_f32 v[20:21], {v(X1,2)}, {v(X1+2,2)}")
        A(f"v_pk_mul_f32 v[22:23], {v(X1,2)}, {v(X1,2)}")
        A(f"v_pk_fma_f32 v[22:23], {v(X1+2,2)}, {v(X1+2,2)}, v[22:23]")
        for k in range(2, 10):
            A(f"v_pk_add_f32 v[20:21], v[20:21], {v(X1+2*k,2)}")
            A(f"v_pk_fma_f32 v[22:23], {v(X1+2*k,2)}, {v(X1+2*k,2)}, v[22:23]")
        A("v_add_f32 v20, v20, v21"); A("v_add_f32 v21, v22, v23")
        for sw in ("v_permlane16_swap_b32", "v_permlane32_swap_b32"):
            A("v_mov_b32 v22, v20"); A("v_mov_b32 v23, v21")
            A(f"{sw} v20, v22"); A(f"{sw} v21, v23")
            A("v_add_f32 v20, v20, v22"); A("v_add_f32 v21, v21, v23")
        for dt in range(5):
            for h in (0, 2):
                A(f"v_pk_mul_f32 {v(100+4*dt+h,2)}, {v(X1+4*dt+h,2)}, {v(180+4*dt+h,2)}")
        for dt in range(5):
            A(f"v_cvt_pk_bf16_f32 {v(60+2*dt)}, {v(100+4*dt)}, {v(101+4*dt)}")
            A(f"v_cvt_pk_bf16_f32 {v(61+2*dt)}, {v(102+4*dt)}, {v(103+4*dt)}")
        A("v_lshrrev_b32 v6, 1, v5"); A("v_and_b32 v7, 1, v5")
        A("v_lshlrev_b32 v8, 10, v6"); A("v_lshl_add_u32 v8, v7, 9, v8"); A("v_lshl_add_u32 v8, v4, 4, v8")
        A("v_lshlrev_b32 v9, 9, v6"); A("v_lshl_add_u32 v9, v4, 4, v9"); A("v_lshl_add_u32 v9, v7, 3, v9"); A("v_add_u32 v9, 4096, v9")
        A("s_lshl_b32 s56, s54, 1"); A(f"s_lshr_b32 s57, {s(sW)}, 1"); A("s_add_u32 s56, s56, s57"); A("s_mul_i32 s56, s56, 40960")
        A("s_mul_i32 s57, s55, 5120"); A("s_add_u32 s56, s56, s57")
        A(f"s_and_b32 s57, {s(sW)}, 1"); A("s_lshl_b32 s57, s57, 8"); A("s_add_u32 s56, s56, s57"); A(f"s_add_u32 s56, s56, {hex(X1C_OFF)}")
        A(f"buffer_store_dwordx4 v[60:63], v8, {srd(SWS)}, s56 offen sc1")
        A(f"buffer_store_dwordx4 v[64:67], v8, {srd(SWS)}, s56 offen offset:2048 sc1")
        A(f"buffer_store_dwordx2 v[68:69], v9, {srd(SWS)}, s56 offen sc1")
        A("s_lshl_b32 s56, s55, 14"); A("s_lshl_b32 s57, s54, 9"); A("s_add_u32 s56, s56, s57"); A(f"s_lshl_b32 s57, {s(sW)}, 7"); A("s_add_u32 s56, s56, s57")
        A(f"s_add_u32 s56, s56, {hex(ST2_OFF)}")
        A("v_lshlrev_b32 v8, 3, v4")
        A("s_mov_b64 s[60:61], exec"); A("s_mov_b64 exec, 0xffff")
        A(f"buffer_store_dwordx2 v[20:21], v8, {srd(SWS)}, s56 offen sc1")
        A("s_mov_b64 exec, s[60:61]")

    P4_NS = 120; P4_GS = 20; EXT = 122880
    def p4_roles(self):
        A = self.A
        A("s_and_b32 s52, s2, 7"); A("s_lshr_b32 s53, s2, 3")
        A("s_lshr_b32 s54, s52, 2"); A("s_lshl_b32 s54, s54, 3"); A("s_and_b32 s55, s53, 7"); A("s_add_u32 s54, s54, s55")
        A("s_and_b32 s55, s52, 3"); A("s_lshl_b32 s55, s55, 2"); A("s_lshr_b32 s56, s53, 3"); A("s_add_u32 s55, s55, s56")
    def p4_seq(self):
        seq = []
        for k in range(40):
            for tl in range(4): seq.append((tl, k))
        for k in range(40):
            for tl in (4, 5): seq.append((tl, k))
        for k in range(40): seq.append((6, k))
        return seq
    def p4_dma_group(self, g, vm):
        A = self.A
        GS, NS = self.P4_GS, self.P4_NS
        if g * GS >= 280: return
        for k in range(GS // 4):
            e0 = g * GS + 4 * k
            slot = e0 % NS
            A(f"s_add_u32 m0, s71, {slot*1024}")
            if e0 < 160: r, inc = 68, 1024
            elif e0 < 240: r, inc = 69, 2048
            else: r, inc = 70, 4096
            A(f"buffer_load_dwordx4 v2, {srd(SWS)}, {s(r)} offen sc1 lds")
            A(f"s_add_u32 {s(r)}, {s(r)}, {inc}")
            vm.append(("dma", g))
    def p4_pre(self):
        A = self.A
        self.p4_roles()
        self.vm4 = []
        A("v_lshlrev_b32 v2, 4, v1")
        A("s_mul_i32 s57, s55, 286720"); A(f"s_add_u32 s57, s57, {hex(W13_OFF)}")
        A(f"s_mul_i32 s58, {s(sW)}, 40960"); A("s_add_u32 s68, s57, s58")
        A(f"s_and_b32 s58, {s(sW)}, 1"); A("s_add_u32 s58, s58, 4"); A("s_mul_i32 s58, s58, 40960"); A("s_add_u32 s69, s57, s58")
        A(f"s_lshr_b32 s58, {s(sW)}, 1"); A("s_lshl_b32 s58, s58, 10"); A("s_add_u32 s69, s69, s58")
        A(f"s_lshl_b32 s58, {s(sW)}, 10"); A("s_add_u32 s70, s57, s58"); A(f"s_add_u32 s70, s70, {6*40960}")
        A(f"s_lshl_b32 s71, {s(sW)}, 10")
        for g in range(self.P4_NS // self.P4_GS):
            self.p4_dma_group(g, self.vm4)
        A("v_lshrrev_b32 v4, 5, v0"); A("v_and_b32 v5, 31, v0")
        A("v_lshlrev_b32 v6, 8, v4"); A("v_lshl_add_u32 v6, v5, 2, v6")
        A("s_mul_i32 s57, s55, 1792"); A(f"s_add_u32 s57, s57, {hex(UVP_OFF)}")
        for p in range(8):
            A(f"buffer_load_dword {v(10+p)}, v6, {srd(SWS)}, s57 offen sc1")
            A(f"buffer_load_dword {v(18+p)}, v6, {srd(SWS)}, s57 offen offset:128 sc1")
            if p < 7: A(f"s_add_u32 s57, s57, {108*256}")
        A("s_waitcnt vmcnt(0)")
        for p in range(1, 8):
            A(f"v_add_f32 v10, v10, {v(10+p)}"); A(f"v_add_f32 v18, v18, {v(18+p)}")
        for x, dst in ((10, 26), (18, 27)):
            A(f"v_cvt_pk_bf16_f32 v11, {v(x)}, {v(x)}"); A("v_lshlrev_b32 v12, 16, v11")
            A(f"v_sub_f32 v12, {v(x)}, v12")
            A(f"v_cvt_pk_bf16_f32 v12, v12, v12")
            A("v_and_b32 v11, 0xffff, v11"); A(f"v_lshl_or_b32 {v(dst)}, v12, 16, v11")
        A("v_mov_b32 v28, 0"); A("v_mov_b32 v29, 0")
        A("v_lshlrev_b32 v6, 9, v4"); A("v_lshl_add_u32 v6, v5, 4, v6"); A(f"v_add_u32 v6, {self.EXT}, v6")
        A("v_cmp_gt_u32 vcc, 224, v0"); A("s_and_saveexec_b64 s[60:61], vcc")
        A("ds_write_b128 v6, v[26:29]")
        A("s_mov_b64 exec, s[60:61]")
        self.vm4 = []
    def p4_main(self):
        A = self.A
        vm = self.vm4
        def vwait(pred):
            idx = max(i for i, x in enumerate(vm) if pred(x))
            n = len(vm) - 1 - idx
            return min(n, 63)
        self.p4_roles()
        A("v_lshlrev_b32 v2, 4, v1")
        A("v_and_b32 v4, 31, v1"); A("v_lshlrev_b32 v5, 3, v4")
        A("s_lshl_b32 s57, s54, 2"); A(f"s_add_u32 s57, s57, {s(sW)}")
        A("s_lshl_b32 s58, s57, 8"); A(f"s_add_u32 s58, s58, {hex(ST2_OFF)}")
        for c in range(8):
            A(f"buffer_load_dwordx2 {v(10+2*c,2)}, v5, {srd(SWS)}, s58 offen sc1"); vm.append(("st", c))
            if c < 7: A("s_add_u32 s58, s58, 16384")
        A("s_mul_i32 s58, s57, 40960"); A(f"s_add_u32 s58, s58, {hex(X1C_OFF)}")
        for k in range(40):
            A(f"buffer_load_dwordx4 {a(4*k,4)}, v2, {srd(SWS)}, s58 offen sc1"); vm.append(("tok", k))
            if k < 39: A("s_add_u32 s58, s58, 1024")
        A(f"s_waitcnt vmcnt({vwait(lambda x: x[0]=='st')})")
        for c in range(1, 8):
            A(f"v_pk_add_f32 v[10:11], v[10:11], {v(10+2*c,2)}")
        A("v_mul_f32 v10, 0x3acccccd, v10"); A("v_mul_f32 v11, 0x3acccccd, v11")
        A("v_fma_f32 v11, -v10, v10, v11"); A("v_max_f32 v11, 0, v11")
        self.rnd_bf16(11, 11); A("v_add_f32 v11, 0x3727c5ac, v11"); self.rnd_bf16(11, 11)
        A("v_sqrt_f32 v11, v11"); A("s_nop 0")
        A("v_cvt_pk_bf16_f32 v12, v11, v11")
        A("v_lshlrev_b32 v11, 16, v12")
        A("v_rcp_f32 v11, v11")
        A("v_cvt_pk_bf16_f32 v13, -v10, -v10")
        A("v_cmp_gt_u32 vcc, 32, v1")
        A("v_cndmask_b32 v13, 0, v13, vcc"); A("v_cndmask_b32 v12, 0, v12, vcc")
        A("v_mov_b32 v14, 0")
        A("v_accvgpr_write_b32 a160, v13"); A("v_accvgpr_write_b32 a161, v12"); A("v_accvgpr_write_b32 a162, v14"); A("v_accvgpr_write_b32 a163, v14")
        A("v_mul_f32 v176, 0xbfb8aa3b, v11")
        A("v_mul_f32 v177, v11, v11")
        A("v_bfe_u32 v5, v1, 4, 1"); A("v_mul_u32_u24 v5, 55296, v5"); A("v_lshrrev_b32 v6, 5, v1"); A("v_lshl_add_u32 v5, v6, 8, v5")
        A("v_and_b32 v6, 15, v1"); A("v_lshl_add_u32 v178, v6, 4, v5")
        A("s_mul_i32 s72, s57, 110592"); A(f"s_add_u32 s72, s72, {hex(HP_OFF)}")
        A("s_mul_i32 s73, s55, 7")
        A("v_and_b32 v6, 31, v1"); A("v_lshlrev_b32 v6, 4, v6"); A(f"v_add_u32 v179, {self.EXT}, v6")
        A("v_add_u32 v3, 61440, v2")
        seq = self.p4_seq()
        GS, NS = self.P4_GS, self.P4_NS
        ACC = {0: 40, 1: 56, 2: 72, 3: 88, 4: 104, 5: 120, 6: 40}
        WB = 136
        fill = []
        def rd(e):
            slot = e % NS
            ad = "v2" if slot < 60 else "v3"; o = (slot % 60) * 1024
            A(f"ds_read_b128 {v(WB+4*(e&3),4)}, {ad} offset:{o}")
        def epilogue(tl):
            L = []
            b = ACC[tl]; T = 152
            for h in range(0, 8, 2):
                L.append(f"v_pk_mul_f32 {v(T+h,2)}, {v(b+h,2)}, v[176:177] op_sel:[0,0] op_sel_hi:[1,0]")
            for h in range(8): L.append(f"v_exp_f32 {v(T+h)}, {v(T+h)}")
            for h in range(0, 8, 2):
                L.append(f"v_pk_mul_f32 {v(b+h,2)}, {v(b+h,2)}, {v(b+8+h,2)}")
            for h in range(0, 8, 2):
                L.append(f"v_pk_add_f32 {v(T+h,2)}, {v(T+h,2)}, 1.0 op_sel_hi:[1,0]")
            for h in range(0, 8, 2):
                L.append(f"v_pk_mul_f32 {v(b+h,2)}, {v(b+h,2)}, v[176:177] op_sel:[0,1] op_sel_hi:[1,1]")
            for h in range(8): L.append(f"v_rcp_f32 {v(T+h)}, {v(T+h)}")
            L.append("s_nop 0")
            for h in range(0, 8, 2):
                L.append(f"v_pk_mul_f32 {v(b+h,2)}, {v(b+h,2)}, {v(T+h,2)}")
            for k in range(4): L.append(f"v_cvt_pk_bf16_f32 {v(160+k)}, {v(b+2*k)}, {v(b+2*k+1)}")
            L.append(f"s_add_u32 s74, s73, {tl}")
            L.append("s_lshl_b32 s75, s74, 9")
            L.append("s_add_u32 s75, s75, s72")
            L.append("s_cmp_lt_u32 s74, 108")
            L.append("s_cselect_b32 s75, s75, 0x7000000")
            L.append(("STORE", f"buffer_store_dwordx4 v[160:163], v178, {srd(SWS)}, s75 offen sc1"))
            return L
        def emit_fill(n):
            while n > 0 and fill:
                x = fill.pop(0)
                if isinstance(x, tuple): A(x[1]); vm.append(("hst", 0))
                else: A(x)
                n -= 1
        inter = self.o.get("p4_inter", 1)
        ng = 280 // GS
        PD = NS // GS - 1
        done_tiles = []
        for g in range(ng):
            if g >= NS // GS:
                A(f"s_waitcnt vmcnt({vwait(lambda x: x == ('dma', g))})")
            A("s_barrier")
            if self.o.get("ts") == 4: self.stamp(20 + g)
            if g >= 1: self.p4_dma_group(g + PD, vm)
            if self.o.get("ts") == 4 and g in (3, 9): self.stamp(40 + g)
            es = list(range(g * GS, (g + 1) * GS))
            rd(es[0]); rd(es[1])
            for idx, e in enumerate(es):
                tl, k = seq[e]
                if idx + 2 < GS: rd(es[idx + 2]); lg = 2
                else: lg = GS - 1 - idx
                w = f"lgkmcnt({lg})"
                if e < 160 and tl == 0:
                    w = f"vmcnt({vwait(lambda x: x == ('tok', k))}) " + w
                A(f"s_waitcnt {w}")
                d = v(ACC[tl], 16)
                A(f"v_mfma_f32_32x32x16_bf16 {d}, {v(WB+4*(e&3),4)}, {a(4*k,4)}, {'0' if k == 0 else d}")
                if inter: emit_fill(2)
                if k == 39 and (e in (159, 239, 279)):
                    tiles = {159: (0, 1, 2, 3), 239: (4, 5), 279: (6,)}[e]
                    emit_fill(10000)
                    for t2 in tiles:
                        A(f"ds_read_b128 {v(164+4*(t2&1),4)}, v179 offset:{t2*512}")
                        A("s_waitcnt lgkmcnt(0)")
                        d = v(ACC[t2], 16)
                        A(f"v_mfma_f32_32x32x16_bf16 {d}, {v(164+4*(t2&1),4)}, a[160:163], {d}")
                    for t2 in tiles: fill += epilogue(t2)
                    if not inter or e == 279: emit_fill(10000)

    P5_NG = 6
    def p5_dma_group(self, g, vm):
        A = self.A
        if g >= 14: return
        base = (g % self.P5_NG) * 20480
        A(f"s_add_u32 m0, s71, {base}")
        for ct in range(4):
            A(f"buffer_load_dwordx4 v2, {srd(SWS)}, s68 offen offset:{ct*1024} sc1 lds"); vm.append(("dma", g))
        A(f"s_add_u32 m0, s71, {base + 4096}")
        A("s_add_u32 s69, s68, 4096")
        A(f"buffer_load_dwordx4 v2, {srd(SWS)}, s69 offen sc1 lds"); vm.append(("dma", g))
        A(f"s_add_u32 s68, s68, {2*5120}")
    def p5_h_group(self, g, vm):
        A = self.A
        for sp in range(2):
            sg = 2 * g + sp
            if sg >= 27: return
            for tt in range(2):
                A(f"buffer_load_dwordx4 {a(8*sg+4*tt,4)}, v2, {srd(SWS)}, {s(72+tt)} offen sc1"); vm.append(("h", sg))
                A(f"s_add_u32 {s(72+tt)}, {s(72+tt)}, 1024")
    def p5_pre(self):
        A = self.A
        self.p35_roles()
        self.vm5 = []
        A("v_lshlrev_b32 v2, 4, v1")
        A(f"s_and_b32 s56, {s(sW)}, 1"); A("s_mul_i32 s56, s56, 27"); A(f"s_lshr_b32 s57, {s(sW)}, 1"); A("s_add_u32 s56, s56, s57")
        A("s_mul_i32 s57, s55, 54"); A("s_add_u32 s56, s56, s57"); A("s_mul_i32 s68, s56, 5120"); A(f"s_add_u32 s68, s68, {hex(W2P_OFF)}")
        A(f"s_mul_i32 s71, {s(sW)}, 5120")
        for g in range(self.P5_NG): self.p5_dma_group(g, self.vm5)
        A("v_lshrrev_b32 v5, 4, v1"); A("v_lshlrev_b32 v7, 4, v5")
        A("s_mul_i32 s56, s55, 320"); A(f"s_add_u32 s57, s56, {hex(GB_OFF)}")
        for dt in range(5):
            A(f"buffer_load_dwordx4 {v(160+4*dt,4)}, v7, {srd(SWS)}, s57 offen offset:{64*dt} sc1")
        self.vm5 = []
    def p5_main(self):
        A = self.A
        vm = self.vm5
        def vwait(pred):
            idx = max(i for i, x in enumerate(vm) if pred(x))
            return min(len(vm) - 1 - idx, 63)
        self.p35_roles()
        A("v_lshlrev_b32 v2, 4, v1")
        A(f"s_lshr_b32 s56, {s(sW)}, 1"); A("s_lshl_b32 s56, s56, 1"); A("s_lshl_b32 s57, s54, 2"); A("s_add_u32 s56, s56, s57"); A("s_mul_i32 s56, s56, 55296")
        A(f"s_and_b32 s57, {s(sW)}, 1"); A("s_mul_i32 s58, s57, 27648"); A("s_add_u32 s56, s56, s58"); A(f"s_add_u32 s72, s56, {hex(HP_OFF)}")
        A("s_add_u32 s73, s72, 55296")
        A("s_mul_i32 s58, s57, 5120"); A("v_add_u32 v3, s58, v2"); A("v_add_u32 v4, 61440, v3")
        NG = self.P5_NG
        PH = 5
        for g in range(PH): self.p5_h_group(g, vm)
        def rd(sg):
            g, sp = divmod(sg, 2)
            o = (g % NG) * 20480 + sp * 10240
            ad = "v3"
            if o >= 61440: ad = "v4"; o -= 61440
            for ct in range(5):
                A(f"ds_read_b128 {v(100+20*(sg&1)+4*ct,4)}, {ad} offset:{o+ct*1024}")
        for g in range(14):
            if g >= NG: A(f"s_waitcnt vmcnt({vwait(lambda x: x == ('dma', g))})")
            A("s_barrier")
            if self.o.get("ts") == 5: self.stamp(20 + g)
            if g >= 1: self.p5_dma_group(g + NG - 1, vm)
            self.p5_h_group(g + PH, vm)
            steps = [sg for sg in (2 * g, 2 * g + 1) if sg < 27]
            rd(steps[0])
            for idx, sg in enumerate(steps):
                if idx + 1 < len(steps): rd(steps[idx + 1]); lg = 5
                else: lg = 0
                A(f"s_waitcnt vmcnt({vwait(lambda x: x == ('h', sg))}) lgkmcnt({lg})")
                for ct in range(5):
                    for tt in range(2):
                        d = v(40 + 8 * ct + 4 * tt, 4)
                        A(f"v_mfma_f32_16x16x32_bf16 {d}, {v(100+20*(sg&1)+4*ct,4)}, {a(8*sg+4*tt,4)}, {'0' if sg == 0 else d}")
        A("s_barrier")
        A(f"s_mul_i32 s56, {s(sW)}, 5120"); A("v_add_u32 v5, s56, v2")
        A(f"s_xor_b32 s57, {s(sW)}, 1"); A("s_mul_i32 s57, s57, 5120"); A("v_add_u32 v6, s57, v2")
        A(f"s_and_b32 s58, {s(sW)}, 1"); A("s_cmp_eq_u32 s58, 0"); A("s_cbranch_scc0 L_p5_kh1")
        for ct in range(5): A(f"ds_write_b128 v5, {v(44+8*ct,4)} offset:{ct*1024}")
        for ct in range(5):
            for r in range(4): A(f"v_mov_b32 {v(100+4*ct+r)}, {v(40+8*ct+r)}")
        A("s_branch L_p5_c")
        A.label("L_p5_kh1")
        for ct in range(5): A(f"ds_write_b128 v5, {v(40+8*ct,4)} offset:{ct*1024}")
        for ct in range(5):
            for r in range(4): A(f"v_mov_b32 {v(100+4*ct+r)}, {v(44+8*ct+r)}")
        A.label("L_p5_c")
        A("s_waitcnt lgkmcnt(0)"); A("s_barrier")
        for ct in range(5): A(f"ds_read_b128 {v(120+4*ct,4)}, v6 offset:{ct*1024}")
        A("s_waitcnt vmcnt(0) lgkmcnt(0)")
        X1 = self.X1
        for k in range(10):
            A(f"v_pk_add_f32 {v(100+2*k,2)}, {v(100+2*k,2)}, {v(120+2*k,2)}")
            A(f"v_pk_fma_f32 {v(100+2*k,2)}, {v(100+2*k,2)}, {v(160+2*k,2)}, {v(X1+2*k,2)}")
        for dt in range(5):
            A(f"v_cvt_pk_bf16_f32 {v(60+2*dt)}, {v(100+4*dt)}, {v(101+4*dt)}")
            A(f"v_cvt_pk_bf16_f32 {v(61+2*dt)}, {v(102+4*dt)}, {v(103+4*dt)}")
        for p in range(2):
            A(f"v_permlane16_swap_b32 {v(60+4*p)}, {v(62+4*p)}")
            A(f"v_permlane16_swap_b32 {v(61+4*p)}, {v(63+4*p)}")
        A("v_and_b32 v4, 15, v1"); A("v_lshrrev_b32 v5, 4, v1")
        A("v_mul_u32_u24 v6, 0xa000, v4")
        A("v_and_b32 v7, 1, v5"); A("v_lshl_add_u32 v8, v7, 5, v6"); A("v_lshrrev_b32 v7, 1, v5"); A("v_lshl_add_u32 v8, v7, 4, v8")
        A("v_lshl_add_u32 v9, v5, 3, v6")
        A(f"s_lshl_b32 s56, {s(sW)}, 9"); A("s_add_u32 s56, s56, s54"); A("s_mul_i32 s56, s56, 1280"); A("s_mul_i32 s57, s55, 160"); A("s_add_u32 s56, s56, s57")
        A(f"buffer_store_dwordx4 v[60:63], v8, {srd(SOUT)}, s56 offen")
        A(f"buffer_store_dwordx4 v[64:67], v8, {srd(SOUT)}, s56 offen offset:64")
        A(f"buffer_store_dwordx2 v[68:69], v9, {srd(SOUT)}, s56 offen offset:128")

    def build(self):
        A = self.A
        self.prologue()
        if self.o.get("ts"): A("v_mov_b32 v252, 0")
        self.stamp(63, real=True); self.stamp(0)
        self.p1()
        self.stamp(1)
        if not self.end_if_stop(1):
            self.gbar_arrive(0); self.stamp(2)
            self.repack13(); self.stamp(3)
            self.repack2(); self.stamp(4)
            self.p2_pre(); self.stamp(5)
            self.gbar_wait(0); self.stamp(6)
            self.p2_main(); self.stamp(7)
            if not self.end_if_stop(2):
                self.rest()
        self.ts_flush()
        A.label("L_end")
        A("s_endpgm")
        return self.text()
    def rest(self):
        st = self.stamp
        self.gbar_arrive(1); st(8); self.p3_pre(); st(9); self.gbar_wait(1); st(10); self.p3_main(); st(11)
        if self.end_if_stop(3): return
        self.gbar_arrive(2); st(12); self.p4_pre(); st(13); self.gbar_wait(2); st(14); self.p4_main(); st(15)
        if self.end_if_stop(4): return
        self.gbar_arrive(3); st(16); self.p5_pre(); st(17); self.gbar_wait(3); st(18); self.p5_main(); st(19)
    def text(self):
        hdr = open("adaLN_cond__spectral_gfnet__glu_gated_swiglu__prompt.s.ref").read().split("\n")
        com = [l for l in hdr if l.startswith(";") and "@launch" not in l and "Override launch" not in l and "grid=ceil" not in l][:14]
        out = com + [f"; @launch grid=(256,1,1) block=(256,1,1) lds={LDS_BYTES}",
                     '.amdgcn_target "amdgcn-amd-amdhsa--gfx950"', ".text", f".globl {KNAME}", ".p2align 8", f".type {KNAME},@function", f"{KNAME}:"]
        body = self.A.finalize(verbose=False)
        tail = ['.section .rodata,"a"', ".p2align 6", f".amdhsa_kernel {KNAME}", "  .amdhsa_next_free_vgpr 512", "  .amdhsa_next_free_sgpr 102",
                "  .amdhsa_accum_offset 256", "  .amdhsa_group_segment_fixed_size 0", "  .amdhsa_kernarg_size 96", "  .amdhsa_user_sgpr_count 2",
                "  .amdhsa_user_sgpr_kernarg_segment_ptr 1", "  .amdhsa_system_sgpr_workgroup_id_x 1", ".end_amdhsa_kernel"]
        return "\n".join(out) + "\n" + body + "\n".join(tail) + "\n"

if __name__ == "__main__":
    out = sys.argv[1]; stop = int(sys.argv[2]) if len(sys.argv) > 2 else 99
    opts = {}
    for kv in sys.argv[3:]:
        k, _, val = kv.partition("=")
        opts[k] = int(val) if val.lstrip("-").isdigit() else (val or 1)
    open(out, "w").write(Gen(stop, opts).build())
```

```python
import sys, math
sys.path.insert(0, "dev")
from asmlib import Asm, v, a, s
import gen1
from gen1 import (KNAME, T0_OFF, FP_OFF, GP_OFF, SAP_OFF, GA_OFF, GB_OFF, CB1F_OFF, CB1B_OFF, SBB_OFF, A3_OFF, W13_OFF, W2P_OFF,
                  UVP_OFF, X1C_OFF, ST2_OFF, HP_OFF, sWG, sW, SX, SWR, SWI, SW1, SW3, SW2, SC, SWM, SOUT, SDBG, SWS, srd, INV640, LDS_BYTES)
BAR_OFF = 0x1700000
F13_OFF = 0x1710000
F2_OFF  = 0x1712000
S3_OFF  = 0x1714000
S4_OFF  = 0x1718000
SYNC_BYTES = 0x20000
TS_OFF  = 0x1740000
WS_END  = 0x1780000
gen1.TS_OFF = TS_OFF
gen1.WS_END = WS_END
POLL_MAX = 100000
sU, sCH, sQB, sOFF1, sOFF2, sI, sXC, sRET = 90, 91, 92, 93, 94, 95, 96, 97

import struct
def f2u(x): return struct.unpack("<I", struct.pack("<f", x))[0]

class VM:
    def __init__(self): self.q = []
    def add(self, tag): self.q.append(tag)
    def wait(self, pred):
        idx = max(i for i, x in enumerate(self.q) if (pred(x) if callable(pred) else x == pred))
        return min(len(self.q) - 1 - idx, 63)

class Gen(gen1.Gen):
    STG13 = 107520
    STG2 = 128000
    XB = 147456
    def ts(self, mode, k):
        if self.o.get("ts") == mode: self.stamp(k)
    def srd_build(self, which):
        A = self.A
        tab = {SX: (64, 2048 * 1280), SWR: (66, 2048 * 642), SWI: (68, 2048 * 642), SW1: (72, 640 * 3456), SW3: (74, 640 * 3456),
               SW2: (76, 1728 * 1280), SC: (78, 1280), SWM: (80, 640 * 7680), SOUT: (82, 2048 * 1280), SDBG: (84, 256), SWS: (86, WS_END)}
        for b in which:
            p, n = tab[b]
            A(f"s_mov_b32 {s(b)}, {s(p)}"); A(f"s_mov_b32 {s(b+1)}, {s(p+1)}")
            A(f"s_mov_b32 {s(b+2)}, {hex(n)}"); A(f"s_mov_b32 {s(b+3)}, 0x00020000")
    ALL_SRD = [SX, SWR, SWI, SW1, SW3, SW2, SC, SWM, SOUT, SDBG, SWS]
    def prologue(self):
        A = self.A
        A("s_cmp_ge_u32 s2, 256")
        A("s_cbranch_scc1 L_end")
        if self.o.get("ts") == 7:
            A("s_memtime s[98:99]")
        A("s_load_dwordx16 s[64:79], s[0:1], 0")
        A("s_load_dwordx8 s[80:87], s[0:1], 64")
        A("v_lshrrev_b32 v1, 6, v0")
        A(f"s_and_b32 {s(sXC)}, s2, 7")
        A(f"v_readfirstlane_b32 {s(sW)}, v1")
        A("v_and_b32 v1, 63, v0")
        A(f"s_lshr_b32 {s(sI)}, s2, 3")
        A(f"s_mul_i32 s54, {s(sI)}, 37"); A("s_lshr_b32 s54, s54, 8")
        A("s_mul_i32 s55, s54, 7"); A(f"s_sub_u32 {s(sCH)}, {s(sI)}, s55")
        A("s_lshl_b32 s54, s54, 3"); A(f"s_add_u32 {s(sU)}, s54, {s(sXC)}")
        A(f"s_mul_i32 s56, {s(sCH)}, 3"); A(f"s_add_u32 {s(sQB)}, s56, {s(sW)}")
        A(f"s_mov_b32 {s(sOFF1)}, {s(sU)}")
        A(f"s_sub_u32 {s(sOFF2)}, 2048, {s(sU)}"); A(f"s_cmp_eq_u32 {s(sU)}, 0"); A(f"s_cselect_b32 {s(sOFF2)}, 32, {s(sOFF2)}")
    def wave0_begin(self):
        lab = self.A.newlabel("L_nw0")
        self.A(f"s_cmp_lg_u32 {s(sW)}, 0"); self.A(f"s_cbranch_scc1 {lab}")
        return lab
    def poll(self, vaddr, soff, expect, vt=2, off=0):
        A = self.A
        lp = A.newlabel("L_poll"); ex = A.newlabel("L_pexit")
        A("s_mov_b32 s49, 0")
        A.label(lp)
        A("s_add_u32 s49, s49, 1"); A(f"s_cmp_gt_u32 s49, {POLL_MAX}"); A(f"s_cbranch_scc1 {ex}")
        o = f" offset:{off}" if off else ""
        A(f"buffer_load_dword {v(vt)}, {v(vaddr)}, {srd(SWS)}, {soff} offen{o} sc1")
        A("s_waitcnt vmcnt(0)")
        A(f"v_cmp_gt_u32 vcc, {expect}, {v(vt)}")
        A(f"s_cbranch_vccz {ex}")
        A(f"s_branch {lp}")
        A.label(ex)
    def gb_arrive(self, idx):
        A = self.A
        A("s_lshr_b32 s48, s2, 4"); A("s_lshl_b32 s48, s48, 8"); A(f"s_add_u32 s48, s48, {hex(BAR_OFF + idx * 0x8000)}")
        A("v_lshlrev_b32 v3, 12, v1"); A("v_mov_b32 v2, 1")
        A("s_mov_b64 s[50:51], exec"); A("s_mov_b64 exec, 0xff")
        A(f"buffer_atomic_add v2, v3, {srd(SWS)}, s48 offen sc1")
        A("s_mov_b64 exec, s[50:51]")
    def gb_wait(self, idx):
        A = self.A
        lab = self.wave0_begin()
        A("v_and_b32 v3, 15, v1"); A("v_lshlrev_b32 v3, 8, v3")
        A(f"s_lshl_b32 s48, {s(sXC)}, 12"); A(f"s_add_u32 s48, s48, {hex(BAR_OFF + idx * 0x8000)}")
        self.poll(3, "s48", 16)
        A.label(lab)
        A("s_waitcnt vmcnt(0)")
        A("s_barrier")
    def atomic_inc_lane0(self, soff, vt=(2, 3)):
        A = self.A
        A(f"v_mov_b32 {v(vt[0])}, 1"); A(f"v_mov_b32 {v(vt[1])}, 0")
        A("s_mov_b64 s[50:51], exec"); A("s_mov_b64 exec, 1")
        A(f"buffer_atomic_add {v(vt[0])}, {v(vt[1])}, {srd(SWS)}, {soff} offen sc1")
        A("s_mov_b64 exec, s[50:51]")
    def flag_store_lane0(self, soff, vt=(2, 3)):
        A = self.A
        A(f"v_mov_b32 {v(vt[0])}, 1"); A(f"v_mov_b32 {v(vt[1])}, 0")
        A("s_mov_b64 s[50:51], exec"); A("s_mov_b64 exec, 1")
        A(f"buffer_store_dword {v(vt[0])}, {v(vt[1])}, {srd(SWS)}, {soff} offen sc1")
        A("s_mov_b64 exec, s[50:51]")

    def p1(self):
        A = self.A
        A(f"s_cmp_ge_u32 {s(sI)}, 16")
        A("s_cbranch_scc1 L_p1_gemv")
        self.p1_fft()
        A("s_branch L_arr1")
        A.label("L_p1_gemv")
        A(f"s_lshl_b32 s54, {s(sXC)}, 4"); A(f"s_add_u32 s54, s54, {s(sI)}"); A("s_sub_u32 s54, s54, 16")
        A("s_waitcnt lgkmcnt(0)")
        self.stamp0()
        self.srd_build(self.ALL_SRD)
        A("s_cmp_ge_u32 s54, 120")
        A("s_cbranch_scc1 L_p1_idle")
        self.p1_gemv()
        A.label("L_p1_idle")
        A("s_sub_u32 s55, s54, 120"); A("s_lshl_b32 s55, s55, 14"); A(f"s_lshl_b32 s56, {s(sW)}, 12"); A("s_add_u32 s55, s55, s56")
        A(f"s_add_u32 s55, s55, {hex(BAR_OFF)}")
        A("v_lshlrev_b32 v2, 4, v1")
        for k in range(4): A(f"v_mov_b32 {v(4+k)}, 0")
        for k in range(4): A(f"buffer_store_dwordx4 v[4:7], v2, {srd(SWS)}, s55 offen offset:{1024*k} sc1")
        A("s_waitcnt vmcnt(0)"); A("s_barrier")
        lab = self.wave0_begin()
        A("v_mov_b32 v2, 1"); A("v_mov_b32 v3, 0")
        A("s_mov_b64 s[50:51], exec"); A("s_mov_b64 exec, 1")
        A(f"buffer_atomic_add v2, v3, {srd(SDBG)}, 0 offen sc1")
        A("s_mov_b64 exec, s[50:51]")
        A.label(lab)
        A(f"s_mov_b32 {s(sRET)}, 2"); A("s_branch L_consts")
    def stamp0(self):
        if self.o.get("ts"):
            self.A("v_mov_b32 v252, 0"); self.stamp(63, real=True); self.stamp(0)
            if self.o.get("ts") == 7: self.A("v_writelane_b32 v252, s98, 55")

    def p2_consts(self):
        A = self.A
        A.label("L_consts")
        A(f"s_cmp_ge_u32 {s(sI)}, 28"); A("s_cbranch_scc1 L_consts_end")
        A(f"s_cmp_eq_u32 {s(sW)}, 3"); A("s_cbranch_scc1 L_consts_end")
        A("v_and_b32 v4, 15, v1"); A("v_lshrrev_b32 v5, 4, v1")
        A("v_lshlrev_b32 v6, 2, v5"); A("v_cvt_f32_u32 v6, v6"); A("v_mul_f32 v6, 0x3a000000, v6")
        for jj in range(8):
            o = 16 * (jj >> 2) + (jj & 3)
            if o == 0: A("v_mov_b32 v10, v6")
            else: A(f"v_add_f32 {v(10+jj)}, {hex(f2u(o / 2048.0))}, v6")
        A("v_cvt_f32_u32 v7, v4"); A("v_add_f32 v8, 0x41800000, v7")
        A(f"v_cvt_f32_u32 v9, {s(sOFF1)}"); A(f"v_cvt_f32_u32 v18, {s(sOFF2)}")
        A("s_mov_b32 s60, 0x42800000")
        for inv in range(2):
            for sg in range(2):
                offf = 9 if sg == 0 else 18
                if inv == 1:
                    A(f"v_mul_f32 v19, 0x3a000000, {v(offf)}")
                    for jj in range(8): A(f"v_fma_f32 {v(38+jj)}, {v(10+jj)}, s60, v19")
                for tl in range(2):
                    base = 160 + 32 * inv + 16 * sg + 8 * tl
                    if inv == 0:
                        A(f"v_fma_f32 v19, {v(7+tl)}, s60, {v(offf)}")
                        for jj in range(8): A(f"v_mul_f32 {v(20+jj)}, v19, {v(10+jj)}")
                    else:
                        for jj in range(8): A(f"v_mul_f32 {v(20+jj)}, {v(38+jj)}, {v(7+tl)}")
                    for jj in range(8):
                        A(f"v_sin_f32 {v(28+jj)}, {v(20+jj)}")
                    for jj in range(8):
                        A(f"v_cos_f32 {v(20+jj)}, {v(20+jj)}")
                    for k in range(4):
                        A(f"v_cvt_pk_bf16_f32 v36, {v(20+2*k)}, {v(21+2*k)}")
                        A(f"v_cvt_pk_bf16_f32 v37, {v(28+2*k)}, {v(29+2*k)}")
                        A(f"v_accvgpr_write_b32 {a(base+k)}, v36"); A(f"v_accvgpr_write_b32 {a(base+4+k)}, v37")
        A.label("L_consts_end")
        A(f"s_cmp_eq_u32 {s(sRET)}, 1"); A("s_cbranch_scc1 L_gv_loads")
        A(f"s_cmp_eq_u32 {s(sRET)}, 2"); A("s_cbranch_scc1 L_arr1")

    def p1_fft(self):
        A = self.A
        A(f"s_lshr_b32 s54, {s(sI)}, 2"); A("s_lshl_b32 s54, s54, 3"); A(f"s_add_u32 s54, s54, {s(sXC)}")
        A(f"s_and_b32 s55, {s(sI)}, 3")
        for n in range(5):
            A(f"v_add_u32 v12, {64*n}, v1")
            A("v_mul_u32_u24 v13, 0xcccd, v12"); A("v_lshrrev_b32 v13, 22, v13")
            A("v_mul_u32_u24 v14, 80, v13"); A("v_sub_u32 v14, v12, v14")
            A("v_lshlrev_b32 v15, 1, v13"); A("v_xor_b32 v14, v14, v15")
            A("v_mul_u32_u24 v13, 0xa000, v13")
            A(f"v_lshl_add_u32 {v(2+n)}, v14, 4, v13")
            A("v_xor_b32 v14, 8, v14")
            A(f"v_lshl_add_u32 {v(7+n)}, v14, 4, v13")
        A("s_mul_i32 s56, s54, 1280"); A(f"s_mul_i32 s57, {s(sW)}, {16*40960}"); A("s_add_u32 s56, s56, s57")
        A(f"s_mul_i32 s57, {s(sW)}, {16*1280}")
        A("s_waitcnt lgkmcnt(0)")
        self.stamp0()
        self.srd_build([SX])
        for G in range(4):
            for n in range(5):
                A(f"s_add_u32 m0, s57, {G*4*1280 + n*1024}")
                vo = (7 + n) if G >= 2 else (2 + n)
                A(f"buffer_load_dwordx4 {v(vo)}, {srd(SX)}, s56 offen lds")
            if G < 3: A(f"s_add_u32 s56, s56, {4*40960}")
            self.ts(7, 50 + G)
        self.srd_build([b for b in self.ALL_SRD if b != SX])
        self.ts(7, 54)
        self.ts(6, 30)
        A(f"s_mov_b32 {s(sRET)}, 0")
        self.p2_consts()
        A("v_and_b32 v12, 15, v1")
        A("v_lshrrev_b32 v13, 4, v1")
        A(f"s_lshl_b32 s58, {s(sW)}, 4")
        A("v_add_u32 v14, s58, v12")
        A("v_cmp_lt_u32 vcc, 32, v14")
        A("v_subrev_u32 v15, 32, v14")
        A("v_cndmask_b32 v15, v14, v15, vcc")
        A("v_mov_b32 v16, 0"); A("v_mov_b32 v17, 0x3e800000")
        A("v_cndmask_b32 v16, v16, v17, vcc")
        A("v_cvt_f32_u32 v15, v15"); A("v_mul_f32 v15, 0x3c800000, v15")
        A("v_lshlrev_b32 v17, 3, v13"); A("v_cvt_f32_u32 v17, v17")
        A("v_fma_f32 v16, v15, v17, v16")
        for u in range(2):
            for jj in range(8):
                k = 32 * u + jj
                if k == 0: A(f"v_cos_f32 v20, v16")
                else:
                    A(f"v_fmamk_f32 v18, v15, {hex(f2u(float(k)))}, v16")
                    A(f"v_cos_f32 {v(20+8*u+jj)}, v18")
        A("v_and_b32 v14, 3, v12"); A("v_lshlrev_b32 v14, 1, v14"); A("v_and_b32 v15, 8, v12"); A("v_or_b32 v14, v14, v15")
        A("v_add_u32 v15, s58, v12"); A("v_mul_u32_u24 v15, 1280, v15")
        for t in range(4):
            A(f"v_add_u32 v16, {4*t}, v13"); A("v_xor_b32 v16, v16, v14")
            A(f"v_lshl_add_u32 {v(36+t)}, v16, 4, v15")
        A("v_mov_b32 v112, 0x3f803f80"); A("v_mov_b32 v113, v112"); A("v_mov_b32 v114, v112"); A("v_mov_b32 v115, v112")
        self.ts(6, 31); self.ts(7, 31)
        A("s_waitcnt vmcnt(0)")
        self.ts(6, 32); self.ts(7, 32)
        self.p1_fft_rest()
    def p1_fft_rest(self):
        A = self.A
        for t in range(20):
            A(f"ds_read_b128 {v(120+4*t,4)}, {v(36+(t&3))} offset:{(t>>2)*256}")
            if t >= 10:
                tt = t - 10
                A("s_waitcnt lgkmcnt(10)")
                self.stat_mfma(tt)
        for tt in range(10, 20):
            A(f"s_waitcnt lgkmcnt({19-tt})")
            self.stat_mfma(tt)
        A("v_and_b32 v14, 3, v12")
        A("v_cmp_eq_u32 s[60:61], 1, v14"); A("v_cmp_eq_u32 s[62:63], 2, v14"); A("v_cmp_eq_u32 s[64:65], 3, v14")
        for b in (40, 44):
            A(f"v_cndmask_b32 {v(b)}, {v(b)}, {v(b+1)}, s[60:61]")
            A(f"v_cndmask_b32 {v(b)}, {v(b)}, {v(b+2)}, s[62:63]")
            A(f"v_cndmask_b32 {v(b)}, {v(b)}, {v(b+3)}, s[64:65]")
        A(f"v_mul_f32 v44, {hex(0x3acccccd)}, v44")
        A(f"v_mul_f32 v40, {hex(0x3acccccd)}, v40")
        A("v_fma_f32 v40, -v44, v44, v40")
        A("v_max_f32 v40, 0, v40")
        self.rnd_bf16(40, 40)
        A("v_add_f32 v40, 0x3727c5ac, v40")
        self.rnd_bf16(40, 40)
        A("v_sqrt_f32 v40, v40")
        self.rnd_bf16(40, 40)
        A("v_rcp_f32 v40, v40")
        A("v_cvt_pk_bf16_f32 v44, -v44, -v44")
        A("v_add_u32 v15, s58, v12")
        A("v_lshrrev_b32 v14, 2, v12")
        A("v_cmp_eq_u32 vcc, v14, v13")
        A("v_lshlrev_b32 v16, 2, v15"); A("v_lshlrev_b32 v17, 1, v15")
        LR = 81920; LM = 81920 + 256
        A("s_and_saveexec_b64 s[60:61], vcc")
        A(f"ds_write_b32 v16, v40 offset:0")
        self.A.lines.pop()
        A(f"v_add_u32 v16, {LR}, v16"); A(f"v_add_u32 v17, {LM}, v17")
        A("ds_write_b32 v16, v40")
        A("ds_write_b16 v17, v44")
        A("s_mov_b64 exec, s[60:61]")
        A("s_waitcnt lgkmcnt(0)")
        A("s_barrier")
        self.ts(6, 33)
        A("v_lshlrev_b32 v14, 5, v13"); A(f"v_add_u32 v14, {LR}, v14")
        A("v_lshlrev_b32 v15, 4, v13"); A(f"v_add_u32 v15, {LM}, v15")
        for u in range(2):
            A(f"ds_read_b128 {v(48+8*u,4)}, v14 offset:{128*u}")
            A(f"ds_read_b128 {v(52+8*u,4)}, v14 offset:{128*u+16}")
            A(f"ds_read_b128 {v(64+4*u,4)}, v15 offset:{64*u}")
        A("v_lshrrev_b32 v16, 2, v12")
        A("v_and_b32 v17, 3, v12")
        A("v_lshl_add_u32 v18, v13, 3, v16")
        A("v_mul_u32_u24 v18, 1280, v18")
        A("v_and_b32 v19, 1, v13"); A("v_lshl_or_b32 v19, v19, 2, v16")
        A("v_lshl_add_u32 v18, v19, 5, v18")
        A("v_lshl_add_u32 v72, v17, 3, v18")
        A("s_waitcnt lgkmcnt(0)")
        for k in range(8):
            A(f"v_pk_mul_f32 {v(48+2*k,2)}, {v(48+2*k,2)}, {v(20+2*k,2)}")
        for k in range(8):
            A(f"v_cvt_pk_bf16_f32 {v(76+k)}, {v(48+2*k)}, {v(49+2*k)}")
        A(f"v_mfma_f32_16x16x32_bf16 v[84:87], v[64:67], v[76:79], 0")
        A(f"v_mfma_f32_16x16x32_bf16 v[84:87], v[68:71], v[80:83], v[84:87]")
        A("s_mul_i32 s59, s55, 10")
        for dt in range(10):
            A(f"s_add_u32 s60, s59, {dt}")
            A("s_and_b32 s61, s60, 7"); A("s_lshl_b32 s61, s61, 5")
            A("s_lshr_b32 s62, s60, 3"); A("s_lshl_b32 s62, s62, 8")
            A("v_xor_b32 v73, s61, v72"); A("v_add_u32 v73, s62, v73")
            for u in range(2):
                for h in range(2):
                    A(f"ds_read_b64_tr_b16 {v(120+8*dt+4*u+2*h,2)}, v73 offset:{u*32*1280 + h*4*1280}")
            if dt >= 2:
                A("s_waitcnt lgkmcnt(8)")
                self.fft_mfma(dt - 2)
        A("s_waitcnt lgkmcnt(4)"); self.fft_mfma(8)
        A("s_waitcnt lgkmcnt(0)"); self.fft_mfma(9)
        self.ts(6, 34)
        A("s_lshr_b32 s60, s54, 2"); A("s_and_b32 s60, s60, 3")
        A("s_lshr_b32 s61, s60, 1"); A("s_xor_b32 s62, s60, s61"); A("s_and_b32 s62, s62, 1"); A("s_lshl_b32 s62, s62, 1"); A("s_or_b32 s61, s61, s62")
        A("v_xor_b32 v14, s61, v13")
        A("v_add_u32 v15, s58, v12"); A("v_mul_u32_u24 v15, 0xa000, v15")
        A("v_lshl_add_u32 v15, v14, 4, v15")
        A("s_mul_i32 s60, s55, 5"); A("s_lshl_b32 s60, s60, 11"); A("s_lshl_b32 s61, s54, 6"); A("s_add_u32 s60, s60, s61")
        if T0_OFF: A(f"s_add_u32 s60, s60, {hex(T0_OFF)}")
        for tt in range(5):
            d0 = 200 + 8 * tt
            p = 88 + 4 * tt
            for k in range(4):
                A(f"v_cvt_pk_bf16_f32 {v(p+k)}, {v(d0+2*k)}, {v(d0+2*k+1)}")
            A(f"buffer_store_dwordx4 {v(p,4)}, v15, {srd(SWS)}, s60 offen sc1")
            if tt < 4: A("s_add_u32 s60, s60, 2048")

    def p1_gemv(self):
        A = self.A
        A("s_mul_i32 s55, s54, 205"); A("s_lshr_b32 s55, s55, 12")
        A("s_mul_i32 s56, s55, 20"); A("s_sub_u32 s56, s54, s56")
        A("s_cmp_le_u32 s55, 1"); A("s_cbranch_scc1 L_gv_loads")
        A("s_cmp_eq_u32 s55, 2"); A("s_cbranch_scc0 L_gv_nog")
        self.g_gen()
        A.label("L_gv_nog")
        A(f"s_mov_b32 {s(sRET)}, 1"); A("s_branch L_consts")
        A.label("L_gv_loads")
        self.ts(7, 39)
        A("v_and_b32 v2, 3, v1"); A("v_lshrrev_b32 v3, 2, v1")
        A(f"s_mul_i32 s57, {s(sW)}, 160")
        A("v_add_u32 v4, s57, v3")
        A("v_mul_u32_u24 v5, 7680, v4"); A("v_lshl_add_u32 v5, v2, 4, v5")
        A("v_lshlrev_b32 v6, 1, v4")
        A("s_lshl_b32 s58, s54, 6")
        for n in range(10):
            A(f"buffer_load_dwordx4 {v(20+4*n,4)}, v5, {srd(SWM)}, s58 offen")
            if n < 9: A(f"s_add_u32 s58, s58, {16*7680}")
        for n in range(10):
            A(f"buffer_load_ushort {v(10+n)}, v6, {srd(SC)}, 0 offen offset:{32*n}")
        self.ts(6, 40); self.ts(7, 40)
        A("s_cmp_le_u32 s55, 1"); A("s_cbranch_scc0 L_gv_pre_done")
        self.trig_states()
        A.label("L_gv_pre_done")
        self.ts(6, 41)
        A("s_waitcnt vmcnt(0)")
        self.ts(6, 42)
        for n in range(10):
            x = 10 + n
            A(f"v_lshlrev_b32 {v(x)}, 16, {v(x)}")
            A(f"v_mul_f32 v7, 0xbfb8aa3b, {v(x)}")
            A("v_exp_f32 v7, v7")
            A("v_add_f32 v7, 1.0, v7")
            A("v_rcp_f32 v7, v7")
            A(f"v_mul_f32 {v(x)}, {v(x)}, v7")
            self.rnd_bf16(x, x)
        for q in range(8): A(f"v_mov_b32 {v(60+q)}, 0")
        for n in range(10):
            for q in range(4):
                w = 20 + 4 * n + q
                A(f"v_lshlrev_b32 v7, 16, {v(w)}"); A(f"v_and_b32 v8, 0xffff0000, {v(w)}")
                A(f"v_fmac_f32 {v(60+2*q)}, {v(10+n)}, v7"); A(f"v_fmac_f32 {v(61+2*q)}, {v(10+n)}, v8")
        self.ts(6, 43)
        A(f"s_lshl_b32 s57, {s(sW)}, 4"); A("v_add_u32 v7, s57, v3"); A("v_lshlrev_b32 v7, 7, v7"); A("v_lshl_add_u32 v7, v2, 5, v7")
        A("ds_write_b128 v7, v[60:63]"); A("ds_write_b128 v7, v[64:67] offset:16")
        A("s_waitcnt lgkmcnt(0)"); A("s_barrier")
        A("v_and_b32 v7, 31, v0"); A("v_lshrrev_b32 v8, 5, v0")
        A("v_lshlrev_b32 v9, 10, v8"); A("v_lshl_add_u32 v9, v7, 2, v9")
        for p in range(8): A(f"ds_read_b32 {v(60+p)}, v9 offset:{128*p}")
        A("s_waitcnt lgkmcnt(0)")
        for p in range(1, 8): A(f"v_add_f32 v60, v60, {v(60+p)}")
        A("v_lshlrev_b32 v9, 7, v8"); A("v_lshl_add_u32 v9, v7, 2, v9"); A("v_add_u32 v9, 8192, v9")
        A("ds_write_b32 v9, v60")
        A("s_waitcnt lgkmcnt(0)"); A("s_barrier")
        A("v_lshlrev_b32 v9, 2, v7"); A("v_add_u32 v9, 8192, v9")
        for p in range(8): A(f"ds_read_b32 {v(60+p)}, v9 offset:{128*p}")
        A("s_waitcnt lgkmcnt(0)")
        for p in range(1, 8): A(f"v_add_f32 v60, v60, {v(60+p)}")
        self.rnd_bf16(60, 60)
        self.ts(6, 44)
        A("s_cmp_eq_u32 s55, 1"); A("s_cbranch_scc1 L_gv_add1")
        A("s_cmp_eq_u32 s55, 4"); A("s_cbranch_scc0 L_gv_noadd")
        A.label("L_gv_add1")
        A("v_add_f32 v60, 1.0, v60"); self.rnd_bf16(60, 60)
        A.label("L_gv_noadd")
        A("s_cmp_le_u32 s55, 1"); A("s_cbranch_scc1 L_gv_trig")
        A(f"s_cmp_lg_u32 {s(sW)}, 0"); A("s_cbranch_scc1 L_arr1")
        A("s_lshl_b32 s57, s56, 7"); A("v_lshlrev_b32 v9, 2, v7"); A("v_add_u32 v9, s57, v9")
        A("v_lshrrev_b32 v62, 1, v9")
        A("v_lshrrev_b32 v61, 16, v60")
        A("s_mov_b64 s[60:61], exec"); A("s_mov_b32 exec_hi, 0")
        A("s_cmp_eq_u32 s55, 2"); A("s_cbranch_scc0 L_gv_n2")
        self.mov_s(58, GA_OFF); A(f"buffer_store_dword v60, v9, {srd(SWS)}, s58 offen sc1")
        A.label("L_gv_n2")
        A("s_cmp_eq_u32 s55, 5"); A("s_cbranch_scc0 L_gv_n5")
        self.mov_s(58, GB_OFF); A(f"buffer_store_dword v60, v9, {srd(SWS)}, s58 offen sc1")
        A.label("L_gv_n5")
        A("s_cmp_eq_u32 s55, 4"); A("s_cbranch_scc0 L_gv_n4")
        self.mov_s(58, CB1F_OFF); A(f"buffer_store_dword v60, v9, {srd(SWS)}, s58 offen sc1")
        self.mov_s(58, CB1B_OFF); A(f"buffer_store_short v61, v62, {srd(SWS)}, s58 offen sc1")
        A.label("L_gv_n4")
        A("s_cmp_eq_u32 s55, 3"); A("s_cbranch_scc0 L_gv_n3")
        self.mov_s(58, SBB_OFF); A(f"buffer_store_short v61, v62, {srd(SWS)}, s58 offen sc1")
        A.label("L_gv_n3")
        A("s_mov_b64 exec, s[60:61]")
        A("s_branch L_arr1")
        A.label("L_gv_trig")
        A("v_lshlrev_b32 v9, 2, v7"); A("v_add_u32 v9, 12288, v9")
        A("ds_write_b32 v9, v60")
        A("s_waitcnt lgkmcnt(0)"); A("s_barrier")
        A("v_lshrrev_b32 v9, 4, v1"); A("v_lshlrev_b32 v9, 4, v9"); A("v_add_u32 v9, 12288, v9")
        A("ds_read_b128 v[60:63], v9"); A("ds_read_b128 v[64:67], v9 offset:64")
        A("s_waitcnt lgkmcnt(0)")
        A("s_cmp_eq_u32 s55, 0"); A("s_cbranch_scc1 L_gv_sa")
        A("v_lshlrev_b32 v9, 4, v1")
        A(f"s_mul_i32 s57, {s(sW)}, 40960"); A("s_lshl_b32 s58, s56, 11"); A("s_add_u32 s57, s57, s58"); A(f"s_add_u32 s57, s57, {hex(FP_OFF)}")
        for i in range(6):
            if i == 5:
                A(f"s_cmp_lg_u32 {s(sW)}, 0"); A("s_cbranch_scc1 L_gv_late")
            b = 100 + 16 * i
            for jj in range(8):
                A(f"v_pk_mul_f32 {v(b+2*jj,2)}, {v(b+2*jj,2)}, {v(60+(jj&~1),2)} op_sel:[0,{jj&1}] op_sel_hi:[1,{jj&1}]")
            for k in range(4):
                A(f"v_cvt_pk_bf16_f32 {v(70+k)}, {v(b+4*k)}, {v(b+4*k+2)}")
                A(f"v_cvt_pk_bf16_f32 {v(74+k)}, {v(b+4*k+1)}, {v(b+4*k+3)}")
            if i == 5: self.mask_q320(70)
            A(f"buffer_store_dwordx4 v[70:73], v9, {srd(SWS)}, s57 offen sc1")
            A(f"buffer_store_dwordx4 v[74:77], v9, {srd(SWS)}, s57 offen offset:1024 sc1")
            A(f"s_add_u32 s57, s57, {4*40960}")
            A("s_nop 1")
        A("s_branch L_gv_late")
        A.label("L_gv_sa")
        for k in range(4): A(f"v_cvt_pk_bf16_f32 {v(78+k)}, {v(60+2*k)}, {v(61+2*k)}")
        A("v_lshrrev_b32 v9, 4, v1"); A("v_lshlrev_b32 v9, 4, v9")
        A("s_mul_i32 s57, s56, 2688"); A(f"s_lshl_b32 s58, {s(sW)}, 6"); A("s_add_u32 s57, s57, s58"); A(f"s_add_u32 s57, s57, {hex(SAP_OFF)}")
        A("v_and_b32 v8, 15, v1"); A("v_cmp_eq_u32 s[62:63], 0, v8")
        for i in range(6):
            if i == 5:
                A(f"s_cmp_lg_u32 {s(sW)}, 0"); A("s_cbranch_scc1 L_gv_late")
            b = 100 + 16 * i
            for k in range(4):
                A(f"v_cvt_pk_bf16_f32 {v(70+k)}, {v(b+4*k)}, {v(b+4*k+2)}")
                A(f"v_cvt_pk_bf16_f32 {v(74+k)}, {v(b+4*k+1)}, {v(b+4*k+3)}")
            if i == 5: self.mask_q320(70)
            A("v_mfma_f32_16x16x32_bf16 v[84:87], v[70:73], v[78:81], 0")
            A("v_mfma_f32_16x16x32_bf16 v[88:91], v[74:77], v[78:81], 0")
            A("s_mov_b64 s[60:61], exec"); A("s_mov_b64 exec, s[62:63]")
            A(f"buffer_store_dwordx4 v[84:87], v9, {srd(SWS)}, s57 offen sc1")
            A(f"buffer_store_dwordx4 v[88:91], v9, {srd(SWS)}, s57 offen offset:1344 sc1")
            A("s_mov_b64 exec, s[60:61]")
            A(f"s_add_u32 s57, s57, {4*64}")
            A("s_nop 1")
        A.label("L_gv_late")
        A(f"s_mov_b32 {s(sRET)}, 2"); A("s_branch L_consts")
    def g_gen(self):
        n0 = len(self.A.lines)
        super().g_gen()
        for i in range(n0, len(self.A.lines)):
            self.A.lines[i] = self.A.lines[i].replace("L_gv_pre_done", "L_gv_nog")

    def arrive1(self):
        A = self.A
        A.label("L_arr1")
        self.stamp(1)
        A("v_mov_b32 v3, 0")
        lab = self.wave0_begin()
        A(f"buffer_load_dword v2, v3, {srd(SDBG)}, 0 offen sc1")
        A.label(lab)
        A("s_waitcnt vmcnt(0) lgkmcnt(0)")
        A("s_barrier")
        lab = self.wave0_begin()
        lp = A.newlabel("L_ini"); ok = A.newlabel("L_iniok")
        A("s_mov_b32 s49, 0")
        A.label(lp)
        A("v_readfirstlane_b32 s48, v2")
        A("s_cmp_ge_u32 s48, 8"); A(f"s_cbranch_scc1 {ok}")
        A("s_add_u32 s49, s49, 1"); A(f"s_cmp_gt_u32 s49, {POLL_MAX}"); A(f"s_cbranch_scc1 {ok}")
        A(f"buffer_load_dword v2, v3, {srd(SDBG)}, 0 offen sc1")
        A("s_waitcnt vmcnt(0)")
        A(f"s_branch {lp}")
        A.label(ok)
        self.gb_arrive(0)
        A.label(lab)
    def rp13_issue(self):
        A = self.A
        A("s_cmp_ge_u32 s2, 216"); A("s_cbranch_scc1 L_rp13_i_done")
        A("s_lshr_b32 s52, s2, 3"); A("s_and_b32 s53, s2, 7")
        A("v_lshrrev_b32 v4, 3, v1"); A("v_and_b32 v5, 7, v1")
        A("v_mul_u32_u24 v4, 3456, v4"); A("v_lshl_add_u32 v4, v5, 4, v4")
        A(f"s_and_b32 s54, {s(sW)}, 1"); A("s_mul_i32 s54, s54, 40")
        A("s_mul_i32 s55, s53, 80"); A("s_add_u32 s54, s54, s55"); A("s_mul_i32 s54, s54, 3456")
        A("s_lshl_b32 s55, s52, 7"); A("s_add_u32 s54, s54, s55")
        A(f"s_mul_i32 s55, {s(sW)}, 5120"); A(f"s_add_u32 s55, s55, {self.STG13}")
        A(f"s_cmp_ge_u32 {s(sW)}, 2"); A("s_cbranch_scc1 L_rp13_w3")
        for n in range(5):
            A(f"s_add_u32 m0, s55, {n*1024}")
            A(f"buffer_load_dwordx4 v4, {srd(SW1)}, s54 offen lds")
            A(f"s_add_u32 s54, s54, {8*3456}")
        A("s_branch L_rp13_i_done")
        A.label("L_rp13_w3")
        for n in range(5):
            A(f"s_add_u32 m0, s55, {n*1024}")
            A(f"buffer_load_dwordx4 v4, {srd(SW3)}, s54 offen lds")
            A(f"s_add_u32 s54, s54, {8*3456}")
        A.label("L_rp13_i_done")
    def rp13_finish(self):
        A = self.A
        A("s_cmp_ge_u32 s2, 216"); A("s_cbranch_scc1 L_rp13_done")
        A("s_lshr_b32 s52, s2, 3"); A("s_and_b32 s53, s2, 7")
        self.rp13_addr(6, 7)
        A(f"s_lshl_b32 s54, {s(sW)}, 5"); A("v_add_u32 v6, s54, v6"); A("v_add_u32 v7, s54, v7")
        self.rp13_read(6, 7, 40)
        A("s_lshl_b32 s54, s52, 2"); A(f"s_add_u32 s54, s54, {s(sW)}"); A("s_mul_i32 s54, s54, 40")
        A("s_mul_i32 s55, s53, 5"); A("s_add_u32 s54, s54, s55"); A("s_lshl_b32 s54, s54, 10"); A(f"s_add_u32 s54, s54, {hex(W13_OFF)}")
        A("v_lshlrev_b32 v8, 4, v1")
        for k5 in range(5):
            A(f"s_waitcnt lgkmcnt({8-2*k5})")
            o = f" offset:{1024*k5}" if 0 < k5 < 4 else ""
            if k5 == 4: A("s_add_u32 s54, s54, 4096")
            A(f"buffer_store_dwordx4 {v(40+4*k5,4)}, v8, {srd(SWS)}, s54 offen{o} sc1")
        A.label("L_rp13_done")
    def p2_wloads(self):
        A = self.A
        A("v_and_b32 v4, 15, v1"); A("v_lshrrev_b32 v5, 4, v1")
        A(f"s_lshl_b32 s59, {s(sQB)}, 4"); A("v_add_u32 v6, s59, v4"); A("v_lshlrev_b32 v6, 1, v6")
        for k in range(32): A(f"v_mov_b32 {v(200+k)}, 0")
        for sg in range(2):
            A(f"v_lshl_add_u32 v7, v5, 8, {s(sOFF1+sg)}")
            for mt in range(2):
                for r in range(4):
                    A(f"v_add_u32 v8, {64*(16*mt+r)}, v7"); A("v_and_b32 v8, 2047, v8")
                    A(f"v_mad_u32_u24 {v(10+4*mt+r)}, v8, s58, v6")
            for mt in range(2):
                for r in range(4):
                    A(f"buffer_load_short_d16_hi {v(200+16*sg+4*mt+r)}, {v(10+4*mt+r)}, {srd(SWR)}, 0 offen")
                    A(f"buffer_load_short_d16_hi {v(208+16*sg+4*mt+r)}, {v(10+4*mt+r)}, {srd(SWI)}, 0 offen")
    def b1_dead(self):
        A = self.A
        self.rp13_issue()
        A(f"s_cmp_ge_u32 {s(sI)}, 28"); A("s_cbranch_scc1 L_b1_now")
        A(f"s_cmp_eq_u32 {s(sW)}, 3"); A("s_cbranch_scc1 L_b1_now")
        A("s_mov_b32 s58, 642")
        self.p2_wloads()
        A("s_waitcnt vmcnt(32)")
        A("s_branch L_b1_w")
        A.label("L_b1_now")
        A("s_waitcnt vmcnt(0)")
        A.label("L_b1_w")
        A("s_barrier")
        self.stamp(3)
        self.rp13_finish()
        self.stamp(4)

    def p2_main(self):
        A = self.A
        N0 = self.o.get("p2n0", 20)
        RATE = self.o.get("p2rate", 3)
        A(f"s_cmp_ge_u32 {s(sI)}, 28"); A("s_cbranch_scc1 L_p2_done")
        A("v_lshlrev_b32 v2, 4, v1")
        A(f"s_lshr_b32 s56, {s(sW)}, 1"); A("s_lshl_b32 s57, s56, 5"); A(f"s_add_u32 s57, s57, {s(sU)}"); A("s_mul_i32 s57, s57, 40960")
        A(f"s_and_b32 s58, {s(sW)}, 1"); A("s_lshl_b32 s58, s58, 10"); A("s_add_u32 s57, s57, s58")
        if T0_OFF: A(f"s_add_u32 s57, s57, {hex(T0_OFF)}")
        A("s_mul_i32 s56, s56, 40960"); A("s_add_u32 s58, s58, s56")
        A(f"s_mul_i32 s59, {s(sQB)}, 40960"); A(f"s_add_u32 s59, s59, {hex(FP_OFF)}")
        A(f"s_cmp_eq_u32 {s(sW)}, 3"); A("s_cbranch_scc1 L_p2_w3")
        def dma(t):
            L = []
            if t % 2 == 0: L.append(f"s_add_u32 m0, s58, {t*2048}")
            L.append(f"buffer_load_dwordx4 v2, {srd(SWS)}, s57 offen" + (" offset:2048" if t & 1 else "") + " sc1 lds")
            if t % 2 == 1: L.append("s_add_u32 s57, s57, 4096")
            return L
        def fld(t, cs):
            L = [f"buffer_load_dwordx4 {a(8*t+4*cs,4)}, v2, {srd(SWS)}, s59 offen" + (f" offset:{(t&1)*2048+cs*1024}" if (t & 1) or cs else "") + " sc1"]
            if t % 2 == 1 and cs == 1: L.append("s_add_u32 s59, s59, 4096")
            return L
        GS = 4
        ops = []
        for t in range(20):
            ops.append((GS * (t // GS) - 1, 0, t, ("dma", t), dma(t)))
            for cs in range(2): ops.append((t, 1, cs, ("f", t), fld(t, cs)))
        ops.sort(key=lambda x: (x[0], x[1], x[2]))
        sa = []
        for tt in range(5):
            for cs in range(2):
                L = [f"buffer_load_dword {v(184+2*tt+cs)}, v10, {srd(SWS)}, s60 offen offset:{cs*1344} sc1"]
                if cs == 1: L.append("s_add_u32 s60, s60, 2688")
                sa.append((99, 0, 0, ("sa", tt), L))
        ops += sa
        vm = VM()
        def issue(n):
            while n > 0 and ops:
                o = ops.pop(0)
                for l in o[4]: A(l)
                vm.add(o[3]); n -= 1
        issue(N0)
        A("v_and_b32 v4, 15, v1"); A("v_lshrrev_b32 v5, 4, v1")
        A("v_lshrrev_b32 v6, 2, v4")
        A("v_lshrrev_b32 v7, 1, v6"); A("v_xor_b32 v8, v6, v7"); A("v_and_b32 v8, 1, v8"); A("v_lshl_or_b32 v7, v8, 1, v7")
        A("v_xor_b32 v7, v7, v5"); A("v_lshlrev_b32 v7, 4, v7"); A("v_lshl_add_u32 v3, v4, 6, v7")
        A("v_add_u32 v9, 40960, v3")
        A("v_mul_u32_u24 v10, 13440, v5"); A("v_lshl_add_u32 v10, v4, 2, v10")
        A(f"s_lshl_b32 s60, {s(sQB)}, 6"); A(f"s_add_u32 s60, s60, {hex(SAP_OFF)}")
        def rd(t, buf):
            for ab in range(2):
                for st in range(2):
                    A(f"ds_read_b128 {v(40+16*buf+8*ab+4*st,4)}, {'v3' if ab == 0 else 'v9'} offset:{t*2048+st*1024}")
        def sync(g):
            A(f"s_waitcnt vmcnt({vm.wait(('dma', GS*g+GS-1))})"); A("s_barrier")
            self.ts(2, 20 + g)
        sync(0); rd(0, 0)
        for t in range(20):
            if t + 1 < 20:
                if (t + 1) % GS == 0: sync((t + 1) // GS)
                rd(t + 1, (t + 1) & 1)
                A(f"s_waitcnt vmcnt({vm.wait(('f', t))}) lgkmcnt(4)")
            else:
                A(f"s_waitcnt vmcnt({vm.wait(('f', t))}) lgkmcnt(0)")
            buf = t & 1; m = 0
            for ab in range(2):
                for st in range(2):
                    for cs in range(2):
                        d = v(72 + 16 * ab + 8 * st + 4 * cs, 4)
                        A(f"v_mfma_f32_16x16x32_bf16 {d}, {v(40+16*buf+8*ab+4*st,4)}, {a(8*t+4*cs,4)}, {'0' if t == 0 else d}")
                        m += 1
                        if m in (2, 4, 6)[:RATE]: issue(1)
                        if RATE > 3 and m == 8: issue(RATE - 3)
        issue(99)
        A("s_barrier")
        A(f"s_waitcnt vmcnt(0)")
        self.ts(2, 26)
        Ac = lambda st: 72 + 8 * st; As = lambda st: 76 + 8 * st; Bc = lambda st: 88 + 8 * st; Bs = lambda st: 92 + 8 * st
        Z = lambda sg, c, st: 104 + 16 * sg + 8 * c + 4 * st
        def pk(op, d, x, y, negx=0, negy=0):
            m = ""
            if negx or negy: m = f" neg_lo:[{negx},{negy}] neg_hi:[{negx},{negy}]"
            A(f"{op} {v(d,2)}, {v(x,2)}, {v(y,2)}{m}")
        A(f"s_cmp_eq_u32 {s(sU)}, 0"); A("s_cbranch_scc1 L_p2_spec1")
        for st in range(2):
            for h in (0, 2):
                pk("v_pk_add_f32", Z(0,0,st)+h, Ac(st)+h, Bs(st)+h)
                pk("v_pk_add_f32", Z(0,1,st)+h, Bc(st)+h, As(st)+h, 0, 1)
                pk("v_pk_add_f32", Z(1,0,st)+h, Ac(st)+h, Bs(st)+h, 0, 1)
                pk("v_pk_add_f32", Z(1,1,st)+h, Bc(st)+h, As(st)+h, 1, 1)
        A("s_branch L_p2_c1")
        A.label("L_p2_spec1")
        for tt in range(1, 5):
            A(f"v_add_f32 v184, v184, {v(184+2*tt)}"); A(f"v_add_f32 v185, v185, {v(185+2*tt)}")
        for xm in (16, 32):
            A(f"v_xor_b32 v10, {xm}, v1"); A("v_lshlrev_b32 v10, 2, v10")
            A("ds_bpermute_b32 v186, v10, v184"); A("ds_bpermute_b32 v187, v10, v185")
            A("s_waitcnt lgkmcnt(0)")
            A("v_add_f32 v184, v184, v186"); A("v_add_f32 v185, v185, v187")
        A("v_mul_f32 v184, 0x42800000, v184"); A("v_mul_f32 v185, 0x42800000, v185")
        for st in range(2):
            for r in range(4):
                A(f"v_add_f32 {v(Z(0,0,st)+r)}, {v(Ac(st)+r)}, v184")
                A(f"v_add_f32 {v(Z(0,1,st)+r)}, {v(As(st)+r)}, v185"); A(f"v_sub_f32 {v(Z(0,1,st)+r)}, 0, {v(Z(0,1,st)+r)}")
                A(f"v_mov_b32 {v(Z(1,0,st)+r)}, {v(Bc(st)+r)}")
                A(f"v_sub_f32 {v(Z(1,1,st)+r)}, 0, {v(Bs(st)+r)}")
        A.label("L_p2_c1")
        ZP = lambda sg, c: 136 + 8 * sg + 4 * c
        ZN = lambda sg: 184 + 4 * sg
        FW = lambda inv, sg, tl, w: a(160 + 32 * inv + 16 * sg + 8 * tl + 4 * w, 4)
        for sg in range(2):
            for c in range(2):
                for k in range(4):
                    A(f"v_cvt_pk_bf16_f32 {v(ZP(sg,c)+k)}, {v(Z(sg,c,0)+2*k)}, {v(Z(sg,c,0)+2*k+1)}")
            for k in range(4):
                A(f"v_cvt_pk_bf16_f32 {v(ZN(sg)+k)}, -{v(Z(sg,0,0)+2*k)}, -{v(Z(sg,0,0)+2*k+1)}")
        for sg in range(2):
            for mt in range(2):
                xr = v(Z(sg,0,mt), 4); xi = v(Z(sg,1,mt), 4)
                A(f"v_mfma_f32_16x16x32_bf16 {xr}, {FW(0,sg,mt,0)}, {v(ZP(sg,0),4)}, 0")
                A(f"v_mfma_f32_16x16x32_bf16 {xi}, {FW(0,sg,mt,0)}, {v(ZP(sg,1),4)}, 0")
        for sg in range(2):
            for mt in range(2):
                xr = v(Z(sg,0,mt), 4); xi = v(Z(sg,1,mt), 4)
                A(f"v_mfma_f32_16x16x32_bf16 {xr}, {FW(0,sg,mt,1)}, {v(ZP(sg,1),4)}, {xr}")
                A(f"v_mfma_f32_16x16x32_bf16 {xi}, {FW(0,sg,mt,1)}, {v(ZN(sg),4)}, {xi}")
        Y = lambda sg, c, mt: 152 + 16 * sg + 8 * c + 4 * mt
        WR = lambda sg, mt: 200 + 16 * sg + 4 * mt; WI = lambda sg, mt: 208 + 16 * sg + 4 * mt
        for sg in range(2):
            for mt in range(2):
                for h in (0, 2):
                    xr = Z(sg,0,mt)+h; xi = Z(sg,1,mt)+h; wr = WR(sg,mt)+h; wi = WI(sg,mt)+h
                    yr = Y(sg,0,mt)+h; yi = Y(sg,1,mt)+h
                    A(f"v_pk_mul_f32 {v(yr,2)}, {v(xi,2)}, {v(wi,2)}")
                    A(f"v_pk_mul_f32 {v(yi,2)}, {v(xi,2)}, {v(wr,2)}")
                    A(f"v_pk_fma_f32 {v(yr,2)}, {v(xr,2)}, {v(wr,2)}, {v(yr,2)} neg_lo:[0,0,1] neg_hi:[0,0,1]")
                    A(f"v_pk_fma_f32 {v(yi,2)}, {v(xr,2)}, {v(wi,2)}, {v(yi,2)}")
            for c in range(2):
                for k in range(4):
                    A(f"v_cvt_pk_bf16_f32 {v(ZP(sg,c)+k)}, {v(Y(sg,c,0)+2*k)}, {v(Y(sg,c,0)+2*k+1)}")
            for k in range(4):
                A(f"v_cvt_pk_bf16_f32 {v(ZN(sg)+k)}, -{v(Y(sg,1,0)+2*k)}, -{v(Y(sg,1,0)+2*k+1)}")
        for sg in range(2):
            for nt in range(2):
                vr = v(Z(sg,0,nt), 4); vi = v(Z(sg,1,nt), 4)
                A(f"v_mfma_f32_16x16x32_bf16 {vr}, {v(ZP(sg,0),4)}, {FW(1,sg,nt,0)}, 0")
                A(f"v_mfma_f32_16x16x32_bf16 {vi}, {v(ZP(sg,1),4)}, {FW(1,sg,nt,0)}, 0")
        for sg in range(2):
            for nt in range(2):
                vr = v(Z(sg,0,nt), 4); vi = v(Z(sg,1,nt), 4)
                A(f"v_mfma_f32_16x16x32_bf16 {vr}, {v(ZN(sg),4)}, {FW(1,sg,nt,1)}, {vr}")
                A(f"v_mfma_f32_16x16x32_bf16 {vi}, {v(ZP(sg,0),4)}, {FW(1,sg,nt,1)}, {vi}")
        self.ts(2, 25)
        A("s_mov_b32 s60, 86016"); A("v_mul_lo_u32 v6, v4, s60"); A("v_lshl_add_u32 v6, v5, 4, v6")
        A(f"s_lshl_b32 s60, {s(sQB)}, 12")
        A(f"s_lshr_b32 s61, {s(sU)}, 3"); A("s_lshl_b32 s61, s61, 10"); A("s_add_u32 s60, s60, s61")
        A(f"s_and_b32 s61, {s(sU)}, 7"); A("s_lshr_b32 s61, s61, 1"); A("s_lshl_b32 s61, s61, 8"); A("s_add_u32 s60, s60, s61")
        A(f"s_and_b32 s61, {s(sU)}, 1"); A("s_lshl_b32 s61, s61, 6"); A("s_add_u32 s60, s60, s61")
        A(f"s_add_u32 s60, s60, {hex(A3_OFF)}")
        RC = lambda nt: 152 + 16 * nt; RS = lambda nt: 156 + 16 * nt; IC = lambda nt: 160 + 16 * nt; IS = lambda nt: 164 + 16 * nt
        A(f"s_cmp_eq_u32 {s(sU)}, 0"); A("s_cbranch_scc1 L_p2_spec2")
        for nt in range(2):
            for h in (0, 2):
                pk("v_pk_add_f32", RC(nt)+h, Z(0,0,nt)+h, Z(1,0,nt)+h)
                pk("v_pk_add_f32", RS(nt)+h, Z(0,1,nt)+h, Z(1,1,nt)+h, 1, 1)
                pk("v_pk_add_f32", IC(nt)+h, Z(0,1,nt)+h, Z(1,1,nt)+h, 0, 1)
                pk("v_pk_add_f32", IS(nt)+h, Z(0,0,nt)+h, Z(1,0,nt)+h, 0, 1)
        A("s_branch L_p2_c2")
        A.label("L_p2_spec2")
        for nt in range(2):
            for r in range(4):
                A(f"v_mov_b32 {v(RC(nt)+r)}, {v(Z(0,0,nt)+r)}"); A(f"v_sub_f32 {v(RS(nt)+r)}, 0, {v(Z(0,1,nt)+r)}")
                A(f"v_mov_b32 {v(IC(nt)+r)}, {v(Z(1,0,nt)+r)}"); A(f"v_sub_f32 {v(IS(nt)+r)}, 0, {v(Z(1,1,nt)+r)}")
        A.label("L_p2_c2")
        for nt in range(2):
            for e in range(2):
                b = 152 + 16 * nt + 8 * e; p = 136 + 8 * nt + 4 * e
                for k in range(4):
                    A(f"v_cvt_pk_bf16_f32 {v(p+k)}, {v(b+2*k)}, {v(b+2*k+1)}")
            p = 136 + 8 * nt
            for k in range(4): A(f"v_permlane32_swap_b32 {v(p+k)}, {v(p+4+k)}")
            A(f"buffer_store_dwordx4 {v(p,4)}, v6, {srd(SWS)}, s60 offen sc1")
            A(f"buffer_store_dwordx4 {v(p+4,4)}, v6, {srd(SWS)}, s60 offen offset:128 sc1")
            if nt == 0: A(f"s_add_u32 s60, s60, {16*86016}")
        A("s_branch L_p2_done")
        A.label("L_p2_w3")
        nd = [0]
        def w3dma(n):
            while n > 0 and nd[0] < 20:
                for l in dma(nd[0]): A(l)
                vm3.add(("dma", nd[0])); nd[0] += 1; n -= 1
        vm3 = VM()
        w3dma(8)
        self.uv_issue(vm3)
        for g in range(5):
            A(f"s_waitcnt vmcnt({vm3.wait(('dma', GS*g+GS-1))})"); A("s_barrier")
            w3dma(4)
            if 1 <= g: self.uv_tile(g - 1, vm3)
        A("s_barrier")
        A("s_cmp_ge_u32 s2, 216"); A("s_cbranch_scc1 L_p2_done")
        A("s_waitcnt vmcnt(0)")
        A("s_lshr_b32 s62, s2, 3"); A("s_lshl_b32 s62, s62, 8"); A(f"s_add_u32 s62, s62, {hex(F13_OFF)}")
        self.atomic_inc_lane0("s62")
        A.label("L_p2_done")

    def uv_issue(self, vm):
        A = self.A
        A("v_and_b32 v10, 31, v1"); A("v_lshrrev_b32 v11, 5, v1")
        A("v_lshlrev_b32 v12, 12, v10")
        A("v_cmp_lt_u32 vcc, 1, v10"); A("v_mov_b32 v13, 0x40000000"); A("v_cndmask_b32 v12, v12, v13, vcc")
        A("v_lshl_add_u32 v14, v11, 3, v12"); A("v_lshl_add_u32 v15, v11, 4, v12")
        A("s_and_b32 s61, s2, 7"); A("s_mul_i32 s61, s61, 160"); A(f"s_add_u32 s61, s61, {hex(CB1B_OFF)}")
        for k5 in range(5):
            for h in range(2):
                if k5 < 4: o = 2 * (32 * (k5 >> 1) + 16 * h + 8 * (k5 & 1)); ad = "v14"
                else: o = 2 * (64 + 4 * h); ad = "v15"
                A(f"buffer_load_dwordx2 {v(120+4*k5+2*h,2)}, {ad}, {srd(SWS)}, s61 offen offset:{o} sc1"); vm.add(("uvl", 0))
        self.rp13_addr(6, 7)
        A("s_lshr_b32 s62, s2, 3"); A("s_and_b32 s63, s2, 7")
        A("v_lshlrev_b32 v12, 3, v1")
        A("s_mul_i32 s63, s63, 108"); A("s_lshl_b32 s62, s62, 2"); A("s_add_u32 s62, s62, s63"); A("s_lshl_b32 s62, s62, 8"); A(f"s_add_u32 s62, s62, {hex(UVP_OFF)}")
    def uv_tile(self, tl, vm):
        A = self.A
        lab = A.newlabel("L_uv_skip")
        A("s_cmp_lt_u32 s2, 216"); A("s_cselect_b32 s63, s62, 0x7000000")
        self.rp13_read(6, 7, 40, extra=32 * tl)
        if tl == 0: A(f"s_waitcnt vmcnt({vm.wait(('uvl', 0))})")
        A("s_waitcnt lgkmcnt(0)")
        for k5 in range(5):
            A(f"v_mfma_f32_32x32x16_bf16 v[64:79], {v(120+4*k5,4)}, {v(40+4*k5,4)}, {'0' if k5 == 0 else 'v[64:79]'}")
        A("s_mov_b64 s[66:67], exec"); A("s_mov_b32 exec_hi, 0")
        A(f"buffer_store_dwordx2 v[64:65], v12, {srd(SWS)}, s63 offen offset:{256*tl} sc1"); vm.add(("uvs", tl))
        A("s_mov_b64 exec, s[66:67]")

    def rp2_unit(self):
        A = self.A
        l1 = A.newlabel("L_rp2u"); l2 = A.newlabel("L_rp2v")
        A("s_cmp_ge_u32 s2, 216"); A(f"s_cbranch_scc1 {l1}")
        A("s_lshl_b32 s63, s2, 1"); A(f"s_add_u32 s63, s63, {s(sW)}")
        A(f"s_cmp_ge_u32 {s(sW)}, 2"); A("s_cselect_b32 s63, 1000, s63")
        A(f"s_branch {l2}")
        A.label(l1)
        A("s_sub_u32 s63, s2, 216"); A("s_lshl_b32 s63, s63, 2"); A(f"s_add_u32 s63, s63, {s(sW)}"); A("s_add_u32 s63, s63, 432")
        A.label(l2)
        A("s_mul_i32 s55, s63, 205"); A("s_lshr_b32 s55, s55, 11")
        A("s_mul_i32 s56, s55, 10"); A("s_sub_u32 s56, s63, s56")
    def rp2_issue(self):
        A = self.A
        self.rp2_unit()
        A("s_cmp_ge_u32 s63, 540"); A("s_cbranch_scc1 L_rp2_i_done")
        A("v_lshrrev_b32 v4, 3, v1"); A("v_and_b32 v5, 7, v1")
        A("v_mul_u32_u24 v4, 1280, v4"); A("v_lshl_add_u32 v4, v5, 4, v4")
        A(f"s_lshl_b32 s54, {s(sW)}, 12"); A(f"s_add_u32 s54, s54, {self.STG2}")
        A("s_mul_i32 s57, s55, 40960"); A("s_lshl_b32 s58, s56, 7"); A("s_add_u32 s57, s57, s58")
        for n in range(4):
            A(f"s_add_u32 m0, s54, {n*1024}")
            A(f"buffer_load_dwordx4 v4, {srd(SW2)}, s57 offen lds")
            if n < 3: A(f"s_add_u32 s57, s57, {8*1280}")
        A.label("L_rp2_i_done")
    def rp2_finish(self):
        A = self.A
        self.rp2_unit()
        A("s_cmp_ge_u32 s63, 540"); A("s_cbranch_scc1 L_rp2_done")
        A("v_lshrrev_b32 v10, 4, v1"); A("v_lshrrev_b32 v11, 1, v10"); A("v_and_b32 v10, 1, v10")
        A("v_lshlrev_b32 v11, 4, v11"); A("v_lshl_add_u32 v11, v10, 2, v11"); A("v_bfe_u32 v12, v1, 2, 2"); A("v_add_u32 v11, v11, v12")
        A("v_and_b32 v13, 3, v1"); A("v_lshlrev_b32 v13, 3, v13"); A("v_lshl_add_u32 v6, v11, 7, v13")
        A(f"s_lshl_b32 s54, {s(sW)}, 12"); A(f"s_add_u32 s54, s54, {self.STG2}")
        A("v_add_u32 v6, s54, v6")
        A("v_lshlrev_b32 v8, 4, v1")
        for dtl in range(4):
            for h in range(2):
                A(f"ds_read_b64_tr_b16 {v(60+4*dtl+2*h,2)}, v6 offset:{dtl*32 + h*8*128}")
        for dtl in range(4):
            A("s_lshl_b32 s57, s56, 2"); A(f"s_add_u32 s57, s57, {dtl}")
            A("s_mul_i32 s58, s57, 52"); A("s_lshr_b32 s58, s58, 8")
            A("s_mul_i32 s59, s58, 5"); A("s_sub_u32 s59, s57, s59")
            A("s_mul_i32 s58, s58, 54"); A("s_add_u32 s58, s58, s55"); A("s_mul_i32 s58, s58, 5"); A("s_add_u32 s58, s58, s59")
            A("s_lshl_b32 s58, s58, 10"); A(f"s_add_u32 s58, s58, {hex(W2P_OFF)}")
            A(f"s_waitcnt lgkmcnt({6-2*dtl})")
            A(f"buffer_store_dwordx4 {v(60+4*dtl,4)}, v8, {srd(SWS)}, s58 offen sc1")
        A.label("L_rp2_done")
    def p3_pre(self):
        A = self.A
        self.p35_roles()
        A("v_lshlrev_b32 v2, 4, v1")
        A("s_mul_i32 s56, s55, 107520"); A(f"s_lshl_b32 s57, {s(sW)}, 10"); A("s_add_u32 s56, s56, s57"); A(f"s_add_u32 s56, s56, {hex(GP_OFF)}")
        for k in range(27):
            A(f"s_add_u32 m0, s57, {k*4096}")
            A(f"buffer_load_dwordx4 v2, {srd(SWS)}, s56 offen sc1 lds")
            if k < 26: A("s_add_u32 s56, s56, 4096")
        A("v_and_b32 v4, 15, v1"); A("v_lshrrev_b32 v5, 4, v1")
        A("v_mul_u32_u24 v6, 0xa000, v4"); A("v_lshl_add_u32 v6, v5, 3, v6")
        A(f"s_lshl_b32 s56, {s(sW)}, 9"); A("s_add_u32 s56, s56, s54"); A("s_mul_i32 s56, s56, 1280"); A("s_mul_i32 s57, s55, 160"); A("s_add_u32 s56, s56, s57")
        for dt in range(5):
            A(f"buffer_load_dwordx2 {v(200+2*dt,2)}, v6, {srd(SX)}, s56 offen offset:{32*dt}")
        A("v_lshlrev_b32 v7, 4, v5")
        A("s_mul_i32 s56, s55, 320"); A(f"s_add_u32 s57, s56, {hex(GA_OFF)}"); A(f"s_add_u32 s58, s56, {hex(CB1F_OFF)}")
        for dt in range(5):
            A(f"buffer_load_dwordx4 {v(160+4*dt,4)}, v7, {srd(SWS)}, s57 offen offset:{64*dt} sc1")
            A(f"buffer_load_dwordx4 {v(180+4*dt,4)}, v7, {srd(SWS)}, s58 offen offset:{64*dt} sc1")
    def p3_consts(self):
        A = self.A
        A("v_and_b32 v4, 15, v1"); A("v_lshrrev_b32 v5, 4, v1")
        A(f"s_lshl_b32 s56, {s(sW)}, 4"); A("v_add_u32 v8, s56, v4")
        A("v_cvt_f32_u32 v8, v8"); A("v_mul_f32 v8, 0x3c000000, v8")
        A("v_lshlrev_b32 v9, 2, v5"); A("v_cvt_f32_u32 v9, v9")
        for u in range(2):
            for jj in range(8):
                o = 32 * u + 16 * (jj >> 2) + (jj & 3)
                par = o & 1
                A(f"v_add_f32 v10, {hex(f2u(float(o - par)))}, v9") if o - par else A("v_mov_b32 v10, v9")
                if par: A(f"v_fma_f32 v11, v10, v8, s59") if False else None
                if par:
                    A("v_mul_f32 v11, v10, v8"); A("v_add_f32 v11, 0x3e800000, v11")
                else:
                    A("v_mul_f32 v11, v10, v8")
                if o == 1:
                    A("v_mul_f32 v12, 0x42800000, v8"); A("v_cmp_gt_u32 vcc, 16, v1"); A("v_cndmask_b32 v11, v11, v12, vcc")
                A(f"v_cos_f32 {v(20+jj)}, v11")
            for k in range(4):
                A(f"v_cvt_pk_bf16_f32 {v(210+4*u+k)}, {v(20+2*k)}, {v(21+2*k)}")
    def b2(self):
        A = self.A
        self.rp2_issue()
        self.p3_pre()
        self.stamp(8)
        A("s_waitcnt vmcnt(42)")
        A("s_barrier")
        lab = self.wave0_begin()
        self.gb_arrive(1)
        A.label(lab)
        self.stamp(9)
        self.rp2_finish()
        self.p3_consts()
        self.stamp(20) if self.o.get("ts") == 1 else None
        self.gb_wait(1)

    def check_lines(self, vaddr, vval, soff, expect):
        A = self.A
        ok = A.newlabel("L_chk")
        A(f"v_cmp_gt_u32 vcc, {expect}, {v(vval)}")
        A(f"s_cbranch_vccz {ok}")
        self.poll(vaddr, soff, expect, vt=vval)
        A.label(ok)
    def p3_main(self):
        A = self.A
        PF = self.o.get("p3pf", 6)
        self.p35_roles()
        A("v_and_b32 v4, 15, v1"); A("v_lshrrev_b32 v5, 4, v1")
        A("v_lshrrev_b32 v6, 2, v4"); A("v_lshlrev_b32 v6, 8, v6"); A("v_lshrrev_b32 v7, 1, v5"); A("v_lshl_add_u32 v6, v7, 7, v6")
        A("v_and_b32 v7, 3, v4"); A("v_lshl_add_u32 v6, v7, 5, v6"); A("v_and_b32 v7, 1, v5"); A("v_lshl_add_u32 v6, v7, 4, v6")
        A("s_mul_i32 s56, s54, 86016"); A(f"s_lshl_b32 s57, {s(sW)}, 10"); A("s_add_u32 s56, s56, s57"); A(f"s_add_u32 s56, s56, {hex(A3_OFF)}")
        vm = VM()
        nl = [0]
        def ld():
            if nl[0] >= 21: return
            A(f"buffer_load_dwordx4 {a(4*nl[0],4)}, v6, {srd(SWS)}, s56 offen sc1"); vm.add(("a3", nl[0]))
            if nl[0] < 20: A("s_add_u32 s56, s56, 4096")
            nl[0] += 1
        for k in range(PF): ld()
        A(f"s_and_b32 s60, {s(sXC)}, 3"); A("s_lshl_b32 s60, s60, 2"); A(f"s_lshr_b32 s61, {s(sI)}, 3"); A("s_add_u32 s60, s60, s61")
        A("s_mul_i32 s60, s60, 7"); A("s_add_u32 s61, s60, 6"); A("s_min_u32 s61, s61, 107"); A("s_lshr_b32 s60, s60, 2"); A("s_lshr_b32 s61, s61, 2")
        A("v_add_u32 v30, s60, v1"); A("v_min_u32 v30, s61, v30"); A("v_lshlrev_b32 v30, 8, v30")
        self.mov_s(63, F13_OFF)
        A(f"buffer_load_dword v31, v30, {srd(SWS)}, s63 offen sc1"); vm.add(("f13", 0))
        A("v_lshlrev_b32 v2, 4, v1"); A("v_add_u32 v3, 56320, v2")
        def rd(tau):
            ad = "v2" if tau < 11 else "v3"; o = (tau if tau < 11 else tau - 11) * 5120
            for dt in range(5):
                A(f"ds_read_b128 {v(60+20*(tau&1)+4*dt,4)}, {ad} offset:{o+dt*1024}")
        rd(0)
        for tau in range(21):
            if tau < 20:
                rd(tau + 1); A(f"s_waitcnt vmcnt({vm.wait(('a3', tau))}) lgkmcnt(5)")
            else:
                A("s_waitcnt vmcnt(0) lgkmcnt(0)")
            for dt in range(5):
                d = v(40 + 4 * dt, 4)
                A(f"v_mfma_f32_16x16x32_bf16 {d}, {a(4*tau,4)}, {v(60+20*(tau&1)+4*dt,4)}, {'0' if tau == 0 else d}")
                if dt == 1: ld()
        self.rp2_unit()
        lab = A.newlabel("L_f2skip")
        A("s_cmp_ge_u32 s63, 540"); A(f"s_cbranch_scc1 {lab}")
        A("s_lshl_b32 s56, s56, 8"); A(f"s_add_u32 s56, s56, {hex(F2_OFF)}")
        self.atomic_inc_lane0("s56", vt=(8, 9))
        A.label(lab)
        self.p35_roles()
        XB = self.XB
        A(f"s_lshr_b32 s56, {s(sW)}, 1"); A("s_mul_i32 s56, s56, 5120"); A(f"s_and_b32 s57, {s(sW)}, 1"); A("s_lshl_b32 s57, s57, 3")
        A("s_add_u32 s56, s56, s57"); A(f"s_add_u32 s56, s56, {XB}")
        A("v_add_u32 v8, s56, v2")
        for dt in range(5):
            A(f"v_cvt_pk_bf16_f32 {v(60+2*dt)}, {v(40+4*dt)}, {v(41+4*dt)}")
            A(f"v_cvt_pk_bf16_f32 {v(61+2*dt)}, {v(42+4*dt)}, {v(43+4*dt)}")
            A(f"ds_write_b64 v8, {v(60+2*dt,2)} offset:{dt*1024}")
        A("s_waitcnt lgkmcnt(0)"); A("s_barrier")
        A(f"v_add_u32 v8, {XB}, v2")
        for u in range(2):
            for dt in range(5):
                A(f"ds_read_b128 {v(60+20*u+4*dt,4)}, v8 offset:{(5*u+dt)*1024}")
        X1 = self.X1
        for dt in range(5):
            for h in range(2):
                xr = 200 + 2 * dt + h
                A(f"v_lshlrev_b32 {v(X1+4*dt+2*h)}, 16, {v(xr)}")
                A(f"v_and_b32 {v(X1+4*dt+2*h+1)}, 0xffff0000, {v(xr)}")
        A("s_waitcnt lgkmcnt(5)")
        for dt in range(5):
            A(f"v_mfma_f32_16x16x32_bf16 {v(100+4*dt,4)}, {v(60+4*dt,4)}, v[210:213], 0")
        A("s_waitcnt lgkmcnt(0)")
        for dt in range(5):
            A(f"v_mfma_f32_16x16x32_bf16 {v(100+4*dt,4)}, {v(80+4*dt,4)}, v[214:217], {v(100+4*dt,4)}")
        A("v_lshrrev_b32 v6, 1, v5"); A("v_and_b32 v7, 1, v5")
        A("v_lshlrev_b32 v8, 10, v6"); A("v_lshl_add_u32 v8, v7, 9, v8"); A("v_lshl_add_u32 v8, v4, 4, v8")
        A("v_lshlrev_b32 v9, 9, v6"); A("v_lshl_add_u32 v9, v4, 4, v9"); A("v_lshl_add_u32 v9, v7, 3, v9"); A("v_add_u32 v9, 4096, v9")
        A("s_lshl_b32 s56, s54, 1"); A(f"s_lshr_b32 s57, {s(sW)}, 1"); A("s_add_u32 s56, s56, s57"); A("s_mul_i32 s56, s56, 40960")
        A("s_mul_i32 s57, s55, 5120"); A("s_add_u32 s56, s56, s57")
        A(f"s_and_b32 s57, {s(sW)}, 1"); A("s_lshl_b32 s57, s57, 8"); A("s_add_u32 s56, s56, s57"); A(f"s_add_u32 s56, s56, {hex(X1C_OFF)}")
        for dt in range(5):
            for h in (0, 2):
                A(f"v_pk_fma_f32 {v(X1+4*dt+h,2)}, {v(160+4*dt+h,2)}, {v(100+4*dt+h,2)}, {v(X1+4*dt+h,2)}")
        for dt in range(5):
            for h in (0, 2):
                A(f"v_pk_mul_f32 {v(100+4*dt+h,2)}, {v(X1+4*dt+h,2)}, {v(180+4*dt+h,2)}")
        for dt in range(5):
            A(f"v_cvt_pk_bf16_f32 {v(60+2*dt)}, {v(100+4*dt)}, {v(101+4*dt)}")
            A(f"v_cvt_pk_bf16_f32 {v(61+2*dt)}, {v(102+4*dt)}, {v(103+4*dt)}")
        A(f"buffer_store_dwordx4 v[60:63], v8, {srd(SWS)}, s56 offen sc1")
        A(f"buffer_store_dwordx4 v[64:67], v8, {srd(SWS)}, s56 offen offset:2048 sc1")
        A(f"buffer_store_dwordx2 v[68:69], v9, {srd(SWS)}, s56 offen sc1")
        A(f"v_pk_add_f32 v[20:21], {v(X1,2)}, {v(X1+2,2)}")
        A(f"v_pk_mul_f32 v[22:23], {v(X1,2)}, {v(X1,2)}")
        A(f"v_pk_fma_f32 v[22:23], {v(X1+2,2)}, {v(X1+2,2)}, v[22:23]")
        for k in range(2, 10):
            A(f"v_pk_add_f32 v[20:21], v[20:21], {v(X1+2*k,2)}")
            A(f"v_pk_fma_f32 v[22:23], {v(X1+2*k,2)}, {v(X1+2*k,2)}, v[22:23]")
        A("v_add_f32 v20, v20, v21"); A("v_add_f32 v21, v22, v23")
        for sw in ("v_permlane16_swap_b32", "v_permlane32_swap_b32"):
            A("v_mov_b32 v22, v20"); A("v_mov_b32 v23, v21")
            A(f"{sw} v20, v22"); A(f"{sw} v21, v23")
            A("v_add_f32 v20, v20, v22"); A("v_add_f32 v21, v21, v23")
        A("s_lshl_b32 s56, s55, 14"); A("s_lshl_b32 s57, s54, 9"); A("s_add_u32 s56, s56, s57"); A(f"s_lshl_b32 s57, {s(sW)}, 7"); A("s_add_u32 s56, s56, s57")
        A(f"s_add_u32 s56, s56, {hex(ST2_OFF)}")
        A("v_lshlrev_b32 v8, 3, v4")
        A("s_mov_b64 s[60:61], exec"); A("s_mov_b64 exec, 0xffff")
        A(f"buffer_store_dwordx2 v[20:21], v8, {srd(SWS)}, s56 offen sc1")
        A("s_mov_b64 exec, s[60:61]")
        A("s_lshl_b32 s76, s54, 1"); A(f"s_lshr_b32 s57, {s(sW)}, 1"); A("s_add_u32 s76, s76, s57"); A("s_lshl_b32 s76, s76, 8")
        A("s_lshl_b32 s57, s55, 3"); A("s_add_u32 s76, s76, s57"); A(f"s_and_b32 s57, {s(sW)}, 1"); A("s_lshl_b32 s57, s57, 2"); A("s_add_u32 s76, s76, s57")
        A(f"s_add_u32 s76, s76, {hex(S3_OFF)}")

    def p4_pre(self):
        A = self.A
        self.mov_s(63, F13_OFF)
        self.check_lines(30, 31, "s63", 8)
        self.p4_roles()
        vm = VM()
        A("v_lshlrev_b32 v2, 4, v1")
        A("v_lshrrev_b32 v4, 5, v0"); A("v_and_b32 v5, 31, v0")
        A("v_lshlrev_b32 v6, 8, v4"); A("v_lshl_add_u32 v6, v5, 3, v6")
        A("s_mul_i32 s57, s55, 1792"); A(f"s_add_u32 s57, s57, {hex(UVP_OFF)}")
        for p in range(8):
            A(f"buffer_load_dwordx2 {v(12+2*p,2)}, v6, {srd(SWS)}, s57 offen sc1"); vm.add(("uv", p))
            if p < 7: A(f"s_add_u32 s57, s57, {108*256}")
        A("s_mul_i32 s57, s55, 286720"); A(f"s_add_u32 s57, s57, {hex(W13_OFF)}")
        A(f"s_mul_i32 s58, {s(sW)}, 40960"); A("s_add_u32 s68, s57, s58")
        A(f"s_and_b32 s58, {s(sW)}, 1"); A("s_add_u32 s58, s58, 4"); A("s_mul_i32 s58, s58, 40960"); A("s_add_u32 s69, s57, s58")
        A(f"s_lshr_b32 s58, {s(sW)}, 1"); A("s_lshl_b32 s58, s58, 10"); A("s_add_u32 s69, s69, s58")
        A(f"s_lshl_b32 s58, {s(sW)}, 10"); A("s_add_u32 s70, s57, s58"); A(f"s_add_u32 s70, s70, {6*40960}")
        A(f"s_lshl_b32 s71, {s(sW)}, 10")
        q = []
        NG = self.P4_NS // self.P4_GS
        P1 = self.o.get("p4p1", 3)
        for g in range(P1): self.p4_dma_group(g, q)
        n1 = len(q)
        A(f"s_waitcnt vmcnt({n1 + 8})")
        self.flag_store_lane0("s76", vt=(8, 9))
        self.stamp(12)
        for g in range(P1, NG): self.p4_dma_group(g, q)
        n2 = len(q) - n1
        A(f"s_waitcnt vmcnt({min(len(q) + 1, 63)})")
        for p in range(1, 8):
            A(f"v_add_f32 v12, v12, {v(12+2*p)}"); A(f"v_add_f32 v13, v13, {v(13+2*p)}")
        for x, dst in ((12, 26), (13, 27)):
            A(f"v_cvt_pk_bf16_f32 v11, {v(x)}, {v(x)}"); A("v_lshlrev_b32 v14, 16, v11")
            A(f"v_sub_f32 v14, {v(x)}, v14")
            A(f"v_cvt_pk_bf16_f32 v14, v14, v14")
            A("v_and_b32 v11, 0xffff, v11"); A(f"v_lshl_or_b32 {v(dst)}, v14, 16, v11")
        A("v_mov_b32 v28, 0"); A("v_mov_b32 v29, 0")
        A("v_lshlrev_b32 v6, 9, v4"); A("v_lshl_add_u32 v6, v5, 4, v6"); A(f"v_add_u32 v6, {self.EXT}, v6")
        A("v_cmp_gt_u32 vcc, 224, v0"); A("s_and_saveexec_b64 s[60:61], vcc")
        A("ds_write_b128 v6, v[26:29]")
        A("s_mov_b64 exec, s[60:61]")
        self.stamp(13)
        A("s_lshl_b32 s57, s54, 2"); A(f"s_add_u32 s57, s57, {s(sW)}"); A("s_lshl_b32 s57, s57, 8"); A(f"s_add_u32 s57, s57, {hex(S3_OFF)}")
        A("v_and_b32 v8, 15, v1"); A("v_lshlrev_b32 v8, 2, v8")
        self.poll(8, "s57", 1, vt=9)
        A("s_waitcnt lgkmcnt(0)")
        self.vm4 = []
    def p4_roles(self):
        A = self.A
        A(f"s_lshr_b32 s54, {s(sXC)}, 2"); A("s_lshl_b32 s54, s54, 3"); A(f"s_and_b32 s55, {s(sI)}, 7"); A("s_add_u32 s54, s54, s55")
        A(f"s_and_b32 s55, {s(sXC)}, 3"); A("s_lshl_b32 s55, s55, 2"); A(f"s_lshr_b32 s56, {s(sI)}, 3"); A("s_add_u32 s55, s55, s56")
    def p35_roles(self):
        A = self.A
        A(f"s_lshr_b32 s54, {s(sI)}, 3"); A("s_lshl_b32 s54, s54, 3"); A(f"s_add_u32 s54, s54, {s(sXC)}")
        A(f"s_and_b32 s55, {s(sI)}, 7")
    def p5_pre(self):
        A = self.A
        A("s_waitcnt vmcnt(0)")
        self.p4_roles()
        A("s_lshl_b32 s57, s54, 2"); A(f"s_add_u32 s57, s57, {s(sW)}"); A("s_lshl_b32 s57, s57, 9"); A("s_lshl_b32 s58, s55, 2"); A("s_add_u32 s57, s57, s58")
        A(f"s_add_u32 s57, s57, {hex(S4_OFF)}")
        self.flag_store_lane0("s57", vt=(8, 9))
        self.stamp(16)
        self.p35_roles()
        A("s_mul_i32 s60, s55, 5"); A("s_add_u32 s61, s60, 4"); A("s_lshr_b32 s60, s60, 2"); A("s_lshr_b32 s61, s61, 2")
        A("v_and_b32 v30, 1, v1"); A("v_add_u32 v30, s60, v30"); A("v_min_u32 v30, s61, v30"); A("v_lshlrev_b32 v30, 8, v30")
        self.mov_s(63, F2_OFF)
        self.poll(30, "s63", 54, vt=31)
        A("s_barrier")
        n0 = len(self.A.lines)
        super().p5_pre()
        self.stamp(17)
        A(f"s_lshl_b32 s57, s54, 1"); A(f"s_lshr_b32 s58, {s(sW)}, 1"); A("s_add_u32 s57, s57, s58"); A("s_lshl_b32 s57, s57, 9"); A(f"s_add_u32 s57, s57, {hex(S4_OFF)}")
        A("v_and_b32 v8, 15, v1"); A("v_lshlrev_b32 v8, 2, v8")
        self.poll(8, "s57", 1, vt=9)

    def build(self):
        A = self.A
        st = self.stamp
        self.prologue()
        self.p1()
        self.arrive1(); st(2)
        self.b1_dead(); st(5)
        A("s_waitcnt vmcnt(0)") if False else None
        self.gb_wait(0); st(6)
        if not self.end_if_stop(1):
            self.p2_main(); st(7)
            if not self.end_if_stop(2):
                self.rest()
        self.ts_flush()
        A.label("L_end")
        A("s_endpgm")
        return self.text()
    def rest(self):
        st = self.stamp
        self.b2(); st(10); self.p3_main(); st(11)
        if self.end_if_stop(3): return
        self.p4_pre(); st(14); self.p4_main(); st(15)
        if self.end_if_stop(4): return
        self.p5_pre(); st(18); self.p5_main(); st(19)

if __name__ == "__main__":
    out = sys.argv[1]; stop = int(sys.argv[2]) if len(sys.argv) > 2 else 99
    opts = {}
    for kv in sys.argv[3:]:
        k, _, val = kv.partition("=")
        opts[k] = int(val) if val.lstrip("-").isdigit() else (val or 1)
    open(out, "w").write(Gen(stop, opts).build())
```

```python
import re

def v(i, n=1): return f"v{i}" if n == 1 else f"v[{i}:{i+n-1}]"
def a(i, n=1): return f"a{i}" if n == 1 else f"a[{i}:{i+n-1}]"
def s(i, n=1): return f"s{i}" if n == 1 else f"s[{i}:{i+n-1}]"

REG = re.compile(r"^-?\|?(abs\()?([vas])(\d+|\[(\d+):(\d+)\])\)?\|?$")
def regs_of(op):
    op = op.strip()
    if op in ("vcc", "vcc_lo", "vcc_hi"): return {("s", "vcc")}
    if op in ("exec", "exec_lo", "exec_hi"): return {("s", "exec")}
    if op == "m0": return {("s", "m0")}
    m = REG.match(op)
    if not m: return set()
    k = m.group(2)
    if m.group(4) is not None:
        return {(k, i) for i in range(int(m.group(4)), int(m.group(5)) + 1)}
    return {(k, int(m.group(3)))}

TRANS = ("v_exp_f32", "v_log_f32", "v_rcp_f32", "v_rsq_f32", "v_sqrt_f32", "v_sin_f32", "v_cos_f32", "v_rcp_iflag_f32")

class Ins:
    __slots__ = ("text", "op", "dst", "src", "kind", "passes", "srcC", "label", "target")
    def __init__(self, text):
        self.text = text
        t = text.split(";")[0].strip()
        self.label = None; self.target = None
        self.dst = set(); self.src = set(); self.kind = "other"; self.passes = 0; self.srcC = set(); self.op = ""
        if not t or t.startswith("."):
            self.kind = "none"; return
        if t.endswith(":"):
            self.kind = "label"; self.label = t[:-1]; return
        parts = t.split(None, 1)
        op = parts[0]; self.op = op
        rest = parts[1] if len(parts) > 1 else ""
        ops = [x.strip() for x in re.split(r",(?![^\[]*\])", rest)] if rest else []
        ops2 = []
        for o in ops:
            ops2.append(o.split()[0] if o else o)
        ops = ops2
        R = [regs_of(o) for o in ops]
        allr = lambda lst: set().union(*lst) if lst else set()
        if op.startswith("v_mfma"):
            self.kind = "mfma"; self.dst = R[0]; self.src = allr(R[1:]); self.srcC = R[3] if len(R) > 3 else set()
            self.passes = 8 if "32x32" in op else 4
            if op.endswith("x2_f32") or "32x32x2" in op: self.passes = 16
            if "16x16x4_f32" in op: self.passes = 8
        elif op.startswith("v_cmp"):
            self.kind = "valu"; self.dst = R[0]; self.src = allr(R[1:])
        elif op.startswith("v_permlane"):
            self.kind = "valu"; self.dst = allr(R[:2]); self.src = allr(R[:2])
        elif op.startswith(("v_add_co", "v_sub_co", "v_subrev_co")):
            self.kind = "valu"; self.dst = allr(R[:2]); self.src = allr(R[2:])
        elif op.startswith(("v_addc_co", "v_subb_co")):
            self.kind = "valu"; self.dst = allr(R[:2]); self.src = allr(R[2:])
        elif op.startswith(("v_fmac", "v_dot2c", "v_pk_fmac", "v_writelane")):
            self.kind = "valu"; self.dst = R[0]; self.src = allr(R)
        elif op.startswith("v_"):
            self.kind = "valu"; self.dst = R[0] if R else set(); self.src = allr(R[1:])
            if op.startswith("v_cndmask") and len(ops) == 3: self.src |= {("s", "vcc")}
        elif op.startswith("ds_"):
            self.kind = "ds"
            if op.startswith(("ds_read", "ds_swizzle", "ds_bpermute", "ds_permute")):
                self.dst = R[0]; self.src = allr(R[1:])
            else:
                self.src = allr(R)
        elif op.startswith(("buffer_", "global_")):
            self.kind = "vmem"
            islds = " lds" in (" " + rest + " ") and re.search(r"\blds\b", rest)
            if op.startswith(("buffer_load", "global_load")):
                if islds or "_lds_" in op:
                    self.src = allr(R) | {("s", "m0")}; self.kind = "vmem_lds"
                else:
                    self.dst = R[0]; self.src = allr(R[1:])
                    if "d16" in op: self.src |= R[0]
            elif "atomic" in op:
                self.src = allr(R)
                if re.search(r"\bsc0\b", rest): self.dst = R[0]
            else:
                self.src = allr(R)
                self.kind = "vmem_st"
        elif op.startswith("s_"):
            self.kind = "salu"
            if op.startswith(("s_cbranch", "s_branch")):
                self.kind = "branch"; self.target = ops[0]
            elif op.startswith(("s_cmp", "s_waitcnt", "s_barrier", "s_nop", "s_endpgm", "s_sleep", "s_setprio", "s_bitcmp")):
                self.src = allr(R)
            elif op.startswith("s_load") or op.startswith("s_memtime") or op.startswith("s_memrealtime"):
                self.dst = R[0]; self.src = allr(R[1:])
            elif "saveexec" in op:
                self.dst = R[0] | {("s", "exec")}; self.src = allr(R[1:]) | {("s", "exec")}
            else:
                self.dst = R[0] if R else set(); self.src = allr(R[1:])
    def nstates(self):
        if self.kind in ("none", "label"): return 0
        if self.op == "s_nop":
            return int(self.text.split(";")[0].split()[1], 0) + 1
        return 1

def need(p, c):
    n = 0
    vreg = lambda S: {r for r in S if r[0] in "va"}
    sreg = lambda S: {r for r in S if r[0] == "s"}
    if p.kind == "valu":
        pv = vreg(p.dst); ps = sreg(p.dst)
        if c.kind == "mfma" and pv & c.src: n = max(n, 2)
        if c.kind == "valu":
            if pv & c.src:
                if c.op.startswith("v_permlane") or "dpp" in c.text or "row_" in c.text or "quad_perm" in c.text: n = max(n, 2)
                if c.op.startswith(("v_readlane", "v_readfirstlane")): n = max(n, 1)
                if p.op in TRANS or (p.op.endswith("_e32") and p.op[:-4] in TRANS):
                    if c.op not in TRANS: n = max(n, 1)
                    else: n = max(n, 1)
            if ps & c.src:
                n = max(n, 4 if c.op.startswith(("v_readlane", "v_writelane")) else 2)
        if c.kind in ("vmem", "vmem_lds", "vmem_st") and ps & c.src: n = max(n, 5)
        if c.kind == "branch" and ("vcc" in c.op or "exec" in c.op) and ps: n = max(n, 5)
        if c.kind == "ds" and False: pass
    if p.kind == "mfma":
        P = p.passes
        tab = {4: (6, 8, 8, 3), 8: (10, 12, 12, 7), 16: (18, 20, 20, 15)}[P]
        if c.kind == "mfma":
            if p.dst & c.srcC:
                if not (p.dst == c.srcC and p.passes == c.passes and p.op == c.op): n = max(n, tab[0])
            ab = c.src - c.srcC if not (c.srcC <= c.src and False) else c.src
            if p.dst & (c.src - c.srcC): n = max(n, tab[1])
            if p.dst & c.dst and not (p.dst & c.srcC): n = max(n, tab[0])
        elif c.kind in ("valu",):
            if p.dst & (c.src | c.dst): n = max(n, tab[2])
            if p.srcC & c.dst: n = max(n, tab[3])
        elif c.kind in ("ds", "vmem", "vmem_st", "vmem_lds"):
            if p.dst & (c.src | c.dst): n = max(n, tab[2])
            if p.srcC & c.dst: n = max(n, tab[3])
    if p.kind == "salu" and ("s", "m0") in p.dst and c.kind == "vmem_lds": n = max(n, 1)
    if p.kind == "vmem_st" and ("x4" in p.op or "x3" in p.op):
        data = p.src
        if c.kind == "valu" and vreg(c.dst) & data: n = max(n, 2)
        elif c.kind in ("ds", "vmem", "mfma") and vreg(c.dst) & data: n = max(n, 1)
    return n

MAXD = 21
class Asm:
    def __init__(self):
        self.lines = []
        self.nlab = 0
    def __call__(self, text):
        for l in text.split("\n"):
            if l.strip(): self.lines.append(l.strip())
    def label(self, name): self.lines.append(name + ":")
    def newlabel(self, base="L"):
        self.nlab += 1
        return f"{base}_{self.nlab}"
    def finalize(self, verbose=False):
        ins = [Ins(l) for l in self.lines]
        labels = {x.label: i for i, x in enumerate(ins) if x.kind == "label"}
        out = []
        nins = 0
        def check(hist, c, nskip=0):
            d = 0; req = 0
            for idx, p in enumerate(reversed(hist)):
                if d >= MAXD: break
                if p.kind in ("none", "label"): continue
                if idx >= nskip:
                    nd = need(p, c)
                    if nd > d: req = max(req, nd - d)
                d += p.nstates()
            return req
        def addnop(lst, n):
            while n > 0:
                k = min(n, 16)
                lst.append(Ins(f"s_nop {k-1}")); n -= k
        for i, c in enumerate(ins):
            if c.kind in ("none", "label"):
                out.append(c); continue
            req = check(out[-40:], c)
            if req: addnop(out, req); nins += req
            if c.kind == "branch" and c.target in labels:
                j = labels[c.target]; d = 1; extra = 0; hist = out[-40:] + [c]
                seq = []
                while j < len(ins) and len(seq) < MAXD:
                    t = ins[j]; j += 1
                    if t.kind in ("none", "label"): continue
                    r = check(hist + seq, t, nskip=len(seq))
                    extra = max(extra, r)
                    seq.append(t)
                    if t.kind == "branch" and t.op == "s_branch": break
                    if t.op == "s_endpgm": break
                if extra: addnop(out, extra); nins += extra
            out.append(c)
        if verbose: print(f"; hazard pass inserted {nins} wait states")
        return "\n".join(("" if x.kind == "label" else "  ") + x.text for x in out) + "\n"
```

```python
import sys
sys.path.insert(0, "dev")
from asmlib import Asm, v, a, s
import gen1, gen2
from gen2 import *
from gen2 import VM, f2u, srd

W13S_OFF = 0x1800000
W13_FS = 72 * 4096
WS_END = 0x1C80000
gen2.WS_END = WS_END
gen1.WS_END = WS_END
sDW, sW2, sM0, sTOK = 64, 65, 66, 67
sHS = 68
sF4P, sF4C, sH, sST, sF2, sS3 = 75, 77, 78, 79, 80, 81

class Gen3(gen2.Gen):
    def p3_small(self):
        A = self.A
        self.p35_roles()
        A("v_and_b32 v4, 15, v1"); A("v_lshrrev_b32 v5, 4, v1")
        A("v_mul_u32_u24 v6, 0xa000, v4"); A("v_lshl_add_u32 v6, v5, 3, v6")
        A(f"s_lshl_b32 s56, {s(sW)}, 9"); A("s_add_u32 s56, s56, s54"); A("s_mul_i32 s56, s56, 1280"); A("s_mul_i32 s57, s55, 160"); A("s_add_u32 s56, s56, s57")
        for dt in range(5):
            A(f"buffer_load_dwordx2 {v(200+2*dt,2)}, v6, {srd(SX)}, s56 offen offset:{32*dt}")
        A("v_lshlrev_b32 v7, 4, v5")
        A("s_mul_i32 s56, s55, 320"); A(f"s_add_u32 s57, s56, {hex(GA_OFF)}"); A(f"s_add_u32 s58, s56, {hex(CB1F_OFF)}")
        for dt in range(5):
            A(f"buffer_load_dwordx4 {v(160+4*dt,4)}, v7, {srd(SWS)}, s57 offen offset:{64*dt} sc1")
            A(f"buffer_load_dwordx4 {v(180+4*dt,4)}, v7, {srd(SWS)}, s58 offen offset:{64*dt} sc1")
    def p3_gdma(self):
        A = self.A
        self.p35_roles()
        A("v_lshlrev_b32 v2, 4, v1")
        A("s_mul_i32 s56, s55, 107520"); A(f"s_lshl_b32 s57, {s(sW)}, 10"); A("s_add_u32 s56, s56, s57"); A(f"s_add_u32 s56, s56, {hex(GP_OFF)}")
        for k in range(27):
            A(f"s_add_u32 m0, s57, {k*4096}")
            A(f"buffer_load_dwordx4 v2, {srd(SWS)}, s56 offen sc1 lds")
            if k < 26: A("s_add_u32 s56, s56, 4096")
    def b2(self):
        A = self.A
        self.p3_small()
        self.rp2_issue()
        self.stamp(8)
        A("s_waitcnt vmcnt(15)")
        A("s_barrier")
        lab = self.wave0_begin()
        self.gb_arrive(1)
        A.label(lab)
        self.stamp(9)
        self.p3_gdma()
        A("s_waitcnt vmcnt(27)")
        self.rp2_finish()
        self.p3_consts()
        self.stamp(20) if self.o.get("ts") == 1 else None
        self.gb_wait(1)


    def rp13_finish(self):
        A = self.A
        A("s_cmp_ge_u32 s2, 216"); A("s_cbranch_scc1 L_rp13_done")
        A("s_lshr_b32 s52, s2, 3"); A("s_and_b32 s53, s2, 7")
        self.rp13_addr(6, 7)
        A(f"s_lshl_b32 s54, {s(sW)}, 5"); A("v_add_u32 v6, s54, v6"); A("v_add_u32 v7, s54, v7")
        self.rp13_read(6, 7, 40)
        A("s_lshl_b32 s54, s52, 2"); A(f"s_add_u32 s54, s54, {s(sW)}")
        A("s_mul_i32 s55, s54, 9363"); A("s_lshr_b32 s55, s55, 16")
        A("s_mul_i32 s56, s55, 7"); A("s_sub_u32 s56, s54, s56")
        A("s_mul_i32 s57, s53, 5")
        A("s_mul_i32 s58, s57, 3"); A("s_add_u32 s58, s58, s56")
        A("s_mul_i32 s59, s56, 40"); A("s_add_u32 s59, s59, s57")
        A("s_cmp_lt_u32 s56, 3"); A("s_cselect_b32 s58, s58, s59"); A("s_movk_i32 s60, 0x400"); A("s_cselect_b32 s59, 3072, s60")
        A("s_lshl_b32 s58, s58, 10"); A(f"s_mul_i32 s55, s55, {W13_FS}"); A("s_add_u32 s54, s58, s55"); A(f"s_add_u32 s54, s54, {hex(W13S_OFF)}")
        A("v_lshlrev_b32 v8, 4, v1")
        for k5 in range(5):
            A(f"s_waitcnt lgkmcnt({8-2*k5})")
            A(f"buffer_store_dwordx4 {v(40+4*k5,4)}, v8, {srd(SWS)}, s54 offen sc1")
            if k5 < 4: A("s_add_u32 s54, s54, s59")
        A.label("L_rp13_done")
    def tile_of(self, dst, n, tmp):
        A = self.A
        t0, t1 = tmp
        A(f"s_lshr_b32 {s(t0)}, {s(n)}, 4"); A(f"s_and_b32 {s(t1)}, {s(n)}, 15")
        A(f"s_mul_i32 {s(t1)}, {s(t1)}, 7"); A(f"s_add_u32 {s(dst)}, {s(t0)}, {s(t1)}")
        A(f"s_sub_u32 {s(t0)}, {s(n)}, 48")
        A(f"s_mul_i32 {s(t1)}, {s(t0)}, 4370"); A(f"s_lshr_b32 {s(t1)}, {s(t1)}, 16")
        A(f"s_mul_i32 s48, {s(t1)}, 15"); A(f"s_sub_u32 {s(t0)}, {s(t0)}, s48")
        A(f"s_mul_i32 {s(t0)}, {s(t0)}, 7"); A(f"s_add_u32 {s(t0)}, {s(t0)}, {s(t1)}"); A(f"s_add_u32 {s(t0)}, {s(t0)}, 3")
        A(f"s_cmp_lt_u32 {s(n)}, 48"); A(f"s_cselect_b32 {s(dst)}, {s(dst)}, {s(t0)}")
    def rp2_issue(self):
        A = self.A
        self.rp2_unit()
        A("s_cmp_ge_u32 s63, 540"); A("s_cbranch_scc1 L_rp2_i_done")
        A("v_lshrrev_b32 v4, 3, v1"); A("v_and_b32 v5, 7, v1")
        A("v_mul_u32_u24 v4, 1280, v4"); A("v_lshl_add_u32 v4, v5, 4, v4")
        A(f"s_lshl_b32 s54, {s(sW)}, 12"); A(f"s_add_u32 s54, s54, {self.STG2}")
        A("s_lshl_b32 s58, s56, 7")
        for half in range(2):
            A("s_lshl_b32 s60, s55, 1")
            if half: A("s_add_u32 s60, s60, 1")
            self.tile_of(59, 60, (61, 62))
            A(f"s_mul_i32 s57, s59, {16*1280}"); A("s_add_u32 s57, s57, s58")
            for n in range(2):
                A(f"s_add_u32 m0, s54, {(2*half+n)*1024}")
                A(f"buffer_load_dwordx4 v4, {srd(SW2)}, s57 offen lds")
                if n == 0: A(f"s_add_u32 s57, s57, {8*1280}")
        A.label("L_rp2_i_done")
    def p4_roles(self):
        A = self.A
        A(f"s_lshr_b32 s54, {s(sI)}, 3"); A("s_lshl_b32 s54, s54, 2"); A(f"s_lshr_b32 s55, {s(sXC)}, 1"); A("s_add_u32 s54, s54, s55")
        A(f"s_and_b32 s55, {s(sXC)}, 1"); A("s_lshl_b32 s55, s55, 3"); A(f"s_and_b32 s56, {s(sI)}, 7"); A("s_add_u32 s55, s55, s56")
    ROT = 7
    EXT = 157696
    def ring_m0(self, R):
        return ((R + self.ROT) % 9) * 16384
    def ring_pos(self, e):
        return (e + 16 * self.ROT) % 144
    def dma_ops(self, R):
        L = []
        for j in range(4):
            l = [f"buffer_load_dwordx4 v2, {srd(SWS)}, {s(sDW)} offen" + (f" offset:{1024*j}" if j else "") + " sc1 lds"]
            if j == 3:
                if R == 17: l.append(f"s_mov_b32 {s(sDW)}, {s(sW2)}")
                else: l.append(f"s_add_u32 {s(sDW)}, {s(sDW)}, 16384")
                l.append(f"s_add_u32 m0, {s(sM0)}, {self.ring_m0(R + 1)}")
            L.append(l)
        return L
    def ring_setup(self):
        A = self.A
        self.p4_roles()
        A(f"s_lshl_b32 {s(sM0)}, {s(sW)}, 12")
        A(f"s_mul_i32 {s(sDW)}, s55, {W13_FS}"); A(f"s_add_u32 {s(sDW)}, {s(sDW)}, {s(sM0)}"); A(f"s_add_u32 {s(sDW)}, {s(sDW)}, {hex(W13S_OFF)}")
        A(f"s_and_b32 s56, {s(sI)}, 7"); A(f"s_mul_i32 s56, s56, {54*5120}"); A(f"s_add_u32 s56, s56, {s(sM0)}"); A(f"s_add_u32 {s(sW2)}, s56, {hex(W2P_OFF)}")
        A(f"s_add_u32 m0, {s(sM0)}, {self.ring_m0(0)}")

    def p2_main(self):
        n0 = len(self.A.lines)
        super().p2_main()
        L = self.A.lines
        i0 = next(i for i in range(n0, len(L)) if L[i].startswith("s_cmp_ge_u32 s2, 216") and L[i+1].startswith("s_cbranch_scc1 L_p2_done") and L[i+2].startswith("s_waitcnt vmcnt(0)"))
        i1 = next(i for i in range(i0, len(L)) if L[i] == "L_p2_done:")
        del L[i0:i1]

    def p3_main(self):
        A = self.A
        PF = self.o.get("p3pf", 6)
        NPRE = self.o.get("npre", 6)
        self.ring_setup()
        self.p35_roles()
        A("v_and_b32 v4, 15, v1"); A("v_lshrrev_b32 v5, 4, v1")
        A("v_lshrrev_b32 v6, 2, v4"); A("v_lshlrev_b32 v6, 8, v6"); A("v_lshrrev_b32 v7, 1, v5"); A("v_lshl_add_u32 v6, v7, 7, v6")
        A("v_and_b32 v7, 3, v4"); A("v_lshl_add_u32 v6, v7, 5, v6"); A("v_and_b32 v7, 1, v5"); A("v_lshl_add_u32 v6, v7, 4, v6")
        A("s_mul_i32 s56, s54, 86016"); A(f"s_lshl_b32 s57, {s(sW)}, 10"); A("s_add_u32 s56, s56, s57"); A(f"s_add_u32 s56, s56, {hex(A3_OFF)}")
        vm = VM()
        nl = [0]
        def ld():
            if nl[0] >= 21: return False
            A(f"buffer_load_dwordx4 {a(4*nl[0],4)}, v6, {srd(SWS)}, s56 offen sc1"); vm.add(("a3", nl[0]))
            if nl[0] < 20: A("s_add_u32 s56, s56, 4096")
            nl[0] += 1
            return True
        for k in range(PF): ld()
        A("v_lshlrev_b32 v2, 4, v1"); A("v_add_u32 v3, 56320, v2")
        self.rp2_unit()
        A("s_lshl_b32 s62, s56, 8"); A(f"s_add_u32 s62, s62, {hex(F2_OFF)}")
        A("s_cmp_ge_u32 s63, 540"); A("s_cselect_b32 s62, 0x7000000, s62")
        self.atomic_inc_lane0("s62", vt=(8, 9)); vm.add(("f2", 0))
        A("v_lshrrev_b32 v7, 5, v0"); A("v_and_b32 v8, 31, v0")
        A("v_lshlrev_b32 v9, 8, v7"); A("v_lshl_add_u32 v9, v8, 3, v9")
        extra = []
        self.p4_roles()
        A("s_mul_i32 s58, s55, 1792"); A(f"s_add_u32 s58, s58, {hex(UVP_OFF)}")
        self.p35_roles()
        A("s_mul_i32 s56, s54, 86016"); A(f"s_lshl_b32 s57, {s(sW)}, 10"); A("s_add_u32 s56, s56, s57"); A(f"s_add_u32 s56, s56, {hex(A3_OFF + PF*4096)}")
        for p in range(8):
            l = [f"buffer_load_dwordx2 {v(120+2*p,2)}, v9, {srd(SWS)}, s58 offen sc1"]
            if p < 7: l.append(f"s_add_u32 s58, s58, {108*256}")
            extra.append((l, ("uv", p)))
        for R in range(2):
            for l in self.dma_ops(R): extra.append((l, ("dma", R)))
        def ex():
            if ld(): return
            if extra:
                l, tag = extra.pop(0)
                for x in l: A(x)
                vm.add(tag)
        def rd(tau):
            ad = "v2" if tau < 11 else "v3"; o = (tau if tau < 11 else tau - 11) * 5120
            for dt in range(5):
                A(f"ds_read_b128 {v(60+20*(tau&1)+4*dt,4)}, {ad} offset:{o+dt*1024}")
        rd(0)
        for tau in range(21):
            if tau < 20:
                rd(tau + 1); A(f"s_waitcnt vmcnt({vm.wait(('a3', tau))}) lgkmcnt(5)")
            else:
                A(f"s_waitcnt vmcnt({vm.wait(('a3', tau))}) lgkmcnt(0)")
            for dt in range(5):
                d = v(40 + 4 * dt, 4)
                A(f"v_mfma_f32_16x16x32_bf16 {d}, {a(4*tau,4)}, {v(60+20*(tau&1)+4*dt,4)}, {'0' if tau == 0 else d}")
                if dt == 1 or (dt == 3 and nl[0] >= 21): ex()
        while extra: ex()
        XB = self.XB
        A(f"s_lshr_b32 s56, {s(sW)}, 1"); A("s_mul_i32 s56, s56, 5120"); A(f"s_and_b32 s57, {s(sW)}, 1"); A("s_lshl_b32 s57, s57, 3")
        A("s_add_u32 s56, s56, s57"); A(f"s_add_u32 s56, s56, {XB}")
        A("v_add_u32 v8, s56, v2")
        for dt in range(5):
            A(f"v_cvt_pk_bf16_f32 {v(60+2*dt)}, {v(40+4*dt)}, {v(41+4*dt)}")
            A(f"v_cvt_pk_bf16_f32 {v(61+2*dt)}, {v(42+4*dt)}, {v(43+4*dt)}")
            A(f"ds_write_b64 v8, {v(60+2*dt,2)} offset:{dt*1024}")
        A("s_waitcnt lgkmcnt(0)"); A("s_barrier")
        pend = []
        for R in range(2, 9):
            for l in self.dma_ops(R): pend.append((l, ("dma", R)))
        def dm(n=1):
            while n > 0 and pend:
                l, tag = pend.pop(0)
                for x in l: A(x)
                vm.add(tag); n -= 1
        npre = [NPRE]
        def dmp():
            if npre[0] > 0: dm(); npre[0] -= 1
        A(f"v_add_u32 v8, {XB}, v2")
        for u in range(2):
            for dt in range(5):
                A(f"ds_read_b128 {v(60+20*u+4*dt,4)}, v8 offset:{(5*u+dt)*1024}")
        dmp()
        X1 = self.X1
        for dt in range(5):
            for h in range(2):
                xr = 200 + 2 * dt + h
                A(f"v_lshlrev_b32 {v(X1+4*dt+2*h)}, 16, {v(xr)}")
                A(f"v_and_b32 {v(X1+4*dt+2*h+1)}, 0xffff0000, {v(xr)}")
            if dt in (1, 3): dmp()
        A("s_waitcnt lgkmcnt(5)")
        for dt in range(5):
            A(f"v_mfma_f32_16x16x32_bf16 {v(100+4*dt,4)}, {v(60+4*dt,4)}, v[210:213], 0")
        dmp()
        A("s_waitcnt lgkmcnt(0)")
        for dt in range(5):
            A(f"v_mfma_f32_16x16x32_bf16 {v(100+4*dt,4)}, {v(80+4*dt,4)}, v[214:217], {v(100+4*dt,4)}")
        dmp()
        A("v_lshrrev_b32 v6, 1, v5"); A("v_and_b32 v7, 1, v5")
        A("v_lshlrev_b32 v8, 10, v6"); A("v_lshl_add_u32 v8, v7, 9, v8"); A("v_lshl_add_u32 v8, v4, 4, v8")
        A("v_lshlrev_b32 v10, 9, v6"); A("v_lshl_add_u32 v10, v4, 4, v10"); A("v_lshl_add_u32 v10, v7, 3, v10"); A("v_add_u32 v10, 4096, v10")
        A("s_lshl_b32 s56, s54, 1"); A(f"s_lshr_b32 s57, {s(sW)}, 1"); A("s_add_u32 s56, s56, s57"); A("s_mul_i32 s56, s56, 40960")
        A("s_mul_i32 s57, s55, 5120"); A("s_add_u32 s56, s56, s57")
        A(f"s_and_b32 s57, {s(sW)}, 1"); A("s_lshl_b32 s57, s57, 8"); A("s_add_u32 s56, s56, s57"); A(f"s_add_u32 s56, s56, {hex(X1C_OFF)}")
        dmp()
        for dt in range(5):
            for h in (0, 2):
                A(f"v_pk_fma_f32 {v(X1+4*dt+h,2)}, {v(160+4*dt+h,2)}, {v(100+4*dt+h,2)}, {v(X1+4*dt+h,2)}")
        dmp()
        for dt in range(5):
            for h in (0, 2):
                A(f"v_pk_mul_f32 {v(100+4*dt+h,2)}, {v(X1+4*dt+h,2)}, {v(180+4*dt+h,2)}")
        dmp()
        while npre[0] > 0: dmp()
        for dt in range(5):
            A(f"v_cvt_pk_bf16_f32 {v(60+2*dt)}, {v(100+4*dt)}, {v(101+4*dt)}")
            A(f"v_cvt_pk_bf16_f32 {v(61+2*dt)}, {v(102+4*dt)}, {v(103+4*dt)}")
        A(f"buffer_store_dwordx4 v[60:63], v8, {srd(SWS)}, s56 offen sc1"); vm.add(("st", 0))
        A(f"buffer_store_dwordx4 v[64:67], v8, {srd(SWS)}, s56 offen offset:2048 sc1"); vm.add(("st", 1))
        A(f"buffer_store_dwordx2 v[68:69], v10, {srd(SWS)}, s56 offen sc1"); vm.add(("st", 2))
        A(f"v_pk_add_f32 v[20:21], {v(X1,2)}, {v(X1+2,2)}")
        A(f"v_pk_mul_f32 v[22:23], {v(X1,2)}, {v(X1,2)}")
        A(f"v_pk_fma_f32 v[22:23], {v(X1+2,2)}, {v(X1+2,2)}, v[22:23]")
        for k in range(2, 10):
            A(f"v_pk_add_f32 v[20:21], v[20:21], {v(X1+2*k,2)}")
            A(f"v_pk_fma_f32 v[22:23], {v(X1+2*k,2)}, {v(X1+2*k,2)}, v[22:23]")
        A("v_add_f32 v20, v20, v21"); A("v_add_f32 v21, v22, v23")
        for sw in ("v_permlane16_swap_b32", "v_permlane32_swap_b32"):
            A("v_mov_b32 v22, v20"); A("v_mov_b32 v23, v21")
            A(f"{sw} v20, v22"); A(f"{sw} v21, v23")
            A("v_add_f32 v20, v20, v22"); A("v_add_f32 v21, v21, v23")
        A("s_lshl_b32 s56, s55, 14"); A("s_lshl_b32 s57, s54, 9"); A("s_add_u32 s56, s56, s57"); A(f"s_lshl_b32 s57, {s(sW)}, 7"); A("s_add_u32 s56, s56, s57")
        A(f"s_add_u32 s56, s56, {hex(ST2_OFF)}")
        A("v_lshlrev_b32 v8, 3, v4")
        A("s_mov_b64 s[60:61], exec"); A("s_mov_b64 exec, 0xffff")
        A(f"buffer_store_dwordx2 v[20:21], v8, {srd(SWS)}, s56 offen sc1"); vm.add(("st", 3))
        A("s_mov_b64 exec, s[60:61]")
        A("s_lshl_b32 s76, s54, 1"); A(f"s_lshr_b32 s57, {s(sW)}, 1"); A("s_add_u32 s76, s76, s57"); A("s_lshl_b32 s76, s76, 8")
        A("s_lshl_b32 s57, s55, 3"); A("s_add_u32 s76, s76, s57"); A(f"s_and_b32 s57, {s(sW)}, 1"); A("s_lshl_b32 s57, s57, 2"); A("s_add_u32 s76, s76, s57")
        A(f"s_add_u32 s76, s76, {hex(S3_OFF)}")
        self.vm3 = vm; self.pend3 = pend; self.dm3 = dm

    def p4_pre(self):
        A = self.A
        vm = self.vm3; dm = self.dm3
        NMID = self.o.get("nmid", 22)
        dm(NMID // 2)
        A(f"s_waitcnt vmcnt({vm.wait(('uv', 7))})")
        for p in range(1, 8):
            A(f"v_pk_add_f32 v[120:121], v[120:121], {v(120+2*p,2)}")
        for x, dst in ((120, 26), (121, 27)):
            A(f"v_cvt_pk_bf16_f32 v11, {v(x)}, {v(x)}"); A("v_lshlrev_b32 v14, 16, v11")
            A(f"v_sub_f32 v14, {v(x)}, v14")
            A(f"v_cvt_pk_bf16_f32 v14, v14, v14")
            A("v_and_b32 v11, 0xffff, v11"); A(f"v_lshl_or_b32 {v(dst)}, v14, 16, v11")
        A("v_mov_b32 v28, 0"); A("v_mov_b32 v29, 0")
        A("v_lshrrev_b32 v4, 5, v0"); A("v_and_b32 v5, 31, v0")
        A("v_lshlrev_b32 v6, 9, v4"); A("v_lshl_add_u32 v6, v5, 4, v6"); A(f"v_add_u32 v6, {self.EXT}, v6")
        A("v_cmp_gt_u32 vcc, 224, v0"); A("s_and_saveexec_b64 s[60:61], vcc")
        A("ds_write_b128 v6, v[26:29]")
        A("s_mov_b64 exec, s[60:61]")
        dm(NMID - NMID // 2)
        self.p4_roles()
        A("s_lshl_b32 s57, s54, 2"); A(f"s_add_u32 s57, s57, {s(sW)}")
        A(f"s_mul_i32 {s(sTOK)}, s57, 40960"); A(f"s_add_u32 {s(sTOK)}, {s(sTOK)}, {hex(X1C_OFF)}")
        A(f"s_lshl_b32 {s(sST)}, s57, 8"); A(f"s_add_u32 {s(sST)}, {s(sST)}, {hex(ST2_OFF)}")
        A(f"s_lshl_b32 {s(sS3)}, s57, 8"); A(f"s_add_u32 {s(sS3)}, {s(sS3)}, {hex(S3_OFF)}")
        A(f"s_lshl_b32 {s(sF4P)}, s57, 9"); A("s_lshl_b32 s58, s55, 2"); A(f"s_add_u32 {s(sF4P)}, {s(sF4P)}, s58"); A(f"s_add_u32 {s(sF4P)}, {s(sF4P)}, {hex(S4_OFF)}")
        A("s_mul_i32 s58, s57, 110592"); A(f"s_add_u32 s58, s58, {hex(HP_OFF)}")
        for t in range(7):
            n0 = 16 * t if t < 3 else 48 + 15 * (t - 3)
            A(f"s_add_u32 s59, s55, {n0}")
            A("s_and_b32 s60, s59, 1"); A("s_lshl_b32 s60, s60, 9")
            A("s_bfe_u32 s61, s59, 0x10001"); A("s_mul_i32 s61, s61, 55296")
            A("s_lshr_b32 s59, s59, 2"); A("s_lshl_b32 s59, s59, 11")
            A("s_add_u32 s60, s60, s61"); A("s_add_u32 s60, s60, s59"); A(f"s_add_u32 {s(sHS+t)}, s60, s58")
            if t >= 3:
                A("s_cmp_eq_u32 s55, 15"); A(f"s_cselect_b32 {s(sHS+t)}, 0x7000000, {s(sHS+t)}")
        A(f"s_waitcnt vmcnt({vm.wait(('st', 3))})")
        self.flag_store_lane0("s76", vt=(8, 9)); vm.add(("flag", 0))
        self.stamp(12)
        dm(99)
        self.p35_roles()
        A("s_lshl_b32 s57, s54, 1"); A(f"s_lshr_b32 s58, {s(sW)}, 1"); A("s_add_u32 s57, s57, s58")
        A(f"s_lshl_b32 {s(sF4C)}, s57, 9"); A(f"s_add_u32 {s(sF4C)}, {s(sF4C)}, {hex(S4_OFF)}")
        A(f"s_mul_i32 {s(sH)}, s57, 110592"); A(f"s_and_b32 s58, {s(sW)}, 1"); A("s_mul_i32 s59, s58, 55296"); A(f"s_add_u32 {s(sH)}, {s(sH)}, s59")
        A(f"s_add_u32 {s(sH)}, {s(sH)}, {hex(HP_OFF)}")
        A("s_waitcnt lgkmcnt(0)")
        A("v_lshrrev_b32 v5, 4, v1"); A("v_lshlrev_b32 v7, 4, v5")
        A("s_mul_i32 s56, s55, 320"); A(f"s_add_u32 s57, s56, {hex(GB_OFF)}")
        for dt in range(5):
            A(f"buffer_load_dwordx4 {v(20+4*dt,4)}, v7, {srd(SWS)}, s57 offen offset:{64*dt} sc1"); vm.add(("gb", dt))
        A("s_mul_i32 s60, s55, 5"); A("s_add_u32 s61, s60, 4"); A("s_lshr_b32 s60, s60, 2"); A("s_lshr_b32 s61, s61, 2")
        A("v_and_b32 v17, 1, v1"); A("v_add_u32 v17, s60, v17"); A("v_min_u32 v17, s61, v17"); A("v_lshlrev_b32 v17, 8, v17")
        A("v_lshlrev_b32 v2, 4, v1"); A("v_add_u32 v3, 0x10000, v2"); A("v_add_u32 v4, 0x20000, v2")
        A("v_and_b32 v5, 31, v1"); A("v_lshlrev_b32 v5, 4, v5"); A(f"v_add_u32 v5, {self.EXT}, v5")
        A("v_bfe_u32 v6, v1, 4, 1"); A("v_lshlrev_b32 v6, 10, v6"); A("v_lshrrev_b32 v7, 5, v1"); A("v_lshl_add_u32 v6, v7, 8, v6")
        A("v_and_b32 v7, 15, v1"); A("v_lshl_add_u32 v6, v7, 4, v6")
        A("v_mov_b32 v7, 0x40000000"); A("v_cmp_eq_u32 vcc, 0, v1"); A("v_cndmask_b32 v7, v7, 0, vcc")
        A("v_mov_b32 v8, 1")
        A(f"s_mul_i32 s58, s58, 5120")
        A("v_add_u32 v13, s58, v2"); A("v_add_u32 v14, 0x10000, v13"); A("v_add_u32 v15, 0x20000, v13")
        A(f"s_and_b32 s58, {s(sW)}, 1"); A("s_xor_b32 s58, s58, 1"); A(f"s_mul_i32 s58, s58, {139*1024}"); A("v_add_u32 v16, s58, v2")
        self.stamp(13)
        A("v_and_b32 v18, 15, v1"); A("v_lshlrev_b32 v18, 2, v18")
        A(f"buffer_load_dword v19, v18, {srd(SWS)}, {s(sS3)} offen sc1")
        A("s_waitcnt vmcnt(0) lgkmcnt(0)")
        A("s_barrier")
        self.check_lines(18, 19, s(sS3), 1)

    def p45(self):
        A = self.A; o = self.o
        vm = VM()
        self.log = []
        evn = [0]; cur = [0]
        def ev(kind, name, fn):
            on = (o.get("ts") == 8 and kind in ("fl", "cmp")) or (o.get("ts") == 9 and kind == "sync") or (o.get("ts") == 10 and kind == "h0") or (o.get("ts") == 11 and kind == "h1") or (o.get("ts") == 12 and kind == "tok")
            if on and evn[0] < 20:
                self.stamp(20 + 2 * evn[0]); fn(); self.stamp(21 + 2 * evn[0]); self.log.append((cur[0], ("EV", evn[0], name))); evn[0] += 1
            else: fn()
        NB = 6; WB = 144; T = 176
        SACC = {0: 40, 1: 56, 2: 72, 3: 88, 4: 40, 5: 56, 6: 72}
        PACC = 104
        NT0 = o.get("nt0", 10)
        LA4 = 3; LA5 = o.get("la5", 3)
        def hreg(i): return 164 + 8 * i if i <= 10 else 8 * (i - 11)
        def ringrd(e, p5=False):
            pos = self.ring_pos(e)
            if not p5:
                return ("v2", "v3", "v4")[pos // 64], (pos % 64) * 1024
            if pos >= 139: return "v16", (pos - 139) * 1024
            return ("v13", "v14", "v15")[pos // 64], (pos % 64) * 1024
        nodes = []
        def add(**k): nodes.append(k); return len(nodes) - 1
        tile_end = {}; tile_start = {}
        for e in range(120):
            k, tl = divmod(e, 3)
            n = add(ph=4, acc=SACC[tl], b=a(4*k, 4), zero=(k == 0), rd=ringrd(e), entry=e, tok=k)
            if k == 0: tile_start[tl] = n
        for tl in range(3):
            tile_end[tl] = add(ph=4, acc=SACC[tl], b=a(160, 4), zero=False, rd=("v5", 512 * tl), entry=None, tok=None, ext=True)
        for t in range(3, 7):
            for k in range(40):
                e = 120 + 40 * (t - 3) + k
                n = add(ph=4, acc=SACC[t], b=a(4*k, 4), zero=(k == 0), rd=ringrd(e), entry=e, tok=None)
                if k == 0: tile_start[t] = n
            tile_end[t] = add(ph=4, acc=SACC[t], b=a(160, 4), zero=False, rd=("v5", 512 * t), entry=None, tok=None, ext=True)
        N4 = len(nodes)
        for i in range(27):
            for ct in range(5):
                for tt in range(2):
                    add(ph=5, acc=PACC + 8 * ct + 4 * tt, b=a(hreg(i) + 4 * tt, 4), zero=(i == 0), rd=(ringrd(288 + 10 * i + ct, True) if tt == 0 else None),
                        entry=288 + 10 * i + ct, step=i, ct=ct, tt=tt)
        N = len(nodes)
        reads = [n for n in range(N) if nodes[n]["rd"] is not None]
        ridx = {n: r for r, n in enumerate(reads)}
        for n in range(N):
            nodes[n]["buf"] = ridx[n] % NB if n in ridx else nodes[n - 1]["buf"]
        r4 = sum(1 for n in reads if n < N4)
        issue_at = {}
        for r, n in enumerate(reads):
            if n < N4:
                pos = n - LA4
                issue_at.setdefault(max(pos, -1), []).append(r)
            else:
                rr = r - LA5
                if rr < r4: issue_at.setdefault("T0", []).append(r)
                else: issue_at.setdefault(reads[rr], []).append(r)
        syncs = {}
        for j in range(1, 9):
            n = next(n for n in range(N4) if nodes[n]["entry"] == 32 * j)
            syncs[ridx[n]] = ("p4", 2 * j + 1)
        SP5 = o.get("sp5", 3)
        for i in range(0, 27, SP5):
            n = next(n for n in range(N4, N) if nodes[n]["step"] == i)
            last = min(270, 10 * (i + SP5)) - 1
            syncs[ridx[n]] = ("p5", 18 + last // 16, i)
        C4 = o.get("c4", 35); C5 = o.get("c5", 26); SEAM = o.get("seam", 450)
        def tm(n): return C4 * n if n < N4 else C4 * N4 + SEAM + C5 * (n - N4)
        def node_at(t):
            if t <= C4 * (N4 - 1): return max(0, -(-t // C4))
            return N4 + max(0, -(-(t - C4 * N4 - SEAM) // C5))
        LAT = o.get("lat", 1200)
        ops = []
        def op(rel, dl, lines, tag, **k): ops.append(dict(rel=rel, dl=dl, lines=lines, tag=tag, **k))
        def tokop(k):
            l = [f"buffer_load_dwordx4 {a(4*k,4)}, v2, {srd(SWS)}, {s(sTOK)} offen" + (f" offset:{1024*(k&3)}" if k & 3 else "") + " sc1"]
            if k & 3 == 3: l.append(f"s_add_u32 {s(sTOK)}, {s(sTOK)}, 4096")
            return l
        def hop(i, tt):
            q = (2 * i + tt) & 3
            l = [f"buffer_load_dwordx4 {a(hreg(i)+4*tt,4)}, v2, {srd(SWS)}, {s(sH)} offen" + (f" offset:{1024*q}" if q else "") + " sc1"]
            if q == 3: l.append(f"s_add_u32 {s(sH)}, {s(sH)}, 4096")
            return l
        dmaq = []
        for R in range(9, 35):
            for l in self.dma_ops(R): dmaq.append((R, l))
        allowed = [8]
        rd_node = {}
        for key, lst in issue_at.items():
            for r in lst: rd_node[r] = (N4 - 1 if key == "T0" else key)
        need_at = {}
        for r in sorted(syncs):
            for R in range(0, syncs[r][1] + 1): need_at.setdefault(R, rd_node[r])
        for k in range(NT0):
            for l in tokop(k): A(l)
            vm.add(("tok", k))
        A("v_and_b32 v10, 31, v1"); A("v_lshlrev_b32 v10, 3, v10")
        for c in range(8):
            A(f"buffer_load_dwordx2 {v(PACC+2*c,2)}, v10, {srd(SWS)}, {s(sST)} offen sc1"); vm.add(("st", c))
            if c < 7: A(f"s_add_u32 {s(sST)}, {s(sST)}, 16384")
        self.mov_s(sF2, F2_OFF)
        A(f"buffer_load_dword v19, v17, {srd(SWS)}, {s(sF2)} offen sc1"); vm.add(("f2", 0))
        A("v_and_b32 v9, 15, v1"); A("v_lshlrev_b32 v9, 2, v9")
        for k in range(NT0, 40): op(max(0, int(o.get("tokr", 2) * (k - NT0))), tm(3 * k) - LAT, tokop(k), ("tok", k), seq="tok")
        fifo = []
        def stats_ops():
            L = []
            b = PACC
            for c in range(1, 8):
                L.append(f"v_add_f32 {v(b)}, {v(b)}, {v(b+2*c)}"); L.append(f"v_add_f32 {v(b+1)}, {v(b+1)}, {v(b+2*c+1)}")
            L += [f"v_mul_f32 {v(b)}, 0x3acccccd, {v(b)}", f"v_mul_f32 {v(b+1)}, 0x3acccccd, {v(b+1)}",
                  f"v_fma_f32 {v(b+1)}, -{v(b)}, {v(b)}, {v(b+1)}", f"v_max_f32 {v(b+1)}, 0, {v(b+1)}",
                  f"v_cvt_pk_bf16_f32 {v(b+1)}, {v(b+1)}, {v(b+1)}", f"v_lshlrev_b32 {v(b+1)}, 16, {v(b+1)}",
                  f"v_add_f32 {v(b+1)}, 0x3727c5ac, {v(b+1)}",
                  f"v_cvt_pk_bf16_f32 {v(b+1)}, {v(b+1)}, {v(b+1)}", f"v_lshlrev_b32 {v(b+1)}, 16, {v(b+1)}",
                  f"v_sqrt_f32 {v(b+1)}, {v(b+1)}",
                  f"v_cvt_pk_bf16_f32 {v(b+3)}, -{v(b)}, -{v(b)}",
                  f"v_cvt_pk_bf16_f32 {v(b+2)}, {v(b+1)}, {v(b+1)}",
                  f"v_lshlrev_b32 {v(b+1)}, 16, {v(b+2)}",
                  "v_cmp_gt_u32 vcc, 32, v1",
                  f"v_mul_f32 v12, {v(b+1)}, {v(b+1)}",
                  f"v_rcp_f32 {v(b+1)}, {v(b+1)}",
                  f"v_cndmask_b32 {v(b+3)}, 0, {v(b+3)}, vcc", f"v_cndmask_b32 {v(b+2)}, 0, {v(b+2)}, vcc",
                  f"v_mov_b32 {v(b+4)}, 0",
                  f"v_mul_f32 v11, 0xbfb8aa3b, {v(b+1)}",
                  f"v_accvgpr_write_b32 a160, {v(b+3)}", f"v_accvgpr_write_b32 a161, {v(b+2)}",
                  f"v_accvgpr_write_b32 a162, {v(b+4)}", f"v_accvgpr_write_b32 a163, {v(b+4)}"]
            return L
        TR = ("v_exp_f32", "v_rcp_f32", "v_sqrt_f32")
        cost = lambda l: 8 if l.startswith(TR) else 4
        ST0 = 3 * NT0 + 6
        for l in stats_ops(): fifo.append((ST0, cost(l), l))
        def epi(t):
            b = SACC[t]; L = []
            st = lambda h: [[f"v_mul_f32 {v(T+h)}, {v(b+h)}, v11", f"v_mul_f32 {v(b+8+h)}, {v(b+h)}, {v(b+8+h)}"],
                            [f"v_exp_f32 {v(T+h)}, {v(T+h)}"], [f"v_fma_f32 {v(T+h)}, {v(T+h)}, v12, v12"], [f"v_rcp_f32 {v(T+h)}, {v(T+h)}"],
                            [f"v_mul_f32 {v(b+8+h)}, {v(b+8+h)}, {v(T+h)}"]]
            for j in range(8 + 5):
                for sg in range(5):
                    h = j - sg
                    if 0 <= h < 8: L += st(h)[sg]
                h = j - 5
                if 0 <= h < 8 and h & 1: L.append(f"v_cvt_pk_bf16_f32 {v(b+(h>>1))}, {v(b+8+h-1)}, {v(b+8+h)}")
            return L
        for t in range(6):
            for l in epi(t): fifo.append((tile_end[t] + 4, cost(l), l))
            fifo.append((0, 0, ("store", t)))
        cls = [0]*4 + [1]*4 + [2]*4 + [3]*3 + [4]*4 + [5]*4 + [6]*4
        FLT = o.get("flt", 1100)
        VIS = o.get("vis", 1500)
        CKT = o.get("ckt", 900)
        F2N = o.get("f2n", 150)
        slow = []
        def check_emit(kind, t):
            lab = A.newlabel("L_slow"); back = A.newlabel("L_back")
            if kind == "cls":
                slow.append((lab, back, f"buffer_load_dword {v(184+t)}, v9, {srd(SWS)}, {s(sF4C)} offen offset:{64*t} sc1", f"v_cmp_eq_u32 vcc, 0, {v(184+t)}"))
                cmp_ = f"v_cmp_eq_u32 vcc, 0, {v(184+t)}"
            else:
                slow.append((lab, back, f"buffer_load_dword v19, v17, {srd(SWS)}, {s(sF2)} offen sc1", "v_cmp_gt_u32 vcc, 54, v19"))
                cmp_ = "v_cmp_gt_u32 vcc, 54, v19"
            return cmp_, [f"s_cbranch_vccnz {lab}", back + ":"]
        events = {}
        def at(n, f): events.setdefault(min(n, N - 1), []).append(f)
        gate_open = {("cls", t): False for t in range(7)}; gate_open["f2"] = False
        ckbusy = [False]
        def sched_cmp(kind, t, n):
            def f():
                if ckbusy[0]:
                    at(cur[0] + 1, f); return
                ckbusy[0] = True
                tag = ("ck", t) if kind == "cls" else ("f2", 0)
                if kind == "cls": assert ("fl", t) in vm.q, ("check before own flag", t)
                ev("cmp", ("w", kind, t), lambda: A(f"s_waitcnt vmcnt({vm.wait(tag)})"))
                c, br = check_emit(kind, t); self.log.append((cur[0], ("CMP", kind, t)))
                A(c)
                def g():
                    def _b():
                        for l in br: A(l)
                    ev("cmp", ("br", kind, t), _b)
                    gate_open[("cls", t) if kind == "cls" else "f2"] = True
                    ckbusy[0] = False
                at(cur[0] + (2 if nodes[min(cur[0], N-1)]["ph"] == 4 else 3), g)
            at(n, f)
        def mk_check(t, rel):
            def oi(n):
                sched_cmp("cls", t, node_at(tm(n) + CKT))
            op(rel, -2, [f"buffer_load_dword {v(184+t)}, v9, {srd(SWS)}, {s(sF4C)} offen offset:{64*t} sc1"], ("ck", t), on_issue=oi)
        gate_open[None] = True
        sched_cmp("f2", 0, F2N)
        step_node = {i: next(n for n in range(N4, N) if nodes[n]["step"] == i) for i in range(27)}
        for i in range(27):
            for tt in range(2):
                op(0 if i <= 10 else N4, tm(step_node[i]) - LAT, hop(i, tt), ("h", i, tt), gate=("cls", cls[i]), seq="h")
        JIT0 = o.get("jit0", 2)
        JM = o.get("jm", 300)
        def jit(t):
            if t < JIT0: return 0
            i0 = cls.index(t)
            return node_at(tm(step_node[i0]) - LAT - CKT - JM)
        lastvm = [-9]
        nrd = [0]
        def emit_read(r):
            if r in syncs:
                sy = syncs[r]
                tgt = sy[1]
                idx = [x for x in vm.q if x[0] == "dma" and x[1] <= tgt]
                miss = [R for R, l in dmaq if R <= tgt]
                assert not miss, ("round not issued before its sync", r, sy, miss)
                def _s():
                    if idx: A(f"s_waitcnt vmcnt({vm.wait(lambda x: x[0] == 'dma' and x[1] <= tgt)})")
                    A("s_barrier")
                ev("sync", sy, _s); self.log.append((cur[0], ("SYNC", sy)))
                n = cur[0]
                if sy[0] == "p4":
                    done = [nodes[m]["entry"] for m in range(0, n + 1) if nodes[m]["entry"] is not None]
                    c = max(done) + 1
                else:
                    c = 288 + max(0, 10 * (sy[2] - 1))
                allowed[0] = max(allowed[0], c // 16 - 1 + 9)
                new = [x for x in dmaq if x[0] <= allowed[0] and not any(oo.get("dq") is x for oo in ops)]
                for j, x in enumerate(new):
                    op(n + 1, tm(need_at[x[0]]) - LAT, x[1], ("dma", x[0]), dq=x, seq="dma", gate=("f2" if x[0] >= 18 else None))
            n = reads[r]
            ad, off = nodes[n]["rd"]
            A(f"ds_read_b128 {v(WB+4*nodes[n]['buf'],4)}, {ad} offset:{off}")
            nrd[0] = r + 1
        def try_vm(n):
            ok = []; seen = set()
            for x in ops:
                sq = x.get("seq")
                if sq:
                    if sq in seen: continue
                    seen.add(sq)
                if x["rel"] > n or not gate_open[x.get("gate")]: continue
                ok.append(x)
            if not ok: return 0
            x = min(ok, key=lambda y: y["dl"])
            ops.remove(x)
            if x.get("pre"): x["pre"]()
            skip = (o.get("xdma") and x["tag"][0] == "dma" and x["tag"][1] >= o["xdma"]) or (o.get("xh") and x["tag"][0] == "h" and x["tag"][1] >= o["xh"] - 1)
            for l in x["lines"]:
                if skip and l.startswith("buffer_load"): l = "s_nop 0"
                A(l)
            if x.get("dq"): dmaq.remove(x["dq"])
            lastvm[0] = n
            if skip:
                vm.dropped = getattr(vm, "dropped", set()) | {x["tag"]}
                return 4
            vm.add(x["tag"]); self.log.append((n, x["tag"]))
            if x.get("on_issue"): x["on_issue"](n)
            return 16 + 4 * (len(x["lines"]) - 1)
        def store_op(t, n):
            b = SACC[t]
            A(f"buffer_store_dwordx4 {v(b,4)}, v6, {srd(SWS)}, {s(sHS+t)} offen sc1"); vm.add(("hs", t)); self.log.append((n, ("hs", t)))
            lastvm[0] = n
            op(node_at(tm(n) + FLT), -3, [f"buffer_store_dword v8, v7, {srd(SWS)}, {s(sF4P)} offen offset:{64*t} sc1"], ("fl", t),
               pre=lambda t=t: ev("fl", ("fl", t), lambda: A(f"s_waitcnt vmcnt({vm.wait(('hs', t))})")),
               on_issue=lambda n2, t=t: mk_check(t, max(node_at(tm(n2) + VIS), jit(t))))
        BUD = o.get("bud", 28)
        def run_fifo(n, budget):
            while fifo and budget > 0:
                e, c, l = fifo[0]
                if e > n: break
                if isinstance(l, tuple):
                    if lastvm[0] == n or budget < 8: break
                    fifo.pop(0); store_op(l[1], n); budget -= 16
                    continue
                if c > budget: break
                fifo.pop(0); A(l); budget -= c
        waited = [-1]
        def pre_waits(n):
            nd = nodes[n]; w = []
            if nd["rd"] is not None:
                r = ridx[n]
                if r > waited[0]:
                    tgt = min(r + 1, nrd[0] - 1)
                    if nd["ph"] == 5 and o.get("w5", 2) == 1: tgt = r
                    w.append(f"lgkmcnt({nrd[0] - 1 - tgt})"); waited[0] = tgt
            if nd.get("tok") is not None and n % 3 == 0:
                w.insert(0, f"vmcnt({vm.wait(('tok', nd['tok']))})")
                if o.get("ts") == 12 and n % 6 == 0:
                    w0 = w.pop(0)
                    ev("tok", ("tok", nd["tok"]), lambda: A("s_waitcnt " + w0))
            if nd["ph"] == 5 and nd["ct"] == 0 and nd["tt"] == 0:
                i = nd["step"]
                if ("h", i, 1) not in getattr(vm, "dropped", set()):
                    assert ("h", i, 1) in vm.q, ("h not issued", i)
                    w.insert(0, f"vmcnt({vm.wait(('h', i, 1))})")
                    if o.get("ts") in (10, 11) and (i < 20) == (o.get("ts") == 10):
                        w0 = w.pop(0)
                        ev("h0" if i < 20 else "h1", ("h", i), lambda: A("s_waitcnt " + w0))
            if w: A("s_waitcnt " + " ".join(w))
            return 4 if w else 0
        for r in issue_at.get(-1, []): emit_read(r)
        for n in range(N):
            cur[0] = n
            nd = nodes[n]
            if n == N4:
                cur[0] = N4 - 1
                for r in issue_at.get("T0", []): emit_read(r)
                self.stamp(15)
                cur[0] = n
                rest6 = [x[2] for x in fifo]; fifo.clear()
                for l in rest6:
                    if isinstance(l, tuple): store_op(l[1], n)
                    else: A(l)
                e6 = epi(6)
                for j, l in enumerate(e6):
                    A(l)
                    if j % 12 == 11: try_vm(n)
                store_op(6, n)
            for t, st_ in tile_start.items():
                if st_ == n and t >= 4:
                    assert not any(isinstance(x[2], tuple) and x[2][1] == t - 4 for x in fifo), ("acc set still busy", t)
            used = pre_waits(n)
            d = v(nd["acc"], 16 if nd["ph"] == 4 else 4)
            opn = "v_mfma_f32_32x32x16_bf16" if nd["ph"] == 4 else "v_mfma_f32_16x16x32_bf16"
            A(f"{opn} {d}, {v(WB+4*nd['buf'],4)}, {nd['b']}, {'0' if nd['zero'] else d}")
            budget = (BUD if nd["ph"] == 4 else 8) - (used if nd["ph"] == 4 else 0)
            for r in issue_at.get(n, []):
                emit_read(r); budget -= 4
            for f in events.pop(n, []):
                f(); budget -= 4
            if nd["ph"] == 4:
                if n - lastvm[0] >= o.get("vgap", 2): budget -= try_vm(n)
                run_fifo(n, budget)
            else:
                if nd["tt"] == 1: try_vm(n)
            if o.get("ts") == 4:
                if "tsl" in o:
                    a0, st_ = (int(x) for x in str(o["tsl"]).split("_"))
                    L_ = [a0 + st_ * j for j in range(40)]
                else:
                    L_ = [30, 60, 90, 122, 163, 204, 245, 286, N4 + 30, N4 + 60, N4 + 90, N4 + 120, N4 + 150, N4 + 180, N4 + 210, N4 + 240]
                if n in L_: self.stamp(20 + L_.index(n))
        assert not events, events.keys()
        assert all(x["tag"][0] in ("fl", "ck") for x in ops), [x["tag"] for x in ops]
        assert not ops, [x["tag"] for x in ops]
        self.slow45 = slow
    def p45_tail(self):
        A = self.A
        PACC = 104
        self.p35_roles()
        A("s_barrier")
        A(f"s_mul_i32 s56, {s(sW)}, 5120"); A("v_add_u32 v5, s56, v2")
        A(f"s_xor_b32 s57, {s(sW)}, 1"); A("s_mul_i32 s57, s57, 5120"); A("v_add_u32 v6, s57, v2")
        A(f"s_and_b32 s58, {s(sW)}, 1"); A("s_cmp_eq_u32 s58, 0"); A("s_cbranch_scc0 L_p5_kh1")
        for ct in range(5): A(f"ds_write_b128 v5, {v(PACC+4+8*ct,4)} offset:{ct*1024}")
        for ct in range(5):
            for r in range(4): A(f"v_mov_b32 {v(40+4*ct+r)}, {v(PACC+8*ct+r)}")
        A("s_branch L_p5_c")
        A.label("L_p5_kh1")
        for ct in range(5): A(f"ds_write_b128 v5, {v(PACC+8*ct,4)} offset:{ct*1024}")
        for ct in range(5):
            for r in range(4): A(f"v_mov_b32 {v(40+4*ct+r)}, {v(PACC+4+8*ct+r)}")
        A.label("L_p5_c")
        A("s_waitcnt lgkmcnt(0)"); A("s_barrier")
        for ct in range(5): A(f"ds_read_b128 {v(60+4*ct,4)}, v6 offset:{ct*1024}")
        A("v_and_b32 v4, 15, v1"); A("v_lshrrev_b32 v5, 4, v1")
        A("v_mul_u32_u24 v6, 0xa000, v4")
        A("v_and_b32 v7, 1, v5"); A("v_lshl_add_u32 v8, v7, 5, v6"); A("v_lshrrev_b32 v7, 1, v5"); A("v_lshl_add_u32 v8, v7, 4, v8")
        A("v_lshl_add_u32 v9, v5, 3, v6")
        A(f"s_lshl_b32 s56, {s(sW)}, 9"); A("s_add_u32 s56, s56, s54"); A("s_mul_i32 s56, s56, 1280"); A("s_mul_i32 s57, s55, 160"); A("s_add_u32 s56, s56, s57")
        A("s_waitcnt lgkmcnt(0)")
        X1 = self.X1
        for k in range(10):
            A(f"v_pk_add_f32 {v(40+2*k,2)}, {v(40+2*k,2)}, {v(60+2*k,2)}")
            A(f"v_pk_fma_f32 {v(40+2*k,2)}, {v(40+2*k,2)}, {v(20+2*k,2)}, {v(X1+2*k,2)}")
        for dt in range(5):
            A(f"v_cvt_pk_bf16_f32 {v(60+2*dt)}, {v(40+4*dt)}, {v(41+4*dt)}")
            A(f"v_cvt_pk_bf16_f32 {v(61+2*dt)}, {v(42+4*dt)}, {v(43+4*dt)}")
        for p in range(2):
            A(f"v_permlane16_swap_b32 {v(60+4*p)}, {v(62+4*p)}")
            A(f"v_permlane16_swap_b32 {v(61+4*p)}, {v(63+4*p)}")
        A(f"buffer_store_dwordx4 v[60:63], v8, {srd(SOUT)}, s56 offen")
        A(f"buffer_store_dwordx4 v[64:67], v8, {srd(SOUT)}, s56 offen offset:64")
        A(f"buffer_store_dwordx2 v[68:69], v9, {srd(SOUT)}, s56 offen offset:128")
    def slow_paths(self):
        A = self.A
        for lab, back, ld, cmp_ in getattr(self, "slow45", []):
            lp = A.newlabel("L_sl")
            A.label(lab)
            A("s_mov_b32 s49, 0")
            A.label(lp)
            A("s_add_u32 s49, s49, 1"); A(f"s_cmp_gt_u32 s49, {POLL_MAX}"); A(f"s_cbranch_scc1 {back}")
            A(ld); A("s_waitcnt vmcnt(0)"); A(cmp_)
            A(f"s_cbranch_vccnz {lp}")
            A(f"s_branch {back}")
    def rest(self):
        st = self.stamp
        self.b2(); st(10); self.p3_main(); st(11)
        if self.end_if_stop(3): return
        self.p4_pre(); st(14); self.p45(); st(18); self.p45_tail(); st(19)
    def build(self):
        A = self.A
        st = self.stamp
        self.prologue()
        self.p1()
        self.arrive1(); st(2)
        self.b1_dead(); st(5)
        self.gb_wait(0); st(6)
        if not self.end_if_stop(1):
            self.p2_main(); st(7)
            if not self.end_if_stop(2):
                self.rest()
        self.ts_flush()
        A.label("L_end")
        A("s_endpgm")
        self.slow_paths()
        return self.text()

if __name__ == "__main__":
    out = sys.argv[1]; stop = int(sys.argv[2]) if len(sys.argv) > 2 else 99
    opts = {}
    for kv in sys.argv[3:]:
        k, _, val = kv.partition("=")
        opts[k] = int(val) if val.lstrip("-").isdigit() else (val or 1)
    g = Gen3(stop, opts)
    open(out, "w").write(g.build())
    if opts.get("log"):
        for n, t in g.log:
            if t[0] not in ("tok",): print(n, t)
```

```python
import sys
sys.path.insert(0, "dev")
from asmlib import Asm, v, a, s
import gen1, gen2
from gen2 import *
from gen2 import VM, f2u, srd

W13S_OFF = 0x1800000
W13_FS = 72 * 4096
WS_END = 0x1C80000
gen2.WS_END = WS_END
gen1.WS_END = WS_END
sDW, sW2, sM0, sTOK = 64, 65, 66, 67
sHS = 68
sF4P, sF4C, sH, sST, sF2, sS3 = 75, 77, 78, 79, 80, 81

class Gen3(gen2.Gen):
    def prologue(self):
        A = self.A
        if self.o.get("cpf", 1):
            n0 = len(A.lines)
            super().prologue()
            i = next(k for k in range(n0, len(A.lines)) if A.lines[k].startswith("s_load_dwordx8"))
            L = ["s_getpc_b64 s[60:61]", "L_pc:",
                 "v_lshrrev_b32 v2, 6, v0", "s_lshr_b32 s62, s2, 3", "s_lshl_b32 s62, s62, 2", "v_add_u32 v2, s62, v2",
                 "v_and_b32 v3, 7, v0", "v_lshl_add_u32 v2, v2, 3, v3", "v_lshlrev_b32 v2, 6, v2",
                 "v_min_u32 v2, L_code_end-L_pc-4, v2",
                 "v_mov_b32 v3, s61", "v_add_co_u32 v2, vcc, s60, v2", "v_addc_co_u32 v3, vcc, 0, v3, vcc",
                 "global_load_dword v253, v[2:3], off"]
            A.lines[i+1:i+1] = L
        else:
            super().prologue()
    def p3_small(self):
        A = self.A
        self.p35_roles()
        A("v_and_b32 v4, 15, v1"); A("v_lshrrev_b32 v5, 4, v1")
        A("v_mul_u32_u24 v6, 0xa000, v4"); A("v_lshl_add_u32 v6, v5, 3, v6")
        A(f"s_lshl_b32 s56, {s(sW)}, 9"); A("s_add_u32 s56, s56, s54"); A("s_mul_i32 s56, s56, 1280"); A("s_mul_i32 s57, s55, 160"); A("s_add_u32 s56, s56, s57")
        for dt in range(5):
            A(f"buffer_load_dwordx2 {v(200+2*dt,2)}, v6, {srd(SX)}, s56 offen offset:{32*dt}")
        A("v_lshlrev_b32 v7, 4, v5")
        A("s_mul_i32 s56, s55, 320"); A(f"s_add_u32 s57, s56, {hex(GA_OFF)}"); A(f"s_add_u32 s58, s56, {hex(CB1F_OFF)}")
        for dt in range(5):
            A(f"buffer_load_dwordx4 {v(160+4*dt,4)}, v7, {srd(SWS)}, s57 offen offset:{64*dt} sc1")
            A(f"buffer_load_dwordx4 {v(180+4*dt,4)}, v7, {srd(SWS)}, s58 offen offset:{64*dt} sc1")
    def p3_gdma(self):
        A = self.A
        self.p35_roles()
        A("v_lshlrev_b32 v2, 4, v1")
        A("s_mul_i32 s56, s55, 107520"); A(f"s_lshl_b32 s57, {s(sW)}, 10"); A("s_add_u32 s56, s56, s57"); A(f"s_add_u32 s56, s56, {hex(GP_OFF)}")
        for k in range(27):
            A(f"s_add_u32 m0, s57, {k*4096}")
            A(f"buffer_load_dwordx4 v2, {srd(SWS)}, s56 offen sc1 lds")
            if k < 26: A("s_add_u32 s56, s56, 4096")
    def b2(self):
        A = self.A
        self.p3_small()
        self.rp2_issue()
        self.stamp(8)
        A("s_waitcnt vmcnt(15)")
        A("s_barrier")
        lab = self.wave0_begin()
        self.gb_arrive(1)
        A.label(lab)
        self.stamp(9)
        self.p3_gdma()
        A("s_waitcnt vmcnt(27)")
        self.rp2_finish()
        self.p3_consts()
        self.stamp(20) if self.o.get("ts") == 1 else None
        self.gb_wait(1)


    def rp13_finish(self):
        A = self.A
        A("s_cmp_ge_u32 s2, 216"); A("s_cbranch_scc1 L_rp13_done")
        A("s_lshr_b32 s52, s2, 3"); A("s_and_b32 s53, s2, 7")
        self.rp13_addr(6, 7)
        A(f"s_lshl_b32 s54, {s(sW)}, 5"); A("v_add_u32 v6, s54, v6"); A("v_add_u32 v7, s54, v7")
        self.rp13_read(6, 7, 40)
        A("s_lshl_b32 s54, s52, 2"); A(f"s_add_u32 s54, s54, {s(sW)}")
        A("s_mul_i32 s55, s54, 9363"); A("s_lshr_b32 s55, s55, 16")
        A("s_mul_i32 s56, s55, 7"); A("s_sub_u32 s56, s54, s56")
        A("s_mul_i32 s57, s53, 5")
        A("s_mul_i32 s58, s57, 3"); A("s_add_u32 s58, s58, s56")
        A("s_mul_i32 s59, s56, 40"); A("s_add_u32 s59, s59, s57")
        A("s_cmp_lt_u32 s56, 3"); A("s_cselect_b32 s58, s58, s59"); A("s_movk_i32 s60, 0x400"); A("s_cselect_b32 s59, 3072, s60")
        A("s_lshl_b32 s58, s58, 10"); A(f"s_mul_i32 s55, s55, {W13_FS}"); A("s_add_u32 s54, s58, s55"); A(f"s_add_u32 s54, s54, {hex(W13S_OFF)}")
        A("v_lshlrev_b32 v8, 4, v1")
        for k5 in range(5):
            A(f"s_waitcnt lgkmcnt({8-2*k5})")
            A(f"buffer_store_dwordx4 {v(40+4*k5,4)}, v8, {srd(SWS)}, s54 offen sc1")
            if k5 < 4: A("s_add_u32 s54, s54, s59")
        A.label("L_rp13_done")
    def tile_of(self, dst, n, tmp):
        A = self.A
        t0, t1 = tmp
        A(f"s_lshr_b32 {s(t0)}, {s(n)}, 4"); A(f"s_and_b32 {s(t1)}, {s(n)}, 15")
        A(f"s_mul_i32 {s(t1)}, {s(t1)}, 7"); A(f"s_add_u32 {s(dst)}, {s(t0)}, {s(t1)}")
        A(f"s_sub_u32 {s(t0)}, {s(n)}, 48")
        A(f"s_mul_i32 {s(t1)}, {s(t0)}, 4370"); A(f"s_lshr_b32 {s(t1)}, {s(t1)}, 16")
        A(f"s_mul_i32 s48, {s(t1)}, 15"); A(f"s_sub_u32 {s(t0)}, {s(t0)}, s48")
        A(f"s_mul_i32 {s(t0)}, {s(t0)}, 7"); A(f"s_add_u32 {s(t0)}, {s(t0)}, {s(t1)}"); A(f"s_add_u32 {s(t0)}, {s(t0)}, 3")
        A(f"s_cmp_lt_u32 {s(n)}, 48"); A(f"s_cselect_b32 {s(dst)}, {s(dst)}, {s(t0)}")
    def rp2_issue(self):
        A = self.A
        self.rp2_unit()
        A("s_cmp_ge_u32 s63, 540"); A("s_cbranch_scc1 L_rp2_i_done")
        A("v_lshrrev_b32 v4, 3, v1"); A("v_and_b32 v5, 7, v1")
        A("v_mul_u32_u24 v4, 1280, v4"); A("v_lshl_add_u32 v4, v5, 4, v4")
        A(f"s_lshl_b32 s54, {s(sW)}, 12"); A(f"s_add_u32 s54, s54, {self.STG2}")
        A("s_lshl_b32 s58, s56, 7")
        for half in range(2):
            A("s_lshl_b32 s60, s55, 1")
            if half: A("s_add_u32 s60, s60, 1")
            self.tile_of(59, 60, (61, 62))
            A(f"s_mul_i32 s57, s59, {16*1280}"); A("s_add_u32 s57, s57, s58")
            for n in range(2):
                A(f"s_add_u32 m0, s54, {(2*half+n)*1024}")
                A(f"buffer_load_dwordx4 v4, {srd(SW2)}, s57 offen lds")
                if n == 0: A(f"s_add_u32 s57, s57, {8*1280}")
        A.label("L_rp2_i_done")
    def p4_roles(self):
        A = self.A
        A(f"s_lshr_b32 s54, {s(sI)}, 3"); A("s_lshl_b32 s54, s54, 2"); A(f"s_lshr_b32 s55, {s(sXC)}, 1"); A("s_add_u32 s54, s54, s55")
        A(f"s_and_b32 s55, {s(sXC)}, 1"); A("s_lshl_b32 s55, s55, 3"); A(f"s_and_b32 s56, {s(sI)}, 7"); A("s_add_u32 s55, s55, s56")
    ROT = 7
    EXT = 157696
    def ring_m0(self, R):
        return ((R + self.ROT) % 9) * 16384
    def ring_pos(self, e):
        return (e + 16 * self.ROT) % 144
    def dma_ops(self, R):
        L = []
        for j in range(4):
            l = [f"buffer_load_dwordx4 v2, {srd(SWS)}, {s(sDW)} offen" + (f" offset:{1024*j}" if j else "") + " sc1 lds"]
            if j == 3:
                if R == 17: l.append(f"s_mov_b32 {s(sDW)}, {s(sW2)}")
                else: l.append(f"s_add_u32 {s(sDW)}, {s(sDW)}, 16384")
                l.append(f"s_add_u32 m0, {s(sM0)}, {self.ring_m0(R + 1)}")
            L.append(l)
        return L
    def ring_setup(self):
        A = self.A
        self.p4_roles()
        A(f"s_lshl_b32 {s(sM0)}, {s(sW)}, 12")
        A(f"s_mul_i32 {s(sDW)}, s55, {W13_FS}"); A(f"s_add_u32 {s(sDW)}, {s(sDW)}, {s(sM0)}"); A(f"s_add_u32 {s(sDW)}, {s(sDW)}, {hex(W13S_OFF)}")
        A(f"s_and_b32 s56, {s(sI)}, 7"); A(f"s_mul_i32 s56, s56, {54*5120}"); A(f"s_add_u32 s56, s56, {s(sM0)}"); A(f"s_add_u32 {s(sW2)}, s56, {hex(W2P_OFF)}")
        A(f"s_add_u32 m0, {s(sM0)}, {self.ring_m0(0)}")

    def p2_main(self):
        n0 = len(self.A.lines)
        super().p2_main()
        L = self.A.lines
        i0 = next(i for i in range(n0, len(L)) if L[i].startswith("s_cmp_ge_u32 s2, 216") and L[i+1].startswith("s_cbranch_scc1 L_p2_done") and L[i+2].startswith("s_waitcnt vmcnt(0)"))
        i1 = next(i for i in range(i0, len(L)) if L[i] == "L_p2_done:")
        del L[i0:i1]

    def p3_main(self):
        A = self.A
        PF = self.o.get("p3pf", 6)
        NPRE = self.o.get("npre", 6)
        self.ring_setup()
        self.p35_roles()
        A("v_and_b32 v4, 15, v1"); A("v_lshrrev_b32 v5, 4, v1")
        A("v_lshrrev_b32 v6, 2, v4"); A("v_lshlrev_b32 v6, 8, v6"); A("v_lshrrev_b32 v7, 1, v5"); A("v_lshl_add_u32 v6, v7, 7, v6")
        A("v_and_b32 v7, 3, v4"); A("v_lshl_add_u32 v6, v7, 5, v6"); A("v_and_b32 v7, 1, v5"); A("v_lshl_add_u32 v6, v7, 4, v6")
        A("s_mul_i32 s56, s54, 86016"); A(f"s_lshl_b32 s57, {s(sW)}, 10"); A("s_add_u32 s56, s56, s57"); A(f"s_add_u32 s56, s56, {hex(A3_OFF)}")
        vm = VM()
        nl = [0]
        def ld():
            if nl[0] >= 21: return False
            A(f"buffer_load_dwordx4 {a(4*nl[0],4)}, v6, {srd(SWS)}, s56 offen sc1"); vm.add(("a3", nl[0]))
            if nl[0] < 20: A("s_add_u32 s56, s56, 4096")
            nl[0] += 1
            return True
        for k in range(PF): ld()
        A("v_lshlrev_b32 v2, 4, v1"); A("v_add_u32 v3, 56320, v2")
        self.rp2_unit()
        A("s_lshl_b32 s62, s56, 8"); A(f"s_add_u32 s62, s62, {hex(F2_OFF)}")
        A("s_cmp_ge_u32 s63, 540"); A("s_cselect_b32 s62, 0x7000000, s62")
        self.atomic_inc_lane0("s62", vt=(8, 9)); vm.add(("f2", 0))
        A("v_lshrrev_b32 v7, 5, v0"); A("v_and_b32 v8, 31, v0")
        A("v_lshlrev_b32 v9, 8, v7"); A("v_lshl_add_u32 v9, v8, 3, v9")
        extra = []
        self.p4_roles()
        A("s_mul_i32 s58, s55, 1792"); A(f"s_add_u32 s58, s58, {hex(UVP_OFF)}")
        self.p35_roles()
        A("s_mul_i32 s56, s54, 86016"); A(f"s_lshl_b32 s57, {s(sW)}, 10"); A("s_add_u32 s56, s56, s57"); A(f"s_add_u32 s56, s56, {hex(A3_OFF + PF*4096)}")
        for p in range(8):
            l = [f"buffer_load_dwordx2 {v(120+2*p,2)}, v9, {srd(SWS)}, s58 offen sc1"]
            if p < 7: l.append(f"s_add_u32 s58, s58, {108*256}")
            extra.append((l, ("uv", p)))
        for R in range(2):
            for l in self.dma_ops(R): extra.append((l, ("dma", R)))
        def ex():
            if ld(): return
            if extra:
                l, tag = extra.pop(0)
                for x in l: A(x)
                vm.add(tag)
        def rd(tau):
            ad = "v2" if tau < 11 else "v3"; o = (tau if tau < 11 else tau - 11) * 5120
            for dt in range(5):
                A(f"ds_read_b128 {v(60+20*(tau&1)+4*dt,4)}, {ad} offset:{o+dt*1024}")
        rd(0)
        for tau in range(21):
            if tau < 20:
                rd(tau + 1); A(f"s_waitcnt vmcnt({vm.wait(('a3', tau))}) lgkmcnt(5)")
            else:
                A(f"s_waitcnt vmcnt({vm.wait(('a3', tau))}) lgkmcnt(0)")
            for dt in range(5):
                d = v(40 + 4 * dt, 4)
                A(f"v_mfma_f32_16x16x32_bf16 {d}, {a(4*tau,4)}, {v(60+20*(tau&1)+4*dt,4)}, {'0' if tau == 0 else d}")
                if dt == 1 or (dt == 3 and nl[0] >= 21): ex()
        while extra: ex()
        XB = self.XB
        A(f"s_lshr_b32 s56, {s(sW)}, 1"); A("s_mul_i32 s56, s56, 5120"); A(f"s_and_b32 s57, {s(sW)}, 1"); A("s_lshl_b32 s57, s57, 3")
        A("s_add_u32 s56, s56, s57"); A(f"s_add_u32 s56, s56, {XB}")
        A("v_add_u32 v8, s56, v2")
        for dt in range(5):
            A(f"v_cvt_pk_bf16_f32 {v(60+2*dt)}, {v(40+4*dt)}, {v(41+4*dt)}")
            A(f"v_cvt_pk_bf16_f32 {v(61+2*dt)}, {v(42+4*dt)}, {v(43+4*dt)}")
            A(f"ds_write_b64 v8, {v(60+2*dt,2)} offset:{dt*1024}")
        A("s_waitcnt lgkmcnt(0)"); A("s_barrier")
        pend = []
        for R in range(2, 9):
            for l in self.dma_ops(R): pend.append((l, ("dma", R)))
        def dm(n=1):
            while n > 0 and pend:
                l, tag = pend.pop(0)
                for x in l: A(x)
                vm.add(tag); n -= 1
        npre = [NPRE]
        def dmp():
            if npre[0] > 0: dm(); npre[0] -= 1
        A(f"v_add_u32 v8, {XB}, v2")
        for u in range(2):
            for dt in range(5):
                A(f"ds_read_b128 {v(60+20*u+4*dt,4)}, v8 offset:{(5*u+dt)*1024}")
        dmp()
        X1 = self.X1
        for dt in range(5):
            for h in range(2):
                xr = 200 + 2 * dt + h
                A(f"v_lshlrev_b32 {v(X1+4*dt+2*h)}, 16, {v(xr)}")
                A(f"v_and_b32 {v(X1+4*dt+2*h+1)}, 0xffff0000, {v(xr)}")
            if dt in (1, 3): dmp()
        A("s_waitcnt lgkmcnt(5)")
        for dt in range(5):
            A(f"v_mfma_f32_16x16x32_bf16 {v(100+4*dt,4)}, {v(60+4*dt,4)}, v[210:213], 0")
        dmp()
        A("s_waitcnt lgkmcnt(0)")
        for dt in range(5):
            A(f"v_mfma_f32_16x16x32_bf16 {v(100+4*dt,4)}, {v(80+4*dt,4)}, v[214:217], {v(100+4*dt,4)}")
        dmp()
        A("v_lshrrev_b32 v6, 1, v5"); A("v_and_b32 v7, 1, v5")
        A("v_lshlrev_b32 v8, 10, v6"); A("v_lshl_add_u32 v8, v7, 9, v8"); A("v_lshl_add_u32 v8, v4, 4, v8")
        A("v_lshlrev_b32 v10, 9, v6"); A("v_lshl_add_u32 v10, v4, 4, v10"); A("v_lshl_add_u32 v10, v7, 3, v10"); A("v_add_u32 v10, 4096, v10")
        A("s_lshl_b32 s56, s54, 1"); A(f"s_lshr_b32 s57, {s(sW)}, 1"); A("s_add_u32 s56, s56, s57"); A("s_mul_i32 s56, s56, 40960")
        A("s_mul_i32 s57, s55, 5120"); A("s_add_u32 s56, s56, s57")
        A(f"s_and_b32 s57, {s(sW)}, 1"); A("s_lshl_b32 s57, s57, 8"); A("s_add_u32 s56, s56, s57"); A(f"s_add_u32 s56, s56, {hex(X1C_OFF)}")
        dmp()
        for dt in range(5):
            for h in (0, 2):
                A(f"v_pk_fma_f32 {v(X1+4*dt+h,2)}, {v(160+4*dt+h,2)}, {v(100+4*dt+h,2)}, {v(X1+4*dt+h,2)}")
        dmp()
        for dt in range(5):
            for h in (0, 2):
                A(f"v_pk_mul_f32 {v(100+4*dt+h,2)}, {v(X1+4*dt+h,2)}, {v(180+4*dt+h,2)}")
        dmp()
        while npre[0] > 0: dmp()
        for dt in range(5):
            A(f"v_cvt_pk_bf16_f32 {v(60+2*dt)}, {v(100+4*dt)}, {v(101+4*dt)}")
            A(f"v_cvt_pk_bf16_f32 {v(61+2*dt)}, {v(102+4*dt)}, {v(103+4*dt)}")
        A(f"buffer_store_dwordx4 v[60:63], v8, {srd(SWS)}, s56 offen sc1"); vm.add(("st", 0))
        A(f"buffer_store_dwordx4 v[64:67], v8, {srd(SWS)}, s56 offen offset:2048 sc1"); vm.add(("st", 1))
        A(f"buffer_store_dwordx2 v[68:69], v10, {srd(SWS)}, s56 offen sc1"); vm.add(("st", 2))
        A(f"v_pk_add_f32 v[20:21], {v(X1,2)}, {v(X1+2,2)}")
        A(f"v_pk_mul_f32 v[22:23], {v(X1,2)}, {v(X1,2)}")
        A(f"v_pk_fma_f32 v[22:23], {v(X1+2,2)}, {v(X1+2,2)}, v[22:23]")
        for k in range(2, 10):
            A(f"v_pk_add_f32 v[20:21], v[20:21], {v(X1+2*k,2)}")
            A(f"v_pk_fma_f32 v[22:23], {v(X1+2*k,2)}, {v(X1+2*k,2)}, v[22:23]")
        A("v_add_f32 v20, v20, v21"); A("v_add_f32 v21, v22, v23")
        for sw in ("v_permlane16_swap_b32", "v_permlane32_swap_b32"):
            A("v_mov_b32 v22, v20"); A("v_mov_b32 v23, v21")
            A(f"{sw} v20, v22"); A(f"{sw} v21, v23")
            A("v_add_f32 v20, v20, v22"); A("v_add_f32 v21, v21, v23")
        A("s_lshl_b32 s56, s55, 14"); A("s_lshl_b32 s57, s54, 9"); A("s_add_u32 s56, s56, s57"); A(f"s_lshl_b32 s57, {s(sW)}, 7"); A("s_add_u32 s56, s56, s57")
        A(f"s_add_u32 s56, s56, {hex(ST2_OFF)}")
        A("v_lshlrev_b32 v8, 3, v4")
        A("s_mov_b64 s[60:61], exec"); A("s_mov_b64 exec, 0xffff")
        A(f"buffer_store_dwordx2 v[20:21], v8, {srd(SWS)}, s56 offen sc1"); vm.add(("st", 3))
        A("s_mov_b64 exec, s[60:61]")
        A("s_lshl_b32 s76, s54, 1"); A(f"s_lshr_b32 s57, {s(sW)}, 1"); A("s_add_u32 s76, s76, s57"); A("s_lshl_b32 s76, s76, 8")
        A("s_lshl_b32 s57, s55, 3"); A("s_add_u32 s76, s76, s57"); A(f"s_and_b32 s57, {s(sW)}, 1"); A("s_lshl_b32 s57, s57, 2"); A("s_add_u32 s76, s76, s57")
        A(f"s_add_u32 s76, s76, {hex(S3_OFF)}")
        self.vm3 = vm; self.pend3 = pend; self.dm3 = dm

    def p4_pre(self):
        A = self.A
        vm = self.vm3; dm = self.dm3
        NMID = self.o.get("nmid", 22)
        dm(NMID // 2)
        A(f"s_waitcnt vmcnt({vm.wait(('uv', 7))})")
        for p in range(1, 8):
            A(f"v_pk_add_f32 v[120:121], v[120:121], {v(120+2*p,2)}")
        for x, dst in ((120, 26), (121, 27)):
            A(f"v_cvt_pk_bf16_f32 v11, {v(x)}, {v(x)}"); A("v_lshlrev_b32 v14, 16, v11")
            A(f"v_sub_f32 v14, {v(x)}, v14")
            A(f"v_cvt_pk_bf16_f32 v14, v14, v14")
            A("v_and_b32 v11, 0xffff, v11"); A(f"v_lshl_or_b32 {v(dst)}, v14, 16, v11")
        A("v_mov_b32 v28, 0"); A("v_mov_b32 v29, 0")
        A("v_lshrrev_b32 v4, 5, v0"); A("v_and_b32 v5, 31, v0")
        A("v_lshlrev_b32 v6, 9, v4"); A("v_lshl_add_u32 v6, v5, 4, v6"); A(f"v_add_u32 v6, {self.EXT}, v6")
        A("v_cmp_gt_u32 vcc, 224, v0"); A("s_and_saveexec_b64 s[60:61], vcc")
        A("ds_write_b128 v6, v[26:29]")
        A("s_mov_b64 exec, s[60:61]")
        dm(NMID - NMID // 2)
        self.p4_roles()
        A("s_lshl_b32 s57, s54, 2"); A(f"s_add_u32 s57, s57, {s(sW)}")
        A(f"s_mul_i32 {s(sTOK)}, s57, 40960"); A(f"s_add_u32 {s(sTOK)}, {s(sTOK)}, {hex(X1C_OFF)}")
        A(f"s_lshl_b32 {s(sST)}, s57, 8"); A(f"s_add_u32 {s(sST)}, {s(sST)}, {hex(ST2_OFF)}")
        A(f"s_lshl_b32 {s(sS3)}, s57, 8"); A(f"s_add_u32 {s(sS3)}, {s(sS3)}, {hex(S3_OFF)}")
        A(f"s_lshl_b32 {s(sF4P)}, s57, 9"); A("s_lshl_b32 s58, s55, 2"); A(f"s_add_u32 {s(sF4P)}, {s(sF4P)}, s58"); A(f"s_add_u32 {s(sF4P)}, {s(sF4P)}, {hex(S4_OFF)}")
        A("s_mul_i32 s58, s57, 110592"); A(f"s_add_u32 s58, s58, {hex(HP_OFF)}")
        for t in range(7):
            n0 = 16 * t if t < 3 else 48 + 15 * (t - 3)
            A(f"s_add_u32 s59, s55, {n0}")
            A("s_and_b32 s60, s59, 1"); A("s_lshl_b32 s60, s60, 9")
            A("s_bfe_u32 s61, s59, 0x10001"); A("s_mul_i32 s61, s61, 55296")
            A("s_lshr_b32 s59, s59, 2"); A("s_lshl_b32 s59, s59, 11")
            A("s_add_u32 s60, s60, s61"); A("s_add_u32 s60, s60, s59"); A(f"s_add_u32 {s(sHS+t)}, s60, s58")
            if t >= 3:
                A("s_cmp_eq_u32 s55, 15"); A(f"s_cselect_b32 {s(sHS+t)}, 0x7000000, {s(sHS+t)}")
        A(f"s_waitcnt vmcnt({vm.wait(('st', 3))})")
        self.flag_store_lane0("s76", vt=(8, 9)); vm.add(("flag", 0))
        self.stamp(12)
        dm(99)
        self.p35_roles()
        A("s_lshl_b32 s57, s54, 1"); A(f"s_lshr_b32 s58, {s(sW)}, 1"); A("s_add_u32 s57, s57, s58")
        A(f"s_lshl_b32 {s(sF4C)}, s57, 9"); A(f"s_add_u32 {s(sF4C)}, {s(sF4C)}, {hex(S4_OFF)}")
        A(f"s_mul_i32 {s(sH)}, s57, 110592"); A(f"s_and_b32 s58, {s(sW)}, 1"); A("s_mul_i32 s59, s58, 55296"); A(f"s_add_u32 {s(sH)}, {s(sH)}, s59")
        A(f"s_add_u32 {s(sH)}, {s(sH)}, {hex(HP_OFF)}")
        A("s_waitcnt lgkmcnt(0)")
        A("v_lshrrev_b32 v5, 4, v1"); A("v_lshlrev_b32 v7, 4, v5")
        A("s_mul_i32 s56, s55, 320"); A(f"s_add_u32 s57, s56, {hex(GB_OFF)}")
        for dt in range(5):
            A(f"buffer_load_dwordx4 {v(20+4*dt,4)}, v7, {srd(SWS)}, s57 offen offset:{64*dt} sc1"); vm.add(("gb", dt))
        A("s_mul_i32 s60, s55, 5"); A("s_add_u32 s61, s60, 4"); A("s_lshr_b32 s60, s60, 2"); A("s_lshr_b32 s61, s61, 2")
        A("v_and_b32 v17, 1, v1"); A("v_add_u32 v17, s60, v17"); A("v_min_u32 v17, s61, v17"); A("v_lshlrev_b32 v17, 8, v17")
        A("v_lshlrev_b32 v2, 4, v1"); A("v_add_u32 v3, 0x10000, v2"); A("v_add_u32 v4, 0x20000, v2")
        A("v_and_b32 v5, 31, v1"); A("v_lshlrev_b32 v5, 4, v5"); A(f"v_add_u32 v5, {self.EXT}, v5")
        A("v_bfe_u32 v6, v1, 4, 1"); A("v_lshlrev_b32 v6, 10, v6"); A("v_lshrrev_b32 v7, 5, v1"); A("v_lshl_add_u32 v6, v7, 8, v6")
        A("v_and_b32 v7, 15, v1"); A("v_lshl_add_u32 v6, v7, 4, v6")
        A("v_mov_b32 v7, 0x40000000"); A("v_cmp_eq_u32 vcc, 0, v1"); A("v_cndmask_b32 v7, v7, 0, vcc")
        A("v_mov_b32 v8, 1")
        A(f"s_mul_i32 s58, s58, 5120")
        A("v_add_u32 v13, s58, v2"); A("v_add_u32 v14, 0x10000, v13"); A("v_add_u32 v15, 0x20000, v13")
        A(f"s_and_b32 s58, {s(sW)}, 1"); A("s_xor_b32 s58, s58, 1"); A(f"s_mul_i32 s58, s58, {139*1024}"); A("v_add_u32 v16, s58, v2")
        self.stamp(13)
        A("v_and_b32 v18, 15, v1"); A("v_lshlrev_b32 v18, 2, v18")
        A(f"buffer_load_dword v19, v18, {srd(SWS)}, {s(sS3)} offen sc1")
        A("s_waitcnt vmcnt(0) lgkmcnt(0)")
        A("s_barrier")
        self.check_lines(18, 19, s(sS3), 1)

    def p45(self):
        A = self.A; o = self.o
        vm = VM()
        self.log = []
        evn = [0]; cur = [0]
        def ev(kind, name, fn):
            on = (o.get("ts") == 8 and kind in ("fl", "cmp")) or (o.get("ts") == 9 and kind == "sync") or (o.get("ts") == 10 and kind == "h0") or (o.get("ts") == 11 and kind == "h1") or (o.get("ts") == 12 and kind == "tok")
            if on and evn[0] < 20:
                self.stamp(20 + 2 * evn[0]); fn(); self.stamp(21 + 2 * evn[0]); self.log.append((cur[0], ("EV", evn[0], name))); evn[0] += 1
            else: fn()
        NB = 6; WB = 144; T = 176
        SACC = {0: 40, 1: 56, 2: 72, 3: 88, 4: 40, 5: 56, 6: 72}
        PACC = 104
        NT0 = o.get("nt0", 10)
        LA4 = 3; LA5 = o.get("la5", 3)
        def hreg(i): return 164 + 8 * i if i <= 10 else 8 * (i - 11)
        def ringrd(e, p5=False):
            pos = self.ring_pos(e)
            if not p5:
                return ("v2", "v3", "v4")[pos // 64], (pos % 64) * 1024
            if pos >= 139: return "v16", (pos - 139) * 1024
            return ("v13", "v14", "v15")[pos // 64], (pos % 64) * 1024
        nodes = []
        def add(**k): nodes.append(k); return len(nodes) - 1
        tile_end = {}; tile_start = {}
        for e in range(120):
            k, tl = divmod(e, 3)
            n = add(ph=4, acc=SACC[tl], b=a(4*k, 4), zero=(k == 0), rd=ringrd(e), entry=e, tok=k)
            if k == 0: tile_start[tl] = n
        for tl in range(3):
            tile_end[tl] = add(ph=4, acc=SACC[tl], b=a(160, 4), zero=False, rd=("v5", 512 * tl), entry=None, tok=None, ext=True)
        for t in range(3, 7):
            for k in range(40):
                e = 120 + 40 * (t - 3) + k
                n = add(ph=4, acc=SACC[t], b=a(4*k, 4), zero=(k == 0), rd=ringrd(e), entry=e, tok=None)
                if k == 0: tile_start[t] = n
            tile_end[t] = add(ph=4, acc=SACC[t], b=a(160, 4), zero=False, rd=("v5", 512 * t), entry=None, tok=None, ext=True)
        N4 = len(nodes)
        for i in range(27):
            for ct in range(5):
                for tt in range(2):
                    add(ph=5, acc=PACC + 8 * ct + 4 * tt, b=a(hreg(i) + 4 * tt, 4), zero=(i == 0), rd=(ringrd(288 + 10 * i + ct, True) if tt == 0 else None),
                        entry=288 + 10 * i + ct, step=i, ct=ct, tt=tt)
        N = len(nodes)
        reads = [n for n in range(N) if nodes[n]["rd"] is not None]
        ridx = {n: r for r, n in enumerate(reads)}
        for n in range(N):
            nodes[n]["buf"] = ridx[n] % NB if n in ridx else nodes[n - 1]["buf"]
        r4 = sum(1 for n in reads if n < N4)
        issue_at = {}
        for r, n in enumerate(reads):
            if n < N4:
                pos = n - LA4
                issue_at.setdefault(max(pos, -1), []).append(r)
            else:
                rr = r - LA5
                if rr < r4: issue_at.setdefault("T0", []).append(r)
                else: issue_at.setdefault(reads[rr], []).append(r)
        syncs = {}
        for j in range(1, 9):
            n = next(n for n in range(N4) if nodes[n]["entry"] == 32 * j)
            syncs[ridx[n]] = ("p4", 2 * j + 1)
        SP5 = o.get("sp5", 3)
        for i in range(0, 27, SP5):
            n = next(n for n in range(N4, N) if nodes[n]["step"] == i)
            last = min(270, 10 * (i + SP5)) - 1
            syncs[ridx[n]] = ("p5", 18 + last // 16, i)
        C4 = o.get("c4", 35); C5 = o.get("c5", 26); SEAM = o.get("seam", 450)
        def tm(n): return C4 * n if n < N4 else C4 * N4 + SEAM + C5 * (n - N4)
        def node_at(t):
            if t <= C4 * (N4 - 1): return max(0, -(-t // C4))
            return N4 + max(0, -(-(t - C4 * N4 - SEAM) // C5))
        LAT = o.get("lat", 1200)
        ops = []
        def op(rel, dl, lines, tag, **k): ops.append(dict(rel=rel, dl=dl, lines=lines, tag=tag, **k))
        def tokop(k):
            l = [f"buffer_load_dwordx4 {a(4*k,4)}, v2, {srd(SWS)}, {s(sTOK)} offen" + (f" offset:{1024*(k&3)}" if k & 3 else "") + " sc1"]
            if k & 3 == 3: l.append(f"s_add_u32 {s(sTOK)}, {s(sTOK)}, 4096")
            return l
        def hop(i, tt):
            q = (2 * i + tt) & 3
            l = [f"buffer_load_dwordx4 {a(hreg(i)+4*tt,4)}, v2, {srd(SWS)}, {s(sH)} offen" + (f" offset:{1024*q}" if q else "") + " sc1"]
            if q == 3: l.append(f"s_add_u32 {s(sH)}, {s(sH)}, 4096")
            return l
        dmaq = []
        for R in range(9, 35):
            for l in self.dma_ops(R): dmaq.append((R, l))
        allowed = [8]
        rd_node = {}
        for key, lst in issue_at.items():
            for r in lst: rd_node[r] = (N4 - 1 if key == "T0" else key)
        need_at = {}
        for r in sorted(syncs):
            for R in range(0, syncs[r][1] + 1): need_at.setdefault(R, rd_node[r])
        for k in range(NT0):
            for l in tokop(k): A(l)
            vm.add(("tok", k))
        A("v_and_b32 v10, 31, v1"); A("v_lshlrev_b32 v10, 3, v10")
        for c in range(8):
            A(f"buffer_load_dwordx2 {v(PACC+2*c,2)}, v10, {srd(SWS)}, {s(sST)} offen sc1"); vm.add(("st", c))
            if c < 7: A(f"s_add_u32 {s(sST)}, {s(sST)}, 16384")
        self.mov_s(sF2, F2_OFF)
        A(f"buffer_load_dword v19, v17, {srd(SWS)}, {s(sF2)} offen sc1"); vm.add(("f2", 0))
        A("v_and_b32 v9, 15, v1"); A("v_lshlrev_b32 v9, 2, v9")
        for k in range(NT0, 40): op(max(0, int(o.get("tokr", 2) * (k - NT0))), tm(3 * k) - LAT, tokop(k), ("tok", k), seq="tok")
        fifo = []
        def stats_ops():
            L = []
            b = PACC
            for c in range(1, 8):
                L.append(f"v_add_f32 {v(b)}, {v(b)}, {v(b+2*c)}"); L.append(f"v_add_f32 {v(b+1)}, {v(b+1)}, {v(b+2*c+1)}")
            L += [f"v_mul_f32 {v(b)}, 0x3acccccd, {v(b)}", f"v_mul_f32 {v(b+1)}, 0x3acccccd, {v(b+1)}",
                  f"v_fma_f32 {v(b+1)}, -{v(b)}, {v(b)}, {v(b+1)}", f"v_max_f32 {v(b+1)}, 0, {v(b+1)}",
                  f"v_cvt_pk_bf16_f32 {v(b+1)}, {v(b+1)}, {v(b+1)}", f"v_lshlrev_b32 {v(b+1)}, 16, {v(b+1)}",
                  f"v_add_f32 {v(b+1)}, 0x3727c5ac, {v(b+1)}",
                  f"v_cvt_pk_bf16_f32 {v(b+1)}, {v(b+1)}, {v(b+1)}", f"v_lshlrev_b32 {v(b+1)}, 16, {v(b+1)}",
                  f"v_sqrt_f32 {v(b+1)}, {v(b+1)}",
                  f"v_cvt_pk_bf16_f32 {v(b+3)}, -{v(b)}, -{v(b)}",
                  f"v_cvt_pk_bf16_f32 {v(b+2)}, {v(b+1)}, {v(b+1)}",
                  f"v_lshlrev_b32 {v(b+1)}, 16, {v(b+2)}",
                  "v_cmp_gt_u32 vcc, 32, v1",
                  f"v_mul_f32 v12, {v(b+1)}, {v(b+1)}",
                  f"v_rcp_f32 {v(b+1)}, {v(b+1)}",
                  f"v_cndmask_b32 {v(b+3)}, 0, {v(b+3)}, vcc", f"v_cndmask_b32 {v(b+2)}, 0, {v(b+2)}, vcc",
                  f"v_mov_b32 {v(b+4)}, 0",
                  f"v_mul_f32 v11, 0xbfb8aa3b, {v(b+1)}",
                  f"v_accvgpr_write_b32 a160, {v(b+3)}", f"v_accvgpr_write_b32 a161, {v(b+2)}",
                  f"v_accvgpr_write_b32 a162, {v(b+4)}", f"v_accvgpr_write_b32 a163, {v(b+4)}"]
            return L
        TR = ("v_exp_f32", "v_rcp_f32", "v_sqrt_f32")
        cost = lambda l: 8 if l.startswith(TR) else 4
        ST0 = 3 * NT0 + 6
        for l in stats_ops(): fifo.append((ST0, cost(l), l))
        def epi(t):
            b = SACC[t]; L = []
            st = lambda h: [[f"v_mul_f32 {v(T+h)}, {v(b+h)}, v11", f"v_mul_f32 {v(b+8+h)}, {v(b+h)}, {v(b+8+h)}"],
                            [f"v_exp_f32 {v(T+h)}, {v(T+h)}"], [f"v_fma_f32 {v(T+h)}, {v(T+h)}, v12, v12"], [f"v_rcp_f32 {v(T+h)}, {v(T+h)}"],
                            [f"v_mul_f32 {v(b+8+h)}, {v(b+8+h)}, {v(T+h)}"]]
            for j in range(8 + 5):
                for sg in range(5):
                    h = j - sg
                    if 0 <= h < 8: L += st(h)[sg]
                h = j - 5
                if 0 <= h < 8 and h & 1: L.append(f"v_cvt_pk_bf16_f32 {v(b+(h>>1))}, {v(b+8+h-1)}, {v(b+8+h)}")
            return L
        for t in range(6):
            for l in epi(t): fifo.append((tile_end[t] + 4, cost(l), l))
            fifo.append((0, 0, ("store", t)))
        cls = [0]*4 + [1]*4 + [2]*4 + [3]*3 + [4]*4 + [5]*4 + [6]*4
        FLT = o.get("flt", 1100)
        VIS = o.get("vis", 1500)
        CKT = o.get("ckt", 900)
        F2N = o.get("f2n", 150)
        slow = []
        def check_emit(kind, t):
            lab = A.newlabel("L_slow"); back = A.newlabel("L_back")
            if kind == "cls":
                slow.append((lab, back, f"buffer_load_dword {v(184+t)}, v9, {srd(SWS)}, {s(sF4C)} offen offset:{64*t} sc1", f"v_cmp_eq_u32 vcc, 0, {v(184+t)}"))
                cmp_ = f"v_cmp_eq_u32 vcc, 0, {v(184+t)}"
            else:
                slow.append((lab, back, f"buffer_load_dword v19, v17, {srd(SWS)}, {s(sF2)} offen sc1", "v_cmp_gt_u32 vcc, 54, v19"))
                cmp_ = "v_cmp_gt_u32 vcc, 54, v19"
            return cmp_, [f"s_cbranch_vccnz {lab}", back + ":"]
        events = {}
        def at(n, f): events.setdefault(min(n, N - 1), []).append(f)
        gate_open = {("cls", t): False for t in range(7)}; gate_open["f2"] = False
        ckbusy = [False]
        def sched_cmp(kind, t, n):
            def f():
                if ckbusy[0]:
                    at(cur[0] + 1, f); return
                ckbusy[0] = True
                tag = ("ck", t) if kind == "cls" else ("f2", 0)
                if kind == "cls": assert ("fl", t) in vm.q, ("check before own flag", t)
                ev("cmp", ("w", kind, t), lambda: A(f"s_waitcnt vmcnt({vm.wait(tag)})"))
                c, br = check_emit(kind, t); self.log.append((cur[0], ("CMP", kind, t)))
                A(c)
                def g():
                    def _b():
                        for l in br: A(l)
                    ev("cmp", ("br", kind, t), _b)
                    gate_open[("cls", t) if kind == "cls" else "f2"] = True
                    ckbusy[0] = False
                at(cur[0] + (2 if nodes[min(cur[0], N-1)]["ph"] == 4 else 3), g)
            at(n, f)
        def mk_check(t, rel):
            def oi(n):
                sched_cmp("cls", t, node_at(tm(n) + CKT))
            op(rel, -2, [f"buffer_load_dword {v(184+t)}, v9, {srd(SWS)}, {s(sF4C)} offen offset:{64*t} sc1"], ("ck", t), on_issue=oi)
        gate_open[None] = True
        sched_cmp("f2", 0, F2N)
        step_node = {i: next(n for n in range(N4, N) if nodes[n]["step"] == i) for i in range(27)}
        for i in range(27):
            for tt in range(2):
                op(0 if i <= 10 else N4, tm(step_node[i]) - LAT, hop(i, tt), ("h", i, tt), gate=("cls", cls[i]), seq="h")
        JIT0 = o.get("jit0", 2)
        JM = o.get("jm", 300)
        def jit(t):
            if t < JIT0: return 0
            i0 = cls.index(t)
            return node_at(tm(step_node[i0]) - LAT - CKT - JM)
        lastvm = [-9]
        nrd = [0]
        def emit_read(r):
            if r in syncs:
                sy = syncs[r]
                tgt = sy[1]
                idx = [x for x in vm.q if x[0] == "dma" and x[1] <= tgt]
                miss = [R for R, l in dmaq if R <= tgt]
                assert not miss, ("round not issued before its sync", r, sy, miss)
                def _s():
                    if idx: A(f"s_waitcnt vmcnt({vm.wait(lambda x: x[0] == 'dma' and x[1] <= tgt)})")
                    A("s_barrier")
                ev("sync", sy, _s); self.log.append((cur[0], ("SYNC", sy)))
                n = cur[0]
                if sy[0] == "p4":
                    done = [nodes[m]["entry"] for m in range(0, n + 1) if nodes[m]["entry"] is not None]
                    c = max(done) + 1
                else:
                    c = 288 + max(0, 10 * (sy[2] - 1))
                allowed[0] = max(allowed[0], c // 16 - 1 + 9)
                new = [x for x in dmaq if x[0] <= allowed[0] and not any(oo.get("dq") is x for oo in ops)]
                for j, x in enumerate(new):
                    op(n + 1, tm(need_at[x[0]]) - LAT, x[1], ("dma", x[0]), dq=x, seq="dma", gate=("f2" if x[0] >= 18 else None))
            n = reads[r]
            ad, off = nodes[n]["rd"]
            A(f"ds_read_b128 {v(WB+4*nodes[n]['buf'],4)}, {ad} offset:{off}")
            nrd[0] = r + 1
        def try_vm(n):
            ok = []; seen = set()
            for x in ops:
                sq = x.get("seq")
                if sq:
                    if sq in seen: continue
                    seen.add(sq)
                if x["rel"] > n or not gate_open[x.get("gate")]: continue
                ok.append(x)
            if not ok: return 0
            x = min(ok, key=lambda y: y["dl"])
            ops.remove(x)
            if x.get("pre"): x["pre"]()
            skip = (o.get("xdma") and x["tag"][0] == "dma" and x["tag"][1] >= o["xdma"]) or (o.get("xh") and x["tag"][0] == "h" and x["tag"][1] >= o["xh"] - 1)
            for l in x["lines"]:
                if skip and l.startswith("buffer_load"): l = "s_nop 0"
                A(l)
            if x.get("dq"): dmaq.remove(x["dq"])
            lastvm[0] = n
            if skip:
                vm.dropped = getattr(vm, "dropped", set()) | {x["tag"]}
                return 4
            vm.add(x["tag"]); self.log.append((n, x["tag"]))
            if x.get("on_issue"): x["on_issue"](n)
            return 16 + 4 * (len(x["lines"]) - 1)
        def store_op(t, n):
            b = SACC[t]
            A(f"buffer_store_dwordx4 {v(b,4)}, v6, {srd(SWS)}, {s(sHS+t)} offen sc1"); vm.add(("hs", t)); self.log.append((n, ("hs", t)))
            lastvm[0] = n
            op(node_at(tm(n) + FLT), -3, [f"buffer_store_dword v8, v7, {srd(SWS)}, {s(sF4P)} offen offset:{64*t} sc1"], ("fl", t),
               pre=lambda t=t: ev("fl", ("fl", t), lambda: A(f"s_waitcnt vmcnt({vm.wait(('hs', t))})")),
               on_issue=lambda n2, t=t: mk_check(t, max(node_at(tm(n2) + VIS), jit(t))))
        BUD = o.get("bud", 28)
        def run_fifo(n, budget):
            while fifo and budget > 0:
                e, c, l = fifo[0]
                if e > n: break
                if isinstance(l, tuple):
                    if lastvm[0] == n or budget < 8: break
                    fifo.pop(0); store_op(l[1], n); budget -= 16
                    continue
                if c > budget: break
                fifo.pop(0); A(l); budget -= c
        waited = [-1]
        def pre_waits(n):
            nd = nodes[n]; w = []
            if nd["rd"] is not None:
                r = ridx[n]
                if r > waited[0]:
                    tgt = min(r + 1, nrd[0] - 1)
                    if nd["ph"] == 5 and o.get("w5", 2) == 1: tgt = r
                    w.append(f"lgkmcnt({nrd[0] - 1 - tgt})"); waited[0] = tgt
            if nd.get("tok") is not None and n % 3 == 0:
                w.insert(0, f"vmcnt({vm.wait(('tok', nd['tok']))})")
                if o.get("ts") == 12 and n % 6 == 0:
                    w0 = w.pop(0)
                    ev("tok", ("tok", nd["tok"]), lambda: A("s_waitcnt " + w0))
            if nd["ph"] == 5 and nd["ct"] == 0 and nd["tt"] == 0:
                i = nd["step"]
                if ("h", i, 1) not in getattr(vm, "dropped", set()):
                    assert ("h", i, 1) in vm.q, ("h not issued", i)
                    w.insert(0, f"vmcnt({vm.wait(('h', i, 1))})")
                    if o.get("ts") in (10, 11) and (i < 20) == (o.get("ts") == 10):
                        w0 = w.pop(0)
                        ev("h0" if i < 20 else "h1", ("h", i), lambda: A("s_waitcnt " + w0))
            if w: A("s_waitcnt " + " ".join(w))
            return 4 if w else 0
        for r in issue_at.get(-1, []): emit_read(r)
        for n in range(N):
            cur[0] = n
            nd = nodes[n]
            if n == N4:
                cur[0] = N4 - 1
                for r in issue_at.get("T0", []): emit_read(r)
                self.stamp(15)
                cur[0] = n
                rest6 = [x[2] for x in fifo]; fifo.clear()
                for l in rest6:
                    if isinstance(l, tuple): store_op(l[1], n)
                    else: A(l)
                e6 = epi(6)
                for j, l in enumerate(e6):
                    A(l)
                    if j % 12 == 11: try_vm(n)
                store_op(6, n)
            for t, st_ in tile_start.items():
                if st_ == n and t >= 4:
                    assert not any(isinstance(x[2], tuple) and x[2][1] == t - 4 for x in fifo), ("acc set still busy", t)
            used = pre_waits(n)
            d = v(nd["acc"], 16 if nd["ph"] == 4 else 4)
            opn = "v_mfma_f32_32x32x16_bf16" if nd["ph"] == 4 else "v_mfma_f32_16x16x32_bf16"
            A(f"{opn} {d}, {v(WB+4*nd['buf'],4)}, {nd['b']}, {'0' if nd['zero'] else d}")
            budget = (BUD if nd["ph"] == 4 else 8) - (used if nd["ph"] == 4 else 0)
            for r in issue_at.get(n, []):
                emit_read(r); budget -= 4
            for f in events.pop(n, []):
                f(); budget -= 4
            if nd["ph"] == 4:
                if n - lastvm[0] >= o.get("vgap", 2): budget -= try_vm(n)
                run_fifo(n, budget)
            else:
                if nd["tt"] == 1: try_vm(n)
            if o.get("ts") == 4:
                if "tsl" in o:
                    a0, st_ = (int(x) for x in str(o["tsl"]).split("_"))
                    L_ = [a0 + st_ * j for j in range(40)]
                else:
                    L_ = [30, 60, 90, 122, 163, 204, 245, 286, N4 + 30, N4 + 60, N4 + 90, N4 + 120, N4 + 150, N4 + 180, N4 + 210, N4 + 240]
                if n in L_: self.stamp(20 + L_.index(n))
        assert not events, events.keys()
        assert all(x["tag"][0] in ("fl", "ck") for x in ops), [x["tag"] for x in ops]
        assert not ops, [x["tag"] for x in ops]
        self.slow45 = slow
    def p45_tail(self):
        A = self.A
        PACC = 104
        self.p35_roles()
        A("s_barrier")
        A(f"s_mul_i32 s56, {s(sW)}, 5120"); A("v_add_u32 v5, s56, v2")
        A(f"s_xor_b32 s57, {s(sW)}, 1"); A("s_mul_i32 s57, s57, 5120"); A("v_add_u32 v6, s57, v2")
        A(f"s_and_b32 s58, {s(sW)}, 1"); A("s_cmp_eq_u32 s58, 0"); A("s_cbranch_scc0 L_p5_kh1")
        for ct in range(5): A(f"ds_write_b128 v5, {v(PACC+4+8*ct,4)} offset:{ct*1024}")
        for ct in range(5):
            for r in range(4): A(f"v_mov_b32 {v(40+4*ct+r)}, {v(PACC+8*ct+r)}")
        A("s_branch L_p5_c")
        A.label("L_p5_kh1")
        for ct in range(5): A(f"ds_write_b128 v5, {v(PACC+8*ct,4)} offset:{ct*1024}")
        for ct in range(5):
            for r in range(4): A(f"v_mov_b32 {v(40+4*ct+r)}, {v(PACC+4+8*ct+r)}")
        A.label("L_p5_c")
        A("s_waitcnt lgkmcnt(0)"); A("s_barrier")
        for ct in range(5): A(f"ds_read_b128 {v(60+4*ct,4)}, v6 offset:{ct*1024}")
        A("v_and_b32 v4, 15, v1"); A("v_lshrrev_b32 v5, 4, v1")
        A("v_mul_u32_u24 v6, 0xa000, v4")
        A("v_and_b32 v7, 1, v5"); A("v_lshl_add_u32 v8, v7, 5, v6"); A("v_lshrrev_b32 v7, 1, v5"); A("v_lshl_add_u32 v8, v7, 4, v8")
        A("v_lshl_add_u32 v9, v5, 3, v6")
        A(f"s_lshl_b32 s56, {s(sW)}, 9"); A("s_add_u32 s56, s56, s54"); A("s_mul_i32 s56, s56, 1280"); A("s_mul_i32 s57, s55, 160"); A("s_add_u32 s56, s56, s57")
        A("s_waitcnt lgkmcnt(0)")
        X1 = self.X1
        for k in range(10):
            A(f"v_pk_add_f32 {v(40+2*k,2)}, {v(40+2*k,2)}, {v(60+2*k,2)}")
            A(f"v_pk_fma_f32 {v(40+2*k,2)}, {v(40+2*k,2)}, {v(20+2*k,2)}, {v(X1+2*k,2)}")
        for dt in range(5):
            A(f"v_cvt_pk_bf16_f32 {v(60+2*dt)}, {v(40+4*dt)}, {v(41+4*dt)}")
            A(f"v_cvt_pk_bf16_f32 {v(61+2*dt)}, {v(42+4*dt)}, {v(43+4*dt)}")
        for p in range(2):
            A(f"v_permlane16_swap_b32 {v(60+4*p)}, {v(62+4*p)}")
            A(f"v_permlane16_swap_b32 {v(61+4*p)}, {v(63+4*p)}")
        A(f"buffer_store_dwordx4 v[60:63], v8, {srd(SOUT)}, s56 offen")
        A(f"buffer_store_dwordx4 v[64:67], v8, {srd(SOUT)}, s56 offen offset:64")
        A(f"buffer_store_dwordx2 v[68:69], v9, {srd(SOUT)}, s56 offen offset:128")
    def slow_paths(self):
        A = self.A
        for lab, back, ld, cmp_ in getattr(self, "slow45", []):
            lp = A.newlabel("L_sl")
            A.label(lab)
            A("s_mov_b32 s49, 0")
            A.label(lp)
            A("s_add_u32 s49, s49, 1"); A(f"s_cmp_gt_u32 s49, {POLL_MAX}"); A(f"s_cbranch_scc1 {back}")
            A(ld); A("s_waitcnt vmcnt(0)"); A(cmp_)
            A(f"s_cbranch_vccnz {lp}")
            A(f"s_branch {back}")
    def rest(self):
        st = self.stamp
        self.b2(); st(10); self.p3_main(); st(11)
        if self.end_if_stop(3): return
        self.p4_pre(); st(14); self.p45(); st(18); self.p45_tail(); st(19)
    def build(self):
        A = self.A
        st = self.stamp
        self.prologue()
        self.p1()
        self.arrive1(); st(2)
        self.b1_dead(); st(5)
        self.gb_wait(0); st(6)
        if not self.end_if_stop(1):
            self.p2_main(); st(7)
            if not self.end_if_stop(2):
                self.rest()
        self.ts_flush()
        A.label("L_end")
        A("s_endpgm")
        self.slow_paths()
        A.label("L_code_end")
        A("s_endpgm")
        return self.text()

if __name__ == "__main__":
    out = sys.argv[1]; stop = int(sys.argv[2]) if len(sys.argv) > 2 else 99
    opts = {}
    for kv in sys.argv[3:]:
        k, _, val = kv.partition("=")
        opts[k] = int(val) if val.lstrip("-").isdigit() else (val or 1)
    g = Gen3(stop, opts)
    open(out, "w").write(g.build())
    if opts.get("log"):
        for n, t in g.log:
            if t[0] not in ("tok",): print(n, t)
```

```python
import sys
sys.path.insert(0, "dev")
from asmlib import Asm, v, a, s
import gen1, gen2
from gen2 import *
from gen2 import VM, f2u, srd

W13S_OFF = 0x1800000
W13_FS = 72 * 4096
WS_END = 0x1C80000
gen2.WS_END = WS_END
gen1.WS_END = WS_END
sDW, sW2, sM0, sTOK = 64, 65, 66, 67
sHS = 68
sF4P, sF4C, sH, sST, sF2, sS3 = 75, 77, 78, 79, 80, 81

WS_TOTAL = 0x10000000
class Gen3(gen2.Gen):
    def srd_build(self, which):
        super().srd_build(which)
        wsb = self.o.get("wsb", 0)
        if wsb and SWS in which:
            A = self.A
            A(f"s_add_u32 {s(SWS)}, {s(SWS)}, {hex(wsb << 20)}"); A(f"s_addc_u32 {s(SWS+1)}, {s(SWS+1)}, 0")
    def prologue(self):
        A = self.A
        if self.o.get("cpf", 1):
            n0 = len(A.lines)
            super().prologue()
            i = next(k for k in range(n0, len(A.lines)) if A.lines[k].startswith("s_load_dwordx8"))
            L = ["s_getpc_b64 s[60:61]", "L_pc:",
                 "v_lshrrev_b32 v2, 6, v0", "s_lshr_b32 s62, s2, 3", "s_lshl_b32 s62, s62, 2", "v_add_u32 v2, s62, v2",
                 "v_and_b32 v3, 7, v0", "v_lshl_add_u32 v2, v2, 3, v3", "v_lshlrev_b32 v2, 6, v2",
                 "v_min_u32 v2, L_code_end-L_pc-4, v2",
                 "v_mov_b32 v3, s61", "v_add_co_u32 v2, vcc, s60, v2", "v_addc_co_u32 v3, vcc, 0, v3, vcc",
                 "global_load_dword v253, v[2:3], off"]
            A.lines[i+1:i+1] = L
        else:
            super().prologue()
    CST = 128000
    def p1(self):
        A = self.A
        A(f"s_cmp_ge_u32 {s(sI)}, 16")
        A("s_cbranch_scc1 L_p1_gemv")
        n0 = len(A.lines)
        self.p1_fft()
        L = A.lines
        i0 = next(k for k in range(n0, len(L)) if L[k] == f"s_mov_b32 {s(sRET)}, 0")
        i1 = next(k for k in range(i0, len(L)) if L[k].startswith(f"s_cmp_eq_u32 {s(sRET)}, 2")) + 2
        del L[i0:i1]
        A("s_branch L_arr1")
        A.label("L_p1_gemv")
        A(f"s_lshl_b32 s54, {s(sXC)}, 4"); A(f"s_add_u32 s54, s54, {s(sI)}"); A("s_sub_u32 s54, s54, 16")
        A("s_cmp_ge_u32 s54, 120")
        A("s_cbranch_scc1 L_p1_idle")
        self.p1_gemv()
        A.label("L_p1_idle")
        A("s_waitcnt lgkmcnt(0)")
        self.stamp0()
        self.srd_build(self.ALL_SRD)
        A("s_sub_u32 s55, s54, 120"); A("s_lshl_b32 s55, s55, 14"); A(f"s_lshl_b32 s56, {s(sW)}, 12"); A("s_add_u32 s55, s55, s56")
        A(f"s_add_u32 s55, s55, {hex(BAR_OFF)}")
        A("v_lshlrev_b32 v2, 4, v1")
        for k in range(4): A(f"v_mov_b32 {v(4+k)}, 0")
        for k in range(4): A(f"buffer_store_dwordx4 v[4:7], v2, {srd(SWS)}, s55 offen offset:{1024*k} sc1")
        A("s_waitcnt vmcnt(0)"); A("s_barrier")
        lab = self.wave0_begin()
        A("v_mov_b32 v2, 1"); A("v_mov_b32 v3, 0")
        A("s_mov_b64 s[50:51], exec"); A("s_mov_b64 exec, 1")
        A(f"buffer_atomic_add v2, v3, {srd(SDBG)}, 0 offen sc1")
        A("s_mov_b64 exec, s[50:51]")
        A.label(lab)
    def p1_gemv(self):
        A = self.A
        A("s_mul_i32 s55, s54, 205"); A("s_lshr_b32 s55, s55, 12")
        A("s_mul_i32 s56, s55, 20"); A("s_sub_u32 s56, s54, s56")
        A("v_and_b32 v2, 3, v1"); A("v_lshrrev_b32 v3, 2, v1")
        A(f"s_mul_i32 s57, {s(sW)}, 160")
        A("v_add_u32 v4, s57, v3")
        A("v_mul_u32_u24 v5, 7680, v4"); A("v_lshl_add_u32 v5, v2, 4, v5")
        A("v_lshlrev_b32 v6, 1, v4")
        A("s_lshl_b32 s58, s54, 6")
        A("s_waitcnt lgkmcnt(0)")
        self.stamp0()
        self.srd_build([SWM, SC])
        for n in range(10):
            A(f"buffer_load_dwordx4 {v(20+4*n,4)}, v5, {srd(SWM)}, s58 offen")
            if n < 9: A(f"s_add_u32 s58, s58, {16*7680}")
        for n in range(10):
            A(f"buffer_load_ushort {v(10+n)}, v6, {srd(SC)}, 0 offen offset:{32*n}")
        self.srd_build([b for b in self.ALL_SRD if b not in (SWM, SC)])
        self.ts(6, 40); self.ts(7, 40)
        A("s_cmp_le_u32 s55, 1"); A("s_cbranch_scc0 L_gv_notrig")
        self.trig_states()
        A("s_branch L_gv_pre_done0")
        A.label("L_gv_notrig")
        A("s_cmp_eq_u32 s55, 2"); A("s_cbranch_scc0 L_gv_pre_done0")
        self.g_gen()
        A.label("L_gv_nog")
        A("s_waitcnt vmcnt(10)")
        A("s_branch L_gv_go")
        A.label("L_gv_pre_done0")
        A("s_waitcnt vmcnt(0)")
        A.label("L_gv_go")
        self.ts(6, 41)
        n0 = len(A.lines)
        super().p1_gemv()
        L = A.lines
        i0 = next(k for k in range(n0, len(L)) if L[k] == "L_gv_pre_done:")
        i1 = next(k for k in range(i0, len(L)) if L[k] == "s_waitcnt vmcnt(0)")
        del L[n0:i1 + 1]
        j = next(k for k in range(n0, len(L)) if L[k] == "L_gv_late:")
        assert L[j + 1] == f"s_mov_b32 {s(sRET)}, 2" and L[j + 2] == "s_branch L_consts"
        L[j + 1:j + 3] = ["s_branch L_arr1"]
    def consts_split(self):
        A = self.A
        A(f"s_cmp_ge_u32 {s(sI)}, 28"); A("s_cbranch_scc1 L_cs_end")
        A("v_and_b32 v4, 15, v1"); A("v_lshrrev_b32 v5, 4, v1")
        A("v_lshlrev_b32 v6, 2, v5"); A("v_cvt_f32_u32 v6, v6"); A("v_mul_f32 v6, 0x3a000000, v6")
        A(f"s_and_b32 s56, {s(sW)}, 1"); A("s_cmp_eq_u32 s56, 0"); A(f"s_cselect_b32 s57, {s(sOFF1)}, {s(sOFF2)}")
        A(f"s_lshr_b32 s56, {s(sW)}, 1"); A("s_cmp_eq_u32 s56, 0")
        A("s_mov_b32 s60, 0x42800000")
        A("s_cselect_b32 s58, 1.0, s60")
        A("s_cselect_b32 s59, s60, 1.0")
        A("s_cselect_b32 s61, 0, 0x3a000000")
        A("s_cselect_b32 s62, 1.0, 0")
        A("v_cvt_f32_u32 v9, s57")
        A("v_mul_f32 v18, s61, v9"); A("v_mul_f32 v9, s62, v9")
        for jj in range(8):
            o_ = 16 * (jj >> 2) + (jj & 3)
            if o_ == 0: A(f"v_fma_f32 {v(10+jj)}, v6, s58, v18")
            else:
                A(f"v_add_f32 {v(10+jj)}, {hex(f2u(o_ / 2048.0))}, v6")
                A(f"v_fma_f32 {v(10+jj)}, {v(10+jj)}, s58, v18")
        A("v_cvt_f32_u32 v7, v4"); A("v_add_f32 v8, 0x41800000, v7")
        A(f"s_lshl_b32 s56, {s(sW)}, 12"); A(f"s_add_u32 s56, s56, {self.CST}")
        A("v_lshlrev_b32 v46, 4, v1"); A("v_add_u32 v47, s56, v46")
        for tl in range(2):
            A(f"v_fma_f32 v19, {v(7+tl)}, s59, v9")
            for jj in range(8): A(f"v_mul_f32 {v(20+jj)}, v19, {v(10+jj)}")
            for jj in range(8): A(f"v_sin_f32 {v(28+jj)}, {v(20+jj)}")
            for jj in range(8): A(f"v_cos_f32 {v(20+jj)}, {v(20+jj)}")
            b = 36 if tl == 0 else 48
            for k in range(4): A(f"v_cvt_pk_bf16_f32 {v(b+k)}, {v(20+2*k)}, {v(21+2*k)}")
            for k in range(4): A(f"v_cvt_pk_bf16_f32 {v(b+4+k)}, {v(28+2*k)}, {v(29+2*k)}")
            A(f"ds_write_b128 v47, {v(b,4)} offset:{2048*tl}")
            A(f"ds_write_b128 v47, {v(b+4,4)} offset:{2048*tl+1024}")
        if self.o.get("p1v", 0) == 0:
            A("s_waitcnt lgkmcnt(0)"); A("s_barrier")
            A(f"s_cmp_eq_u32 {s(sW)}, 3"); A("s_cbranch_scc1 L_cs_end")
            A(f"v_add_u32 v46, {self.CST}, v46")
            for k in range(16): A(f"ds_read_b128 {a(160+4*k,4)}, v46 offset:{1024*k}")
        A.label("L_cs_end")
    def consts_read(self):
        A = self.A
        A(f"s_cmp_ge_u32 {s(sI)}, 28"); A("s_cbranch_scc1 L_cr_end")
        A(f"s_cmp_eq_u32 {s(sW)}, 3"); A("s_cbranch_scc1 L_cr_end")
        A("v_lshlrev_b32 v46, 4, v1"); A(f"v_add_u32 v46, {self.CST}, v46")
        for k in range(16): A(f"ds_read_b128 {a(160+4*k,4)}, v46 offset:{1024*k}")
        A.label("L_cr_end")
    def arrive1(self):
        if self.o.get("p1v", 0) == 0: return super().arrive1()
        A = self.A
        A.label("L_arr1")
        self.stamp(1)
        A("v_mov_b32 v3, 0")
        aw = 3 if self.o.get("bar", 0) == 2 else 0
        def wbegin():
            lab = A.newlabel("L_naw")
            A(f"s_cmp_lg_u32 {s(sW)}, {aw}"); A(f"s_cbranch_scc1 {lab}")
            return lab
        lab = wbegin()
        A(f"buffer_load_dword v2, v3, {srd(SDBG)}, 0 offen sc1")
        A.label(lab)
        self.consts_split()
        A("s_waitcnt vmcnt(0) lgkmcnt(0)")
        A("s_barrier")
        lab = wbegin()
        lp = A.newlabel("L_ini"); ok = A.newlabel("L_iniok")
        A("s_mov_b32 s49, 0")
        A.label(lp)
        A("v_readfirstlane_b32 s48, v2")
        A("s_cmp_ge_u32 s48, 8"); A(f"s_cbranch_scc1 {ok}")
        A("s_add_u32 s49, s49, 1"); A(f"s_cmp_gt_u32 s49, {POLL_MAX}"); A(f"s_cbranch_scc1 {ok}")
        A(f"buffer_load_dword v2, v3, {srd(SDBG)}, 0 offen sc1")
        A("s_waitcnt vmcnt(0)")
        A(f"s_branch {lp}")
        A.label(ok)
        self.gb_arrive(0)
        A.label(lab)
        self.consts_read()
    def ra_shard(self, S):
        A = self.A
        if self.o.get("barmap", 0): A(f"s_and_b32 s48, s2, {S-1}")
        else: A(f"s_lshr_b32 s48, s2, {(256 // S).bit_length() - 1}")
    def ra_arrive(self, idx):
        A = self.A
        S = self.o.get("barS", 8)
        self.ra_shard(S)
        A("s_lshl_b32 s48, s48, 8"); A(f"s_add_u32 s48, s48, {hex(BAR_OFF + idx * 0x8000)}")
        A("v_mov_b32 v30, 1"); A("v_mov_b32 v31, 0")
        A("s_mov_b64 s[50:51], exec"); A("s_mov_b64 exec, 1")
        A(f"buffer_atomic_add v30, v31, {srd(SWS)}, s48 offen sc0 sc1")
        A("s_mov_b64 exec, s[50:51]")
    def ra_release(self, idx):
        A = self.A
        S = self.o.get("barS", 8)
        lab = A.newlabel("L_norel")
        A("v_readfirstlane_b32 s49, v30")
        A(f"s_cmp_lg_u32 s49, {256 // S - 1}"); A(f"s_cbranch_scc1 {lab}")
        self.ra_shard(S)
        A("s_lshl_b32 s48, s48, 2"); A(f"s_add_u32 s48, s48, {hex(BAR_OFF + idx * 0x8000 + 0x1000)}")
        A("v_mov_b32 v30, 1"); A("v_lshlrev_b32 v31, 8, v1")
        A("s_mov_b64 s[50:51], exec"); A("s_mov_b64 exec, 0xff")
        A(f"buffer_store_dword v30, v31, {srd(SWS)}, s48 offen sc1")
        A("s_mov_b64 exec, s[50:51]")
        A.label(lab)
    def poll(self, vaddr, soff, expect, vt=2, off=0):
        if self.o.get("psl", 0) and soff == "s48" and vaddr == 3:
            A = self.A
            n0 = len(A.lines)
            super().poll(vaddr, soff, expect, vt, off)
            j = max(k for k in range(n0, len(A.lines)) if A.lines[k].startswith("s_branch L_poll"))
            A.lines.insert(j, f"s_sleep {self.o['psl']}")
            return
        if not (self.o.get("pm", 0) and soff == "s48" and vaddr == 3): return super().poll(vaddr, soff, expect, vt, off)
        A = self.A
        lp = A.newlabel("L_poll"); ex = A.newlabel("L_pexit")
        A("s_mov_b32 s49, 0")
        A("s_mov_b64 s[50:51], exec"); A("s_mov_b64 exec, 0xffff")
        A.label(lp)
        A("s_add_u32 s49, s49, 1"); A(f"s_cmp_gt_u32 s49, {POLL_MAX}"); A(f"s_cbranch_scc1 {ex}")
        o = f" offset:{off}" if off else ""
        A(f"buffer_load_dword {v(vt)}, {v(vaddr)}, {srd(SWS)}, {soff} offen{o} sc1")
        A("s_waitcnt vmcnt(0)")
        A(f"v_cmp_gt_u32 vcc, {expect}, {v(vt)}")
        A("s_mov_b64 exec, vcc")
        A(f"s_cbranch_execnz {lp}")
        A.label(ex)
        A("s_mov_b64 exec, s[50:51]")
    def bar_sr(self, idx):
        return self.o.get(f"barS{idx}", self.o.get("barS", 16)), self.o.get(f"barR{idx}", self.o.get("barR", 8))
    def gb_arrive(self, idx):
        if self.o.get("bar", 0) == 2: return self.ra_arrive(idx)
        S, R = self.bar_sr(idx)
        if (S, R) == (16, 8):
            super().gb_arrive(idx)
            gate = self.o.get(f"gate{idx}", -1)
            if gate >= 0:
                A = self.A
                lab = A.newlabel("L_ngate")
                A(f"s_cmp_lg_u32 s2, {gate}"); A(f"s_cbranch_scc1 {lab}")
                A(f"s_mov_b32 s48, {hex(BAR_OFF + idx * 0x8000 + 128)}")
                A("s_mov_b64 exec, 0xff")
                A(f"buffer_store_dword v2, v3, {srd(SWS)}, s48 offen sc1")
                A("s_mov_b64 exec, s[50:51]")
                A.label(lab)
            return
        A = self.A
        sh = (256 // S).bit_length() - 1
        A(f"s_lshr_b32 s48, s2, {sh}"); A("s_lshl_b32 s48, s48, 8"); A(f"s_add_u32 s48, s48, {hex(BAR_OFF + idx * 0x8000)}")
        A(f"v_mul_u32_u24 v3, {S*256}, v1"); A("v_mov_b32 v2, 1")
        A("s_mov_b64 s[50:51], exec"); A(f"s_mov_b64 exec, {hex((1 << R) - 1) if R < 64 else -1}" if R != 32 else "s_mov_b32 exec_hi, 0")
        A(f"buffer_atomic_add v2, v3, {srd(SWS)}, s48 offen sc1")
        A("s_mov_b64 exec, s[50:51]")
    def gb_poll(self, idx):
        S, R = self.bar_sr(idx)
        A = self.A
        if self.o.get("bar", 0) == 2:
            S = self.o.get("barS", 8)
            A(f"v_and_b32 v3, {S-1}, v1"); A("v_lshlrev_b32 v3, 2, v3")
            A(f"s_lshl_b32 s48, {s(sXC)}, 8"); A(f"s_add_u32 s48, s48, {hex(BAR_OFF + idx * 0x8000 + 0x1000)}")
            self.poll(3, "s48", 1)
            return
        if self.o.get(f"gate{idx}", -1) >= 0:
            A("v_mov_b32 v3, 0")
            A(f"s_lshl_b32 s48, {s(sXC)}, 12"); A(f"s_add_u32 s48, s48, {hex(BAR_OFF + idx * 0x8000 + 128)}")
            self.poll(3, "s48", 1)
        A(f"v_and_b32 v3, {S-1}, v1"); A("v_lshlrev_b32 v3, 8, v3")
        A(f"s_and_b32 s48, s2, {R-1}"); A(f"s_mul_i32 s48, s48, {S*256}"); A(f"s_add_u32 s48, s48, {hex(BAR_OFF + idx * 0x8000)}")
        self.poll(3, "s48", min(256 // S, 64) if 256 // S <= 64 else "s52")
    def gb_wait(self, idx):
        S, R = self.bar_sr(idx)
        if 256 // S > 64 and self.o.get("bar", 0) != 2: self.A(f"s_mov_b32 s52, {256 // S}")
        if idx != 0 or self.o.get("p1v", 0) == 0:
            A = self.A
            lab = self.wave0_begin()
            self.gb_poll(idx)
            A.label(lab)
            A("s_waitcnt vmcnt(0)")
            A("s_barrier")
            return
        A = self.A
        pw = self.o.get("pw", 3)
        if self.o.get("pb", 0): A("s_barrier")
        lab = A.newlabel("L_nw3")
        A(f"s_cmp_lg_u32 {s(sW)}, {pw}"); A(f"s_cbranch_scc1 {lab}")
        if self.o.get("psl0", 0): A(f"s_sleep {self.o['psl0']}")
        self.gb_poll(idx)
        A.label(lab)
        if self.o.get("pv0", 0): A("s_waitcnt vmcnt(0)")
        A("s_barrier")
    def b1_dead(self):
        A = self.A
        self.rp13_issue()
        A(f"s_cmp_ge_u32 {s(sI)}, 28"); A("s_cbranch_scc1 L_b1_now")
        A(f"s_cmp_eq_u32 {s(sW)}, 3"); A("s_cbranch_scc1 L_b1_now")
        A("s_mov_b32 s58, 642")
        self.p2_wloads()
        A.label("L_b1_now")
        if self.o.get("bar", 0) == 2:
            lab = A.newlabel("L_nw3r"); la = A.newlabel("L_r0"); lb = A.newlabel("L_r1")
            A(f"s_cmp_lg_u32 {s(sW)}, 3"); A(f"s_cbranch_scc1 {lab}")
            A("s_cmp_ge_u32 s2, 216"); A(f"s_cbranch_scc1 {la}")
            A("s_waitcnt vmcnt(5)"); A(f"s_branch {lb}")
            A.label(la); A("s_waitcnt vmcnt(0)"); A.label(lb)
            self.ra_release(0)
            A.label(lab)
        self.stamp(3)
        if self.o.get("p1v", 0) == 0:
            self.consts_split()
            A("s_waitcnt lgkmcnt(0)")
        self.stamp(4)
    def uv_tile(self, tl, vm):
        A = self.A
        b = 40 if tl % 2 == 0 else 80
        A("s_cmp_lt_u32 s2, 216"); A("s_cselect_b32 s63, s62, 0x7000000")
        self.rp13_read(6, 7, b, extra=32 * tl)
        A("s_lshr_b32 s52, s2, 3"); A("s_and_b32 s53, s2, 7")
        A("s_lshl_b32 s54, s52, 2"); A(f"s_add_u32 s54, s54, {tl}")
        A("s_mul_i32 s55, s54, 9363"); A("s_lshr_b32 s55, s55, 16")
        A("s_mul_i32 s56, s55, 7"); A("s_sub_u32 s56, s54, s56")
        A("s_mul_i32 s53, s53, 5")
        A("s_mul_i32 s52, s53, 3"); A("s_add_u32 s52, s52, s56")
        A("s_mul_i32 s54, s56, 40"); A("s_add_u32 s54, s54, s53")
        A("s_cmp_lt_u32 s56, 3"); A("s_cselect_b32 s52, s52, s54"); A("s_movk_i32 s54, 0x400"); A("s_cselect_b32 s53, 3072, s54")
        A("s_lshl_b32 s52, s52, 10"); A(f"s_mul_i32 s55, s55, {W13_FS}"); A("s_add_u32 s52, s52, s55"); A(f"s_add_u32 s52, s52, {hex(W13S_OFF)}")
        A("s_cmp_lt_u32 s2, 216"); A("s_cselect_b32 s52, s52, 0x7000000")
        if tl == 0: A(f"s_waitcnt vmcnt({vm.wait(('uvl', 0))})")
        A("s_waitcnt lgkmcnt(0)")
        for k5 in range(5):
            A(f"v_mfma_f32_32x32x16_bf16 v[64:79], {v(120+4*k5,4)}, {v(b+4*k5,4)}, {'0' if k5 == 0 else 'v[64:79]'}")
            A(f"buffer_store_dwordx4 {v(b+4*k5,4)}, v2, {srd(SWS)}, s52 offen sc1"); vm.add(("w13", tl))
            if k5 < 4: A("s_add_u32 s52, s52, s53")
        A("s_mov_b64 s[66:67], exec"); A("s_mov_b32 exec_hi, 0")
        A(f"buffer_store_dwordx2 v[64:65], v12, {srd(SWS)}, s63 offen offset:{256*tl} sc1"); vm.add(("uvs", tl))
        A("s_mov_b64 exec, s[66:67]")
    def p3_small(self):
        A = self.A
        self.p35_roles()
        A("v_and_b32 v4, 15, v1"); A("v_lshrrev_b32 v5, 4, v1")
        A("v_mul_u32_u24 v6, 0xa000, v4"); A("v_lshl_add_u32 v6, v5, 3, v6")
        A(f"s_lshl_b32 s56, {s(sW)}, 9"); A("s_add_u32 s56, s56, s54"); A("s_mul_i32 s56, s56, 1280"); A("s_mul_i32 s57, s55, 160"); A("s_add_u32 s56, s56, s57")
        for dt in range(5):
            A(f"buffer_load_dwordx2 {v(200+2*dt,2)}, v6, {srd(SX)}, s56 offen offset:{32*dt}")
        A("v_lshlrev_b32 v7, 4, v5")
        A("s_mul_i32 s56, s55, 320"); A(f"s_add_u32 s57, s56, {hex(GA_OFF)}"); A(f"s_add_u32 s58, s56, {hex(CB1F_OFF)}")
        for dt in range(5):
            A(f"buffer_load_dwordx4 {v(160+4*dt,4)}, v7, {srd(SWS)}, s57 offen offset:{64*dt} sc1")
            A(f"buffer_load_dwordx4 {v(180+4*dt,4)}, v7, {srd(SWS)}, s58 offen offset:{64*dt} sc1")
    def p3_gdma(self):
        A = self.A
        self.p35_roles()
        A("v_lshlrev_b32 v2, 4, v1")
        A("s_mul_i32 s56, s55, 107520"); A(f"s_lshl_b32 s57, {s(sW)}, 10"); A("s_add_u32 s56, s56, s57"); A(f"s_add_u32 s56, s56, {hex(GP_OFF)}")
        for k in range(27):
            A(f"s_add_u32 m0, s57, {k*4096}")
            A(f"buffer_load_dwordx4 v2, {srd(SWS)}, s56 offen sc1 lds")
            if k < 26: A("s_add_u32 s56, s56, 4096")
    def b2(self):
        A = self.A
        g3 = self.o.get("g3", 0)
        self.p3_small()
        if g3 == 2:
            l6 = A.newlabel("L_b2r")
            A(f"s_cmp_lg_u32 {s(sW)}, 3"); A(f"s_cselect_b32 s48, {s(sI)}, 28"); A("s_cmp_lt_u32 s48, 28"); A(f"s_cbranch_scc1 {l6}")
        self.rp2_issue()
        if g3 == 2: A.label(l6)
        self.stamp(8)
        if g3:
            l3 = A.newlabel("L_b2w3"); l3b = A.newlabel("L_b2w3b")
            A(f"s_cmp_lg_u32 {s(sW)}, 3"); A(f"s_cselect_b32 s48, 28, {s(sI)}"); A("s_cmp_lt_u32 s48, 28"); A(f"s_cbranch_scc1 {l3}")
        A("s_waitcnt vmcnt(15)")
        if g3 == 1: A.label(l3)
        if g3 == 2:
            A(f"s_branch {l3b}")
            A.label(l3); A("s_waitcnt vmcnt(63)"); A.label(l3b)
        A("s_barrier")
        lab = self.wave0_begin()
        self.gb_arrive(1)
        A.label(lab)
        self.stamp(9)
        if g3:
            l4 = A.newlabel("L_b2g"); l5 = A.newlabel("L_b2h")
            A(f"s_cmp_lt_u32 {s(sI)}, 28"); A(f"s_cbranch_scc1 {l4}")
        self.p3_gdma()
        A("s_waitcnt vmcnt(27)")
        if g3:
            A(f"s_branch {l5}")
            A.label(l4)
            if g3 == 2:
                A(f"s_cmp_lg_u32 {s(sW)}, 3"); A(f"s_cbranch_scc1 {l5}")
            A("s_waitcnt vmcnt(0)"); A.label(l5)
        if self.o.get("bar", 0) == 2:
            lab = self.wave0_begin()
            self.ra_release(1)
            A.label(lab)
        self.rp2_finish()
        if not self.o.get("c3late", 0): self.p3_consts()
        self.stamp(20) if self.o.get("ts") == 1 else None
        self.gb_wait(1)


    def rp13_finish(self):
        A = self.A
        A("s_cmp_ge_u32 s2, 216"); A("s_cbranch_scc1 L_rp13_done")
        A("s_lshr_b32 s52, s2, 3"); A("s_and_b32 s53, s2, 7")
        self.rp13_addr(6, 7)
        A(f"s_lshl_b32 s54, {s(sW)}, 5"); A("v_add_u32 v6, s54, v6"); A("v_add_u32 v7, s54, v7")
        self.rp13_read(6, 7, 40)
        A("s_lshl_b32 s54, s52, 2"); A(f"s_add_u32 s54, s54, {s(sW)}")
        A("s_mul_i32 s55, s54, 9363"); A("s_lshr_b32 s55, s55, 16")
        A("s_mul_i32 s56, s55, 7"); A("s_sub_u32 s56, s54, s56")
        A("s_mul_i32 s57, s53, 5")
        A("s_mul_i32 s58, s57, 3"); A("s_add_u32 s58, s58, s56")
        A("s_mul_i32 s59, s56, 40"); A("s_add_u32 s59, s59, s57")
        A("s_cmp_lt_u32 s56, 3"); A("s_cselect_b32 s58, s58, s59"); A("s_movk_i32 s60, 0x400"); A("s_cselect_b32 s59, 3072, s60")
        A("s_lshl_b32 s58, s58, 10"); A(f"s_mul_i32 s55, s55, {W13_FS}"); A("s_add_u32 s54, s58, s55"); A(f"s_add_u32 s54, s54, {hex(W13S_OFF)}")
        A("v_lshlrev_b32 v8, 4, v1")
        for k5 in range(5):
            A(f"s_waitcnt lgkmcnt({8-2*k5})")
            A(f"buffer_store_dwordx4 {v(40+4*k5,4)}, v8, {srd(SWS)}, s54 offen sc1")
            if k5 < 4: A("s_add_u32 s54, s54, s59")
        A.label("L_rp13_done")
    def tile_of(self, dst, n, tmp):
        A = self.A
        t0, t1 = tmp
        A(f"s_lshr_b32 {s(t0)}, {s(n)}, 4"); A(f"s_and_b32 {s(t1)}, {s(n)}, 15")
        A(f"s_mul_i32 {s(t1)}, {s(t1)}, 7"); A(f"s_add_u32 {s(dst)}, {s(t0)}, {s(t1)}")
        A(f"s_sub_u32 {s(t0)}, {s(n)}, 48")
        A(f"s_mul_i32 {s(t1)}, {s(t0)}, 4370"); A(f"s_lshr_b32 {s(t1)}, {s(t1)}, 16")
        A(f"s_mul_i32 s48, {s(t1)}, 15"); A(f"s_sub_u32 {s(t0)}, {s(t0)}, s48")
        A(f"s_mul_i32 {s(t0)}, {s(t0)}, 7"); A(f"s_add_u32 {s(t0)}, {s(t0)}, {s(t1)}"); A(f"s_add_u32 {s(t0)}, {s(t0)}, 3")
        A(f"s_cmp_lt_u32 {s(n)}, 48"); A(f"s_cselect_b32 {s(dst)}, {s(dst)}, {s(t0)}")
    def rp2_issue(self, vt=(4, 5), sfx=""):
        A = self.A
        x, y = v(vt[0]), v(vt[1])
        self.rp2_unit()
        A("s_cmp_ge_u32 s63, 540"); A(f"s_cbranch_scc1 L_rp2_i_done{sfx}")
        A(f"v_lshrrev_b32 {x}, 3, v1"); A(f"v_and_b32 {y}, 7, v1")
        A(f"v_mul_u32_u24 {x}, 1280, {x}"); A(f"v_lshl_add_u32 {x}, {y}, 4, {x}")
        A(f"s_lshl_b32 s54, {s(sW)}, 12"); A(f"s_add_u32 s54, s54, {self.STG2}")
        A("s_lshl_b32 s58, s56, 7")
        for half in range(2):
            A("s_lshl_b32 s60, s55, 1")
            if half: A("s_add_u32 s60, s60, 1")
            self.tile_of(59, 60, (61, 62))
            A(f"s_mul_i32 s57, s59, {16*1280}"); A("s_add_u32 s57, s57, s58")
            for n in range(2):
                A(f"s_add_u32 m0, s54, {(2*half+n)*1024}")
                A(f"buffer_load_dwordx4 {x}, {srd(SW2)}, s57 offen lds")
                if n == 0: A(f"s_add_u32 s57, s57, {8*1280}")
        A.label(f"L_rp2_i_done{sfx}")
    def p4_roles(self):
        A = self.A
        A(f"s_lshr_b32 s54, {s(sI)}, 3"); A("s_lshl_b32 s54, s54, 2"); A(f"s_lshr_b32 s55, {s(sXC)}, 1"); A("s_add_u32 s54, s54, s55")
        A(f"s_and_b32 s55, {s(sXC)}, 1"); A("s_lshl_b32 s55, s55, 3"); A(f"s_and_b32 s56, {s(sI)}, 7"); A("s_add_u32 s55, s55, s56")
    ROT = 7
    EXT = 157696
    def ring_m0(self, R):
        return ((R + self.ROT) % 9) * 16384
    def ring_pos(self, e):
        return (e + 16 * self.ROT) % 144
    def dma_ops(self, R):
        L = []
        for j in range(4):
            l = [f"buffer_load_dwordx4 v2, {srd(SWS)}, {s(sDW)} offen" + (f" offset:{1024*j}" if j else "") + " sc1 lds"]
            if j == 3:
                if R == 17: l.append(f"s_mov_b32 {s(sDW)}, {s(sW2)}")
                else: l.append(f"s_add_u32 {s(sDW)}, {s(sDW)}, 16384")
                l.append(f"s_add_u32 m0, {s(sM0)}, {self.ring_m0(R + 1)}")
            L.append(l)
        return L
    def ring_setup(self):
        A = self.A
        self.p4_roles()
        A(f"s_lshl_b32 {s(sM0)}, {s(sW)}, 12")
        A(f"s_mul_i32 {s(sDW)}, s55, {W13_FS}"); A(f"s_add_u32 {s(sDW)}, {s(sDW)}, {s(sM0)}"); A(f"s_add_u32 {s(sDW)}, {s(sDW)}, {hex(W13S_OFF)}")
        A(f"s_and_b32 s56, {s(sI)}, 7"); A(f"s_mul_i32 s56, s56, {54*5120}"); A(f"s_add_u32 s56, s56, {s(sM0)}"); A(f"s_add_u32 {s(sW2)}, s56, {hex(W2P_OFF)}")
        A(f"s_add_u32 m0, {s(sM0)}, {self.ring_m0(0)}")

    def p2_main(self):
        n0 = len(self.A.lines)
        super().p2_main()
        L = self.A.lines
        i0 = next(i for i in range(n0, len(L)) if L[i].startswith("s_cmp_ge_u32 s2, 216") and L[i+1].startswith("s_cbranch_scc1 L_p2_done") and L[i+2].startswith("s_waitcnt vmcnt(0)"))
        i1 = next(i for i in range(i0, len(L)) if L[i] == "L_p2_done:")
        del L[i0:i1 + 1]
        A = self.A
        if self.o.get("g3", 0) == 2:
            j = next(k for k in range(n0, len(L)) if L[k] == "s_barrier" and L[k + 1] == "s_waitcnt vmcnt(0)")
            tail = L[j + 2:]
            del L[j + 2:]
            self.rp2_issue(vt=(10, 11), sfx="_a")
            L.extend(tail)

        if self.o.get("g3", 0):
            if self.o.get("g3", 0) == 1: A("s_waitcnt vmcnt(0)")
            self.p35_roles()
            A("s_mul_i32 s56, s55, 107520"); A(f"s_add_u32 s56, s56, {hex(GP_OFF)}")
            for r in range(27):
                A(f"s_mov_b32 m0, {r*4096}")
                for j in range(4 if r < 26 else 1):
                    A(f"buffer_load_dwordx4 v2, {srd(SWS)}, s56 offen" + (f" offset:{1024*j}" if j else "") + " sc1 lds")
                if r < 26: A("s_add_u32 s56, s56, 4096")
        A.label("L_p2_done")

    def p3_main(self):
        A = self.A
        PF = self.o.get("p3pf", 6)
        NPRE = self.o.get("npre", 6)
        self.ring_setup()
        self.p35_roles()
        A("v_and_b32 v4, 15, v1"); A("v_lshrrev_b32 v5, 4, v1")
        A("v_lshrrev_b32 v6, 2, v4"); A("v_lshlrev_b32 v6, 8, v6"); A("v_lshrrev_b32 v7, 1, v5"); A("v_lshl_add_u32 v6, v7, 7, v6")
        A("v_and_b32 v7, 3, v4"); A("v_lshl_add_u32 v6, v7, 5, v6"); A("v_and_b32 v7, 1, v5"); A("v_lshl_add_u32 v6, v7, 4, v6")
        A("s_mul_i32 s56, s54, 86016"); A(f"s_lshl_b32 s57, {s(sW)}, 10"); A("s_add_u32 s56, s56, s57"); A(f"s_add_u32 s56, s56, {hex(A3_OFF)}")
        vm = VM()
        nl = [0]
        def ld():
            if nl[0] >= 21: return False
            A(f"buffer_load_dwordx4 {a(4*nl[0],4)}, v6, {srd(SWS)}, s56 offen sc1"); vm.add(("a3", nl[0]))
            if nl[0] < 20: A("s_add_u32 s56, s56, 4096")
            nl[0] += 1
            return True
        for k in range(PF): ld()
        if self.o.get("c3late", 0):
            A("v_mov_b32 v30, v6")
            self.p3_consts()
            A("v_mov_b32 v6, v30"); A("v_and_b32 v4, 15, v1"); A("v_lshrrev_b32 v5, 4, v1")
            self.p35_roles()
            A("s_mul_i32 s56, s54, 86016"); A(f"s_lshl_b32 s57, {s(sW)}, 10"); A("s_add_u32 s56, s56, s57"); A(f"s_add_u32 s56, s56, {hex(A3_OFF + PF*4096)}")
        A("v_lshlrev_b32 v2, 4, v1"); A("v_add_u32 v3, 56320, v2")
        self.rp2_unit()
        A("s_lshl_b32 s62, s56, 8"); A(f"s_add_u32 s62, s62, {hex(F2_OFF)}")
        A("s_cmp_ge_u32 s63, 540"); A("s_cselect_b32 s62, 0x7000000, s62")
        self.atomic_inc_lane0("s62", vt=(8, 9)); vm.add(("f2", 0))
        A("v_lshrrev_b32 v7, 5, v0"); A("v_and_b32 v8, 31, v0")
        A("v_lshlrev_b32 v9, 8, v7"); A("v_lshl_add_u32 v9, v8, 3, v9")
        extra = []
        self.p4_roles()
        A("s_mul_i32 s58, s55, 1792"); A(f"s_add_u32 s58, s58, {hex(UVP_OFF)}")
        self.p35_roles()
        A("s_mul_i32 s56, s54, 86016"); A(f"s_lshl_b32 s57, {s(sW)}, 10"); A("s_add_u32 s56, s56, s57"); A(f"s_add_u32 s56, s56, {hex(A3_OFF + PF*4096)}")
        for p in range(8):
            l = [f"buffer_load_dwordx2 {v(120+2*p,2)}, v9, {srd(SWS)}, s58 offen sc1"]
            if p < 7: l.append(f"s_add_u32 s58, s58, {108*256}")
            extra.append((l, ("uv", p)))
        for R in range(2):
            for l in self.dma_ops(R): extra.append((l, ("dma", R)))
        def ex():
            if ld(): return
            if extra:
                l, tag = extra.pop(0)
                for x in l: A(x)
                vm.add(tag)
        def rd(tau):
            ad = "v2" if tau < 11 else "v3"; o = (tau if tau < 11 else tau - 11) * 5120
            for dt in range(5):
                A(f"ds_read_b128 {v(60+20*(tau&1)+4*dt,4)}, {ad} offset:{o+dt*1024}")
        rd(0)
        for tau in range(21):
            if tau < 20:
                rd(tau + 1); A(f"s_waitcnt vmcnt({vm.wait(('a3', tau))}) lgkmcnt(5)")
            else:
                A(f"s_waitcnt vmcnt({vm.wait(('a3', tau))}) lgkmcnt(0)")
            for dt in range(5):
                d = v(40 + 4 * dt, 4)
                A(f"v_mfma_f32_16x16x32_bf16 {d}, {a(4*tau,4)}, {v(60+20*(tau&1)+4*dt,4)}, {'0' if tau == 0 else d}")
                if dt == 1 or (dt == 3 and nl[0] >= 21): ex()
        while extra: ex()
        XB = self.XB
        A(f"s_lshr_b32 s56, {s(sW)}, 1"); A("s_mul_i32 s56, s56, 5120"); A(f"s_and_b32 s57, {s(sW)}, 1"); A("s_lshl_b32 s57, s57, 3")
        A("s_add_u32 s56, s56, s57"); A(f"s_add_u32 s56, s56, {XB}")
        A("v_add_u32 v8, s56, v2")
        for dt in range(5):
            A(f"v_cvt_pk_bf16_f32 {v(60+2*dt)}, {v(40+4*dt)}, {v(41+4*dt)}")
            A(f"v_cvt_pk_bf16_f32 {v(61+2*dt)}, {v(42+4*dt)}, {v(43+4*dt)}")
            A(f"ds_write_b64 v8, {v(60+2*dt,2)} offset:{dt*1024}")
        A("s_waitcnt lgkmcnt(0)"); A("s_barrier")
        pend = []
        for R in range(2, 9):
            for l in self.dma_ops(R): pend.append((l, ("dma", R)))
        def dm(n=1):
            while n > 0 and pend:
                l, tag = pend.pop(0)
                for x in l: A(x)
                vm.add(tag); n -= 1
        npre = [NPRE]
        def dmp():
            if npre[0] > 0: dm(); npre[0] -= 1
        A(f"v_add_u32 v8, {XB}, v2")
        for u in range(2):
            for dt in range(5):
                A(f"ds_read_b128 {v(60+20*u+4*dt,4)}, v8 offset:{(5*u+dt)*1024}")
        dmp()
        X1 = self.X1
        for dt in range(5):
            for h in range(2):
                xr = 200 + 2 * dt + h
                A(f"v_lshlrev_b32 {v(X1+4*dt+2*h)}, 16, {v(xr)}")
                A(f"v_and_b32 {v(X1+4*dt+2*h+1)}, 0xffff0000, {v(xr)}")
            if dt in (1, 3): dmp()
        A("s_waitcnt lgkmcnt(5)")
        for dt in range(5):
            A(f"v_mfma_f32_16x16x32_bf16 {v(100+4*dt,4)}, {v(60+4*dt,4)}, v[210:213], 0")
        dmp()
        A("s_waitcnt lgkmcnt(0)")
        for dt in range(5):
            A(f"v_mfma_f32_16x16x32_bf16 {v(100+4*dt,4)}, {v(80+4*dt,4)}, v[214:217], {v(100+4*dt,4)}")
        dmp()
        A("v_lshrrev_b32 v6, 1, v5"); A("v_and_b32 v7, 1, v5")
        A("v_lshlrev_b32 v8, 10, v6"); A("v_lshl_add_u32 v8, v7, 9, v8"); A("v_lshl_add_u32 v8, v4, 4, v8")
        A("v_lshlrev_b32 v10, 9, v6"); A("v_lshl_add_u32 v10, v4, 4, v10"); A("v_lshl_add_u32 v10, v7, 3, v10"); A("v_add_u32 v10, 4096, v10")
        A("s_lshl_b32 s56, s54, 1"); A(f"s_lshr_b32 s57, {s(sW)}, 1"); A("s_add_u32 s56, s56, s57"); A("s_mul_i32 s56, s56, 40960")
        A("s_mul_i32 s57, s55, 5120"); A("s_add_u32 s56, s56, s57")
        A(f"s_and_b32 s57, {s(sW)}, 1"); A("s_lshl_b32 s57, s57, 8"); A("s_add_u32 s56, s56, s57"); A(f"s_add_u32 s56, s56, {hex(X1C_OFF)}")
        dmp()
        for dt in range(5):
            for h in (0, 2):
                A(f"v_pk_fma_f32 {v(X1+4*dt+h,2)}, {v(160+4*dt+h,2)}, {v(100+4*dt+h,2)}, {v(X1+4*dt+h,2)}")
        dmp()
        for dt in range(5):
            for h in (0, 2):
                A(f"v_pk_mul_f32 {v(100+4*dt+h,2)}, {v(X1+4*dt+h,2)}, {v(180+4*dt+h,2)}")
        dmp()
        while npre[0] > 0: dmp()
        for dt in range(5):
            A(f"v_cvt_pk_bf16_f32 {v(60+2*dt)}, {v(100+4*dt)}, {v(101+4*dt)}")
            A(f"v_cvt_pk_bf16_f32 {v(61+2*dt)}, {v(102+4*dt)}, {v(103+4*dt)}")
        A(f"buffer_store_dwordx4 v[60:63], v8, {srd(SWS)}, s56 offen sc1"); vm.add(("st", 0))
        A(f"buffer_store_dwordx4 v[64:67], v8, {srd(SWS)}, s56 offen offset:2048 sc1"); vm.add(("st", 1))
        A(f"buffer_store_dwordx2 v[68:69], v10, {srd(SWS)}, s56 offen sc1"); vm.add(("st", 2))
        A(f"v_pk_add_f32 v[20:21], {v(X1,2)}, {v(X1+2,2)}")
        A(f"v_pk_mul_f32 v[22:23], {v(X1,2)}, {v(X1,2)}")
        A(f"v_pk_fma_f32 v[22:23], {v(X1+2,2)}, {v(X1+2,2)}, v[22:23]")
        for k in range(2, 10):
            A(f"v_pk_add_f32 v[20:21], v[20:21], {v(X1+2*k,2)}")
            A(f"v_pk_fma_f32 v[22:23], {v(X1+2*k,2)}, {v(X1+2*k,2)}, v[22:23]")
        A("v_add_f32 v20, v20, v21"); A("v_add_f32 v21, v22, v23")
        for sw in ("v_permlane16_swap_b32", "v_permlane32_swap_b32"):
            A("v_mov_b32 v22, v20"); A("v_mov_b32 v23, v21")
            A(f"{sw} v20, v22"); A(f"{sw} v21, v23")
            A("v_add_f32 v20, v20, v22"); A("v_add_f32 v21, v21, v23")
        A("s_lshl_b32 s56, s55, 14"); A("s_lshl_b32 s57, s54, 9"); A("s_add_u32 s56, s56, s57"); A(f"s_lshl_b32 s57, {s(sW)}, 7"); A("s_add_u32 s56, s56, s57")
        A(f"s_add_u32 s56, s56, {hex(ST2_OFF)}")
        A("v_lshlrev_b32 v8, 3, v4")
        A("s_mov_b64 s[60:61], exec"); A("s_mov_b64 exec, 0xffff")
        A(f"buffer_store_dwordx2 v[20:21], v8, {srd(SWS)}, s56 offen sc1"); vm.add(("st", 3))
        A("s_mov_b64 exec, s[60:61]")
        A("s_lshl_b32 s76, s54, 1"); A(f"s_lshr_b32 s57, {s(sW)}, 1"); A("s_add_u32 s76, s76, s57"); A("s_lshl_b32 s76, s76, 8")
        A("s_lshl_b32 s57, s55, 3"); A("s_add_u32 s76, s76, s57"); A(f"s_and_b32 s57, {s(sW)}, 1"); A("s_lshl_b32 s57, s57, 2"); A("s_add_u32 s76, s76, s57")
        A(f"s_add_u32 s76, s76, {hex(S3_OFF)}")
        self.vm3 = vm; self.pend3 = pend; self.dm3 = dm

    def p4_pre(self):
        A = self.A
        vm = self.vm3; dm = self.dm3
        NMID = self.o.get("nmid", 22)
        dm(NMID // 2)
        A(f"s_waitcnt vmcnt({vm.wait(('uv', 7))})")
        for p in range(1, 8):
            A(f"v_pk_add_f32 v[120:121], v[120:121], {v(120+2*p,2)}")
        for x, dst in ((120, 26), (121, 27)):
            A(f"v_cvt_pk_bf16_f32 v11, {v(x)}, {v(x)}"); A("v_lshlrev_b32 v14, 16, v11")
            A(f"v_sub_f32 v14, {v(x)}, v14")
            A(f"v_cvt_pk_bf16_f32 v14, v14, v14")
            A("v_and_b32 v11, 0xffff, v11"); A(f"v_lshl_or_b32 {v(dst)}, v14, 16, v11")
        A("v_mov_b32 v28, 0"); A("v_mov_b32 v29, 0")
        A("v_lshrrev_b32 v4, 5, v0"); A("v_and_b32 v5, 31, v0")
        A("v_lshlrev_b32 v6, 9, v4"); A("v_lshl_add_u32 v6, v5, 4, v6"); A(f"v_add_u32 v6, {self.EXT}, v6")
        A("v_cmp_gt_u32 vcc, 224, v0"); A("s_and_saveexec_b64 s[60:61], vcc")
        A("ds_write_b128 v6, v[26:29]")
        A("s_mov_b64 exec, s[60:61]")
        dm(NMID - NMID // 2)
        self.p4_roles()
        A("s_lshl_b32 s57, s54, 2"); A(f"s_add_u32 s57, s57, {s(sW)}")
        A(f"s_mul_i32 {s(sTOK)}, s57, 40960"); A(f"s_add_u32 {s(sTOK)}, {s(sTOK)}, {hex(X1C_OFF)}")
        A(f"s_lshl_b32 {s(sST)}, s57, 8"); A(f"s_add_u32 {s(sST)}, {s(sST)}, {hex(ST2_OFF)}")
        A(f"s_lshl_b32 {s(sS3)}, s57, 8"); A(f"s_add_u32 {s(sS3)}, {s(sS3)}, {hex(S3_OFF)}")
        A(f"s_lshl_b32 {s(sF4P)}, s57, 9"); A("s_lshl_b32 s58, s55, 2"); A(f"s_add_u32 {s(sF4P)}, {s(sF4P)}, s58"); A(f"s_add_u32 {s(sF4P)}, {s(sF4P)}, {hex(S4_OFF)}")
        A("s_mul_i32 s58, s57, 110592"); A(f"s_add_u32 s58, s58, {hex(HP_OFF)}")
        for t in range(7):
            n0 = 16 * t if t < 3 else 48 + 15 * (t - 3)
            A(f"s_add_u32 s59, s55, {n0}")
            A("s_and_b32 s60, s59, 1"); A("s_lshl_b32 s60, s60, 9")
            A("s_bfe_u32 s61, s59, 0x10001"); A("s_mul_i32 s61, s61, 55296")
            A("s_lshr_b32 s59, s59, 2"); A("s_lshl_b32 s59, s59, 11")
            A("s_add_u32 s60, s60, s61"); A("s_add_u32 s60, s60, s59"); A(f"s_add_u32 {s(sHS+t)}, s60, s58")
            if t >= 3:
                A("s_cmp_eq_u32 s55, 15"); A(f"s_cselect_b32 {s(sHS+t)}, 0x7000000, {s(sHS+t)}")
        A(f"s_waitcnt vmcnt({vm.wait(('st', 3))})")
        self.flag_store_lane0("s76", vt=(8, 9)); vm.add(("flag", 0))
        self.stamp(12)
        dm(99)
        self.p35_roles()
        A("s_lshl_b32 s57, s54, 1"); A(f"s_lshr_b32 s58, {s(sW)}, 1"); A("s_add_u32 s57, s57, s58")
        A(f"s_lshl_b32 {s(sF4C)}, s57, 9"); A(f"s_add_u32 {s(sF4C)}, {s(sF4C)}, {hex(S4_OFF)}")
        A(f"s_mul_i32 {s(sH)}, s57, 110592"); A(f"s_and_b32 s58, {s(sW)}, 1"); A("s_mul_i32 s59, s58, 55296"); A(f"s_add_u32 {s(sH)}, {s(sH)}, s59")
        A(f"s_add_u32 {s(sH)}, {s(sH)}, {hex(HP_OFF)}")
        A("s_waitcnt lgkmcnt(0)")
        A("v_lshrrev_b32 v5, 4, v1"); A("v_lshlrev_b32 v7, 4, v5")
        A("s_mul_i32 s56, s55, 320"); A(f"s_add_u32 s57, s56, {hex(GB_OFF)}")
        for dt in range(5):
            A(f"buffer_load_dwordx4 {v(20+4*dt,4)}, v7, {srd(SWS)}, s57 offen offset:{64*dt} sc1"); vm.add(("gb", dt))
        A("s_mul_i32 s60, s55, 5"); A("s_add_u32 s61, s60, 4"); A("s_lshr_b32 s60, s60, 2"); A("s_lshr_b32 s61, s61, 2")
        A("v_and_b32 v17, 1, v1"); A("v_add_u32 v17, s60, v17"); A("v_min_u32 v17, s61, v17"); A("v_lshlrev_b32 v17, 8, v17")
        A("v_lshlrev_b32 v2, 4, v1"); A("v_add_u32 v3, 0x10000, v2"); A("v_add_u32 v4, 0x20000, v2")
        A("v_and_b32 v5, 31, v1"); A("v_lshlrev_b32 v5, 4, v5"); A(f"v_add_u32 v5, {self.EXT}, v5")
        A("v_bfe_u32 v6, v1, 4, 1"); A("v_lshlrev_b32 v6, 10, v6"); A("v_lshrrev_b32 v7, 5, v1"); A("v_lshl_add_u32 v6, v7, 8, v6")
        A("v_and_b32 v7, 15, v1"); A("v_lshl_add_u32 v6, v7, 4, v6")
        A("v_mov_b32 v7, 0x40000000"); A("v_cmp_eq_u32 vcc, 0, v1"); A("v_cndmask_b32 v7, v7, 0, vcc")
        A("v_mov_b32 v8, 1")
        A(f"s_mul_i32 s58, s58, 5120")
        A("v_add_u32 v13, s58, v2"); A("v_add_u32 v14, 0x10000, v13"); A("v_add_u32 v15, 0x20000, v13")
        A(f"s_and_b32 s58, {s(sW)}, 1"); A("s_xor_b32 s58, s58, 1"); A(f"s_mul_i32 s58, s58, {139*1024}"); A("v_add_u32 v16, s58, v2")
        self.stamp(13)
        A("v_and_b32 v18, 15, v1"); A("v_lshlrev_b32 v18, 2, v18")
        late = self.o.get("s3late", 2)
        if not late: A(f"buffer_load_dword v19, v18, {srd(SWS)}, {s(sS3)} offen sc1")
        A("s_waitcnt vmcnt(0) lgkmcnt(0)")
        if self.o.get("ts") == 13: self.stamp(21)
        if late == 1: A(f"buffer_load_dword v19, v18, {srd(SWS)}, {s(sS3)} offen sc1")
        A("s_barrier")
        if late == 2: A(f"buffer_load_dword v19, v18, {srd(SWS)}, {s(sS3)} offen sc1")
        if late: A("s_waitcnt vmcnt(0)")
        if self.o.get("ts") == 13:
            self.stamp(22)
            A("v_cmp_gt_u32 vcc, 1, v19"); A("s_nop 4"); A("s_and_b32 s88, vcc_lo, 0xffff"); A("s_or_b32 s88, s88, 0x10000"); A("v_writelane_b32 v252, s88, 23")
            A("s_mov_b32 s49, 0")
        self.check_lines(18, 19, s(sS3), 1)
        if self.o.get("ts") == 13:
            A("s_add_u32 s88, s49, 1"); A("v_writelane_b32 v252, s88, 24")

    def p45(self):
        A = self.A; o = self.o
        vm = VM()
        self.log = []
        evn = [0]; cur = [0]
        def ev(kind, name, fn):
            on = (o.get("ts") == 8 and kind in ("fl", "cmp")) or (o.get("ts") == 9 and kind == "sync") or (o.get("ts") == 10 and kind == "h0") or (o.get("ts") == 11 and kind == "h1") or (o.get("ts") == 12 and kind == "tok")
            if on and evn[0] < 20:
                self.stamp(20 + 2 * evn[0]); fn(); self.stamp(21 + 2 * evn[0]); self.log.append((cur[0], ("EV", evn[0], name))); evn[0] += 1
            else: fn()
        NB = 6; WB = 144; T = 176
        SACC = {0: 40, 1: 56, 2: 72, 3: 88, 4: 40, 5: 56, 6: 72}
        PACC = 104
        NT0 = o.get("nt0", 10)
        LA4 = 3; LA5 = o.get("la5", 3)
        def hreg(i): return 164 + 8 * i if i <= 10 else 8 * (i - 11)
        def ringrd(e, p5=False):
            pos = self.ring_pos(e)
            if not p5:
                return ("v2", "v3", "v4")[pos // 64], (pos % 64) * 1024
            if pos >= 139: return "v16", (pos - 139) * 1024
            return ("v13", "v14", "v15")[pos // 64], (pos % 64) * 1024
        nodes = []
        def add(**k): nodes.append(k); return len(nodes) - 1
        tile_end = {}; tile_start = {}
        for e in range(120):
            k, tl = divmod(e, 3)
            n = add(ph=4, acc=SACC[tl], b=a(4*k, 4), zero=(k == 0), rd=ringrd(e), entry=e, tok=k)
            if k == 0: tile_start[tl] = n
        for tl in range(3):
            tile_end[tl] = add(ph=4, acc=SACC[tl], b=a(160, 4), zero=False, rd=("v5", 512 * tl), entry=None, tok=None, ext=True)
        for t in range(3, 7):
            for k in range(40):
                e = 120 + 40 * (t - 3) + k
                n = add(ph=4, acc=SACC[t], b=a(4*k, 4), zero=(k == 0), rd=ringrd(e), entry=e, tok=None)
                if k == 0: tile_start[t] = n
            tile_end[t] = add(ph=4, acc=SACC[t], b=a(160, 4), zero=False, rd=("v5", 512 * t), entry=None, tok=None, ext=True)
        N4 = len(nodes)
        for i in range(27):
            for ct in range(5):
                for tt in range(2):
                    add(ph=5, acc=PACC + 8 * ct + 4 * tt, b=a(hreg(i) + 4 * tt, 4), zero=(i == 0), rd=(ringrd(288 + 10 * i + ct, True) if tt == 0 else None),
                        entry=288 + 10 * i + ct, step=i, ct=ct, tt=tt)
        N = len(nodes)
        reads = [n for n in range(N) if nodes[n]["rd"] is not None]
        ridx = {n: r for r, n in enumerate(reads)}
        for n in range(N):
            nodes[n]["buf"] = ridx[n] % NB if n in ridx else nodes[n - 1]["buf"]
        r4 = sum(1 for n in reads if n < N4)
        issue_at = {}
        for r, n in enumerate(reads):
            if n < N4:
                pos = n - LA4
                issue_at.setdefault(max(pos, -1), []).append(r)
            else:
                rr = r - LA5
                if rr < r4: issue_at.setdefault("T0", []).append(r)
                else: issue_at.setdefault(reads[rr], []).append(r)
        syncs = {}
        for j in range(1, 9):
            n = next(n for n in range(N4) if nodes[n]["entry"] == 32 * j)
            syncs[ridx[n]] = ("p4", 2 * j + 1)
        SP5 = o.get("sp5", 3)
        for i in range(0, 27, SP5):
            n = next(n for n in range(N4, N) if nodes[n]["step"] == i)
            last = min(270, 10 * (i + SP5)) - 1
            syncs[ridx[n]] = ("p5", 18 + last // 16, i)
        C4 = o.get("c4", 35); C5 = o.get("c5", 26); SEAM = o.get("seam", 450)
        def tm(n): return C4 * n if n < N4 else C4 * N4 + SEAM + C5 * (n - N4)
        def node_at(t):
            if t <= C4 * (N4 - 1): return max(0, -(-t // C4))
            return N4 + max(0, -(-(t - C4 * N4 - SEAM) // C5))
        LAT = o.get("lat", 1200)
        ops = []
        def op(rel, dl, lines, tag, **k): ops.append(dict(rel=rel, dl=dl, lines=lines, tag=tag, **k))
        def tokop(k):
            l = [f"buffer_load_dwordx4 {a(4*k,4)}, v2, {srd(SWS)}, {s(sTOK)} offen" + (f" offset:{1024*(k&3)}" if k & 3 else "") + " sc1"]
            if k & 3 == 3: l.append(f"s_add_u32 {s(sTOK)}, {s(sTOK)}, 4096")
            return l
        def hop(i, tt):
            q = (2 * i + tt) & 3
            l = [f"buffer_load_dwordx4 {a(hreg(i)+4*tt,4)}, v2, {srd(SWS)}, {s(sH)} offen" + (f" offset:{1024*q}" if q else "") + " sc1"]
            if q == 3: l.append(f"s_add_u32 {s(sH)}, {s(sH)}, 4096")
            return l
        dmaq = []
        for R in range(9, 35):
            for l in self.dma_ops(R): dmaq.append((R, l))
        allowed = [8]
        rd_node = {}
        for key, lst in issue_at.items():
            for r in lst: rd_node[r] = (N4 - 1 if key == "T0" else key)
        need_at = {}
        for r in sorted(syncs):
            for R in range(0, syncs[r][1] + 1): need_at.setdefault(R, rd_node[r])
        for k in range(NT0):
            for l in tokop(k): A(l)
            vm.add(("tok", k))
        A("v_and_b32 v10, 31, v1"); A("v_lshlrev_b32 v10, 3, v10")
        for c in range(8):
            A(f"buffer_load_dwordx2 {v(PACC+2*c,2)}, v10, {srd(SWS)}, {s(sST)} offen sc1"); vm.add(("st", c))
            if c < 7: A(f"s_add_u32 {s(sST)}, {s(sST)}, 16384")
        self.mov_s(sF2, F2_OFF)
        A(f"buffer_load_dword v19, v17, {srd(SWS)}, {s(sF2)} offen sc1"); vm.add(("f2", 0))
        A("v_and_b32 v9, 15, v1"); A("v_lshlrev_b32 v9, 2, v9")
        for k in range(NT0, 40): op(max(0, int(o.get("tokr", 2) * (k - NT0))), tm(3 * k) - LAT, tokop(k), ("tok", k), seq="tok")
        fifo = []
        def stats_ops():
            L = []
            b = PACC
            for c in range(1, 8):
                L.append(f"v_add_f32 {v(b)}, {v(b)}, {v(b+2*c)}"); L.append(f"v_add_f32 {v(b+1)}, {v(b+1)}, {v(b+2*c+1)}")
            L += [f"v_mul_f32 {v(b)}, 0x3acccccd, {v(b)}", f"v_mul_f32 {v(b+1)}, 0x3acccccd, {v(b+1)}",
                  f"v_fma_f32 {v(b+1)}, -{v(b)}, {v(b)}, {v(b+1)}", f"v_max_f32 {v(b+1)}, 0, {v(b+1)}",
                  f"v_cvt_pk_bf16_f32 {v(b+1)}, {v(b+1)}, {v(b+1)}", f"v_lshlrev_b32 {v(b+1)}, 16, {v(b+1)}",
                  f"v_add_f32 {v(b+1)}, 0x3727c5ac, {v(b+1)}",
                  f"v_cvt_pk_bf16_f32 {v(b+1)}, {v(b+1)}, {v(b+1)}", f"v_lshlrev_b32 {v(b+1)}, 16, {v(b+1)}",
                  f"v_sqrt_f32 {v(b+1)}, {v(b+1)}",
                  f"v_cvt_pk_bf16_f32 {v(b+3)}, -{v(b)}, -{v(b)}",
                  f"v_cvt_pk_bf16_f32 {v(b+2)}, {v(b+1)}, {v(b+1)}",
                  f"v_lshlrev_b32 {v(b+1)}, 16, {v(b+2)}",
                  "v_cmp_gt_u32 vcc, 32, v1",
                  f"v_mul_f32 v12, {v(b+1)}, {v(b+1)}",
                  f"v_rcp_f32 {v(b+1)}, {v(b+1)}",
                  f"v_cndmask_b32 {v(b+3)}, 0, {v(b+3)}, vcc", f"v_cndmask_b32 {v(b+2)}, 0, {v(b+2)}, vcc",
                  f"v_mov_b32 {v(b+4)}, 0",
                  f"v_mul_f32 v11, 0xbfb8aa3b, {v(b+1)}",
                  f"v_accvgpr_write_b32 a160, {v(b+3)}", f"v_accvgpr_write_b32 a161, {v(b+2)}",
                  f"v_accvgpr_write_b32 a162, {v(b+4)}", f"v_accvgpr_write_b32 a163, {v(b+4)}"]
            return L
        TR = ("v_exp_f32", "v_rcp_f32", "v_sqrt_f32")
        cost = lambda l: 8 if l.startswith(TR) else 4
        ST0 = 3 * NT0 + 6
        for l in stats_ops(): fifo.append((ST0, cost(l), l))
        def epi(t):
            b = SACC[t]; L = []
            st = lambda h: [[f"v_mul_f32 {v(T+h)}, {v(b+h)}, v11", f"v_mul_f32 {v(b+8+h)}, {v(b+h)}, {v(b+8+h)}"],
                            [f"v_exp_f32 {v(T+h)}, {v(T+h)}"], [f"v_fma_f32 {v(T+h)}, {v(T+h)}, v12, v12"], [f"v_rcp_f32 {v(T+h)}, {v(T+h)}"],
                            [f"v_mul_f32 {v(b+8+h)}, {v(b+8+h)}, {v(T+h)}"]]
            for j in range(8 + 5):
                for sg in range(5):
                    h = j - sg
                    if 0 <= h < 8: L += st(h)[sg]
                h = j - 5
                if 0 <= h < 8 and h & 1: L.append(f"v_cvt_pk_bf16_f32 {v(b+(h>>1))}, {v(b+8+h-1)}, {v(b+8+h)}")
            return L
        for t in range(6):
            for l in epi(t): fifo.append((tile_end[t] + 4, cost(l), l))
            fifo.append((0, 0, ("store", t)))
        cls = [0]*4 + [1]*4 + [2]*4 + [3]*3 + [4]*4 + [5]*4 + [6]*4
        FLT = o.get("flt", 1100)
        VIS = o.get("vis", 1500)
        CKT = o.get("ckt", 900)
        F2N = o.get("f2n", 150)
        slow = []
        def check_emit(kind, t):
            lab = A.newlabel("L_slow"); back = A.newlabel("L_back")
            if kind == "cls":
                slow.append((lab, back, f"buffer_load_dword {v(184+t)}, v9, {srd(SWS)}, {s(sF4C)} offen offset:{64*t} sc1", f"v_cmp_eq_u32 vcc, 0, {v(184+t)}"))
                cmp_ = f"v_cmp_eq_u32 vcc, 0, {v(184+t)}"
            else:
                slow.append((lab, back, f"buffer_load_dword v19, v17, {srd(SWS)}, {s(sF2)} offen sc1", "v_cmp_gt_u32 vcc, 54, v19"))
                cmp_ = "v_cmp_gt_u32 vcc, 54, v19"
            return cmp_, [f"s_cbranch_vccnz {lab}", back + ":"]
        events = {}
        def at(n, f): events.setdefault(min(n, N - 1), []).append(f)
        gate_open = {("cls", t): False for t in range(7)}; gate_open["f2"] = False
        ckbusy = [False]
        def sched_cmp(kind, t, n):
            def f():
                if ckbusy[0]:
                    at(cur[0] + 1, f); return
                ckbusy[0] = True
                tag = ("ck", t) if kind == "cls" else ("f2", 0)
                if kind == "cls": assert ("fl", t) in vm.q, ("check before own flag", t)
                ev("cmp", ("w", kind, t), lambda: A(f"s_waitcnt vmcnt({vm.wait(tag)})"))
                c, br = check_emit(kind, t); self.log.append((cur[0], ("CMP", kind, t)))
                A(c)
                def g():
                    def _b():
                        for l in br: A(l)
                    ev("cmp", ("br", kind, t), _b)
                    gate_open[("cls", t) if kind == "cls" else "f2"] = True
                    ckbusy[0] = False
                at(cur[0] + (2 if nodes[min(cur[0], N-1)]["ph"] == 4 else 3), g)
            at(n, f)
        def mk_check(t, rel):
            def oi(n):
                sched_cmp("cls", t, node_at(tm(n) + CKT))
            op(rel, -2, [f"buffer_load_dword {v(184+t)}, v9, {srd(SWS)}, {s(sF4C)} offen offset:{64*t} sc1"], ("ck", t), on_issue=oi)
        gate_open[None] = True
        sched_cmp("f2", 0, F2N)
        step_node = {i: next(n for n in range(N4, N) if nodes[n]["step"] == i) for i in range(27)}
        for i in range(27):
            for tt in range(2):
                op(0 if i <= 10 else N4, tm(step_node[i]) - LAT, hop(i, tt), ("h", i, tt), gate=("cls", cls[i]), seq="h")
        JIT0 = o.get("jit0", 2)
        JM = o.get("jm", 300)
        def jit(t):
            if t < JIT0: return 0
            i0 = cls.index(t)
            return node_at(tm(step_node[i0]) - LAT - CKT - JM)
        lastvm = [-9]
        nrd = [0]
        def emit_read(r):
            if r in syncs:
                sy = syncs[r]
                tgt = sy[1]
                idx = [x for x in vm.q if x[0] == "dma" and x[1] <= tgt]
                miss = [R for R, l in dmaq if R <= tgt]
                assert not miss, ("round not issued before its sync", r, sy, miss)
                def _s():
                    if idx: A(f"s_waitcnt vmcnt({vm.wait(lambda x: x[0] == 'dma' and x[1] <= tgt)})")
                    A("s_barrier")
                ev("sync", sy, _s); self.log.append((cur[0], ("SYNC", sy)))
                n = cur[0]
                if sy[0] == "p4":
                    done = [nodes[m]["entry"] for m in range(0, n + 1) if nodes[m]["entry"] is not None]
                    c = max(done) + 1
                else:
                    c = 288 + max(0, 10 * (sy[2] - 1))
                allowed[0] = max(allowed[0], c // 16 - 1 + 9)
                new = [x for x in dmaq if x[0] <= allowed[0] and not any(oo.get("dq") is x for oo in ops)]
                for j, x in enumerate(new):
                    op(n + 1, tm(need_at[x[0]]) - LAT, x[1], ("dma", x[0]), dq=x, seq="dma", gate=("f2" if x[0] >= 18 else None))
            n = reads[r]
            ad, off = nodes[n]["rd"]
            A(f"ds_read_b128 {v(WB+4*nodes[n]['buf'],4)}, {ad} offset:{off}")
            nrd[0] = r + 1
        def try_vm(n):
            ok = []; seen = set()
            for x in ops:
                sq = x.get("seq")
                if sq:
                    if sq in seen: continue
                    seen.add(sq)
                if x["rel"] > n or not gate_open[x.get("gate")]: continue
                ok.append(x)
            if not ok: return 0
            x = min(ok, key=lambda y: y["dl"])
            ops.remove(x)
            if x.get("pre"): x["pre"]()
            skip = (o.get("xdma") and x["tag"][0] == "dma" and x["tag"][1] >= o["xdma"]) or (o.get("xh") and x["tag"][0] == "h" and x["tag"][1] >= o["xh"] - 1)
            for l in x["lines"]:
                if skip and l.startswith("buffer_load"): l = "s_nop 0"
                A(l)
            if x.get("dq"): dmaq.remove(x["dq"])
            lastvm[0] = n
            if skip:
                vm.dropped = getattr(vm, "dropped", set()) | {x["tag"]}
                return 4
            vm.add(x["tag"]); self.log.append((n, x["tag"]))
            if x.get("on_issue"): x["on_issue"](n)
            return 16 + 4 * (len(x["lines"]) - 1)
        def store_op(t, n):
            b = SACC[t]
            A(f"buffer_store_dwordx4 {v(b,4)}, v6, {srd(SWS)}, {s(sHS+t)} offen sc1"); vm.add(("hs", t)); self.log.append((n, ("hs", t)))
            lastvm[0] = n
            op(node_at(tm(n) + FLT), -3, [f"buffer_store_dword v8, v7, {srd(SWS)}, {s(sF4P)} offen offset:{64*t} sc1"], ("fl", t),
               pre=lambda t=t: ev("fl", ("fl", t), lambda: A(f"s_waitcnt vmcnt({vm.wait(('hs', t))})")),
               on_issue=lambda n2, t=t: mk_check(t, max(node_at(tm(n2) + VIS), jit(t))))
        BUD = o.get("bud", 28)
        def run_fifo(n, budget):
            while fifo and budget > 0:
                e, c, l = fifo[0]
                if e > n: break
                if isinstance(l, tuple):
                    if lastvm[0] == n or budget < 8: break
                    fifo.pop(0); store_op(l[1], n); budget -= 16
                    continue
                if c > budget: break
                fifo.pop(0); A(l); budget -= c
        waited = [-1]
        def pre_waits(n):
            nd = nodes[n]; w = []
            if nd["rd"] is not None:
                r = ridx[n]
                if r > waited[0]:
                    tgt = min(r + 1, nrd[0] - 1)
                    if nd["ph"] == 5 and o.get("w5", 2) == 1: tgt = r
                    w.append(f"lgkmcnt({nrd[0] - 1 - tgt})"); waited[0] = tgt
            if nd.get("tok") is not None and n % 3 == 0:
                w.insert(0, f"vmcnt({vm.wait(('tok', nd['tok']))})")
                if o.get("ts") == 12 and n % 6 == 0:
                    w0 = w.pop(0)
                    ev("tok", ("tok", nd["tok"]), lambda: A("s_waitcnt " + w0))
            if nd["ph"] == 5 and nd["ct"] == 0 and nd["tt"] == 0:
                i = nd["step"]
                if ("h", i, 1) not in getattr(vm, "dropped", set()):
                    assert ("h", i, 1) in vm.q, ("h not issued", i)
                    w.insert(0, f"vmcnt({vm.wait(('h', i, 1))})")
                    if o.get("ts") in (10, 11) and (i < 20) == (o.get("ts") == 10):
                        w0 = w.pop(0)
                        ev("h0" if i < 20 else "h1", ("h", i), lambda: A("s_waitcnt " + w0))
            if w: A("s_waitcnt " + " ".join(w))
            return 4 if w else 0
        for r in issue_at.get(-1, []): emit_read(r)
        for n in range(N):
            cur[0] = n
            nd = nodes[n]
            if n == N4:
                cur[0] = N4 - 1
                for r in issue_at.get("T0", []): emit_read(r)
                self.stamp(15)
                cur[0] = n
                rest6 = [x[2] for x in fifo]; fifo.clear()
                for l in rest6:
                    if isinstance(l, tuple): store_op(l[1], n)
                    else: A(l)
                e6 = epi(6)
                for j, l in enumerate(e6):
                    A(l)
                    if j % 12 == 11: try_vm(n)
                store_op(6, n)
            for t, st_ in tile_start.items():
                if st_ == n and t >= 4:
                    assert not any(isinstance(x[2], tuple) and x[2][1] == t - 4 for x in fifo), ("acc set still busy", t)
            used = pre_waits(n)
            d = v(nd["acc"], 16 if nd["ph"] == 4 else 4)
            opn = "v_mfma_f32_32x32x16_bf16" if nd["ph"] == 4 else "v_mfma_f32_16x16x32_bf16"
            A(f"{opn} {d}, {v(WB+4*nd['buf'],4)}, {nd['b']}, {'0' if nd['zero'] else d}")
            budget = (BUD if nd["ph"] == 4 else 8) - (used if nd["ph"] == 4 else 0)
            for r in issue_at.get(n, []):
                emit_read(r); budget -= 4
            for f in events.pop(n, []):
                f(); budget -= 4
            if nd["ph"] == 4:
                if n - lastvm[0] >= o.get("vgap", 2): budget -= try_vm(n)
                run_fifo(n, budget)
            else:
                if nd["tt"] == 1: try_vm(n)
            if o.get("ts") == 4:
                if "tsl" in o:
                    a0, st_ = (int(x) for x in str(o["tsl"]).split("_"))
                    L_ = [a0 + st_ * j for j in range(40)]
                else:
                    L_ = [30, 60, 90, 122, 163, 204, 245, 286, N4 + 30, N4 + 60, N4 + 90, N4 + 120, N4 + 150, N4 + 180, N4 + 210, N4 + 240]
                if n in L_: self.stamp(20 + L_.index(n))
        assert not events, events.keys()
        assert all(x["tag"][0] in ("fl", "ck") for x in ops), [x["tag"] for x in ops]
        assert not ops, [x["tag"] for x in ops]
        self.slow45 = slow
    def p45_tail(self):
        A = self.A
        PACC = 104
        self.p35_roles()
        A("s_barrier")
        A(f"s_mul_i32 s56, {s(sW)}, 5120"); A("v_add_u32 v5, s56, v2")
        A(f"s_xor_b32 s57, {s(sW)}, 1"); A("s_mul_i32 s57, s57, 5120"); A("v_add_u32 v6, s57, v2")
        A(f"s_and_b32 s58, {s(sW)}, 1"); A("s_cmp_eq_u32 s58, 0"); A("s_cbranch_scc0 L_p5_kh1")
        for ct in range(5): A(f"ds_write_b128 v5, {v(PACC+4+8*ct,4)} offset:{ct*1024}")
        for ct in range(5):
            for r in range(4): A(f"v_mov_b32 {v(40+4*ct+r)}, {v(PACC+8*ct+r)}")
        A("s_branch L_p5_c")
        A.label("L_p5_kh1")
        for ct in range(5): A(f"ds_write_b128 v5, {v(PACC+8*ct,4)} offset:{ct*1024}")
        for ct in range(5):
            for r in range(4): A(f"v_mov_b32 {v(40+4*ct+r)}, {v(PACC+4+8*ct+r)}")
        A.label("L_p5_c")
        A("s_waitcnt lgkmcnt(0)"); A("s_barrier")
        for ct in range(5): A(f"ds_read_b128 {v(60+4*ct,4)}, v6 offset:{ct*1024}")
        A("v_and_b32 v4, 15, v1"); A("v_lshrrev_b32 v5, 4, v1")
        A("v_mul_u32_u24 v6, 0xa000, v4")
        A("v_and_b32 v7, 1, v5"); A("v_lshl_add_u32 v8, v7, 5, v6"); A("v_lshrrev_b32 v7, 1, v5"); A("v_lshl_add_u32 v8, v7, 4, v8")
        A("v_lshl_add_u32 v9, v5, 3, v6")
        A(f"s_lshl_b32 s56, {s(sW)}, 9"); A("s_add_u32 s56, s56, s54"); A("s_mul_i32 s56, s56, 1280"); A("s_mul_i32 s57, s55, 160"); A("s_add_u32 s56, s56, s57")
        A("s_waitcnt lgkmcnt(0)")
        X1 = self.X1
        for k in range(10):
            A(f"v_pk_add_f32 {v(40+2*k,2)}, {v(40+2*k,2)}, {v(60+2*k,2)}")
            A(f"v_pk_fma_f32 {v(40+2*k,2)}, {v(40+2*k,2)}, {v(20+2*k,2)}, {v(X1+2*k,2)}")
        for dt in range(5):
            A(f"v_cvt_pk_bf16_f32 {v(60+2*dt)}, {v(40+4*dt)}, {v(41+4*dt)}")
            A(f"v_cvt_pk_bf16_f32 {v(61+2*dt)}, {v(42+4*dt)}, {v(43+4*dt)}")
        for p in range(2):
            A(f"v_permlane16_swap_b32 {v(60+4*p)}, {v(62+4*p)}")
            A(f"v_permlane16_swap_b32 {v(61+4*p)}, {v(63+4*p)}")
        A(f"buffer_store_dwordx4 v[60:63], v8, {srd(SOUT)}, s56 offen")
        A(f"buffer_store_dwordx4 v[64:67], v8, {srd(SOUT)}, s56 offen offset:64")
        A(f"buffer_store_dwordx2 v[68:69], v9, {srd(SOUT)}, s56 offen offset:128")
    def slow_paths(self):
        A = self.A
        for lab, back, ld, cmp_ in getattr(self, "slow45", []):
            lp = A.newlabel("L_sl")
            A.label(lab)
            A("s_mov_b32 s49, 0")
            A.label(lp)
            A("s_add_u32 s49, s49, 1"); A(f"s_cmp_gt_u32 s49, {POLL_MAX}"); A(f"s_cbranch_scc1 {back}")
            A(ld); A("s_waitcnt vmcnt(0)"); A(cmp_)
            A(f"s_cbranch_vccnz {lp}")
            A(f"s_branch {back}")
    def rest(self):
        st = self.stamp
        self.b2(); st(10); self.p3_main(); st(11)
        if self.end_if_stop(3): return
        self.p4_pre(); st(14); self.p45(); st(18); self.p45_tail(); st(19)
    def build(self):
        A = self.A
        st = self.stamp
        self.prologue()
        self.p1()
        self.arrive1(); st(2)
        self.b1_dead(); st(5)
        self.gb_wait(0); st(6)
        if not self.end_if_stop(1):
            self.p2_main(); st(7)
            if not self.end_if_stop(2):
                self.rest()
        self.ts_flush()
        A.label("L_end")
        A("s_endpgm")
        self.slow_paths()
        A.label("L_code_end")
        A("s_endpgm")
        return self.text()

if __name__ == "__main__":
    out = sys.argv[1]; stop = int(sys.argv[2]) if len(sys.argv) > 2 else 99
    opts = {}
    for kv in sys.argv[3:]:
        k, _, val = kv.partition("=")
        opts[k] = int(val) if val.lstrip("-").isdigit() else (val or 1)
    g = Gen3(stop, opts)
    open(out, "w").write(g.build())
    if opts.get("log"):
        for n, t in g.log:
            if t[0] not in ("tok",): print(n, t)
```

```python
import sys
sys.path.insert(0, "dev")
from asmlib import Asm, v, a, s
import gen1, gen2
from gen2 import *
from gen2 import VM, f2u, srd

W13S_OFF = 0x1800000
W13_FS = 72 * 4096
WS_END = 0x1C80000
gen2.WS_END = WS_END
gen1.WS_END = WS_END
sDW, sW2, sM0, sTOK = 64, 65, 66, 67
sHS = 68
sF4P, sF4C, sH, sST, sF2, sS3 = 75, 77, 78, 79, 80, 81

WS_TOTAL = 0x10000000
class Gen3(gen2.Gen):
    def srd_build(self, which):
        super().srd_build(which)
        wsb = self.o.get("wsb", 0)
        if wsb and SWS in which:
            A = self.A
            A(f"s_add_u32 {s(SWS)}, {s(SWS)}, {hex(wsb << 20)}"); A(f"s_addc_u32 {s(SWS+1)}, {s(SWS+1)}, 0")
    def prologue(self):
        A = self.A
        if self.o.get("cpf", 1):
            n0 = len(A.lines)
            super().prologue()
            i = next(k for k in range(n0, len(A.lines)) if A.lines[k].startswith("s_load_dwordx8"))
            L = ["s_getpc_b64 s[60:61]", "L_pc:",
                 "v_lshrrev_b32 v2, 6, v0", "s_lshr_b32 s62, s2, 3", "s_lshl_b32 s62, s62, 2", "v_add_u32 v2, s62, v2",
                 "v_and_b32 v3, 7, v0", "v_lshl_add_u32 v2, v2, 3, v3", "v_lshlrev_b32 v2, 6, v2",
                 "v_min_u32 v2, L_code_end-L_pc-4, v2",
                 "v_mov_b32 v3, s61", "v_add_co_u32 v2, vcc, s60, v2", "v_addc_co_u32 v3, vcc, 0, v3, vcc",
                 "global_load_dword v253, v[2:3], off"]
            A.lines[i+1:i+1] = L
        else:
            super().prologue()
    CST = 128000
    def p1(self):
        A = self.A
        xr = self.o.get("xr", 0)
        if xr: A(f"s_cmp_ge_u32 {s(sXC)}, 4")
        else: A(f"s_cmp_ge_u32 {s(sI)}, 16")
        A("s_cbranch_scc1 L_p1_gemv")
        n0 = len(A.lines)
        self.p1_fft()
        if xr:
            L = A.lines
            k = next(k for k in range(n0, len(L)) if L[k] == f"s_lshr_b32 s54, {s(sI)}, 2")
            assert L[k + 1] == "s_lshl_b32 s54, s54, 3"
            L[k + 1] = "s_lshl_b32 s54, s54, 2"
        L = A.lines
        i0 = next(k for k in range(n0, len(L)) if L[k] == f"s_mov_b32 {s(sRET)}, 0")
        i1 = next(k for k in range(i0, len(L)) if L[k].startswith(f"s_cmp_eq_u32 {s(sRET)}, 2")) + 2
        del L[i0:i1]
        A("s_branch L_arr1")
        A.label("L_p1_gemv")
        if xr == 1:
            A(f"s_sub_u32 s54, {s(sXC)}, 6"); A("s_and_b32 s54, s54, 3"); A("s_lshl_b32 s54, s54, 5"); A(f"s_add_u32 s54, s54, {s(sI)}")
        elif xr == 2:
            A(f"s_sub_u32 s54, {s(sXC)}, 6"); A("s_and_b32 s54, s54, 3"); A(f"s_lshl_b32 s55, {s(sI)}, 2"); A("s_add_u32 s54, s54, s55")
        else:
            A(f"s_lshl_b32 s54, {s(sXC)}, 4"); A(f"s_add_u32 s54, s54, {s(sI)}"); A("s_sub_u32 s54, s54, 16")
        if self.o.get("vx", 0): A(f"s_xor_b32 s54, s54, {self.o['vx']}")
        A("s_cmp_ge_u32 s54, 120")
        A("s_cbranch_scc1 L_p1_idle")
        self.p1_gemv()
        A.label("L_p1_idle")
        A("s_waitcnt lgkmcnt(0)")
        self.stamp0()
        self.srd_build(self.ALL_SRD)
        A("s_sub_u32 s55, s54, 120"); A("s_lshl_b32 s55, s55, 14"); A(f"s_lshl_b32 s56, {s(sW)}, 12"); A("s_add_u32 s55, s55, s56")
        A(f"s_add_u32 s55, s55, {hex(BAR_OFF)}")
        A("v_lshlrev_b32 v2, 4, v1")
        for k in range(4): A(f"v_mov_b32 {v(4+k)}, 0")
        for k in range(4): A(f"buffer_store_dwordx4 v[4:7], v2, {srd(SWS)}, s55 offen offset:{1024*k} sc1")
        A("s_waitcnt vmcnt(0)"); A("s_barrier")
        lab = self.wave0_begin()
        A("v_mov_b32 v2, 1"); A("v_mov_b32 v3, 0")
        A("s_mov_b64 s[50:51], exec"); A("s_mov_b64 exec, 1")
        A(f"buffer_atomic_add v2, v3, {srd(SDBG)}, 0 offen sc1")
        A("s_mov_b64 exec, s[50:51]")
        A.label(lab)
    def p1_gemv(self):
        A = self.A
        A("s_mul_i32 s55, s54, 205"); A("s_lshr_b32 s55, s55, 12")
        A("s_mul_i32 s56, s55, 20"); A("s_sub_u32 s56, s54, s56")
        A("v_and_b32 v2, 3, v1"); A("v_lshrrev_b32 v3, 2, v1")
        A(f"s_mul_i32 s57, {s(sW)}, 160")
        A("v_add_u32 v4, s57, v3")
        A("v_mul_u32_u24 v5, 7680, v4"); A("v_lshl_add_u32 v5, v2, 4, v5")
        A("v_lshlrev_b32 v6, 1, v4")
        A("s_lshl_b32 s58, s54, 6")
        A("s_waitcnt lgkmcnt(0)")
        self.stamp0()
        self.srd_build([SWM, SC])
        for n in range(10):
            A(f"buffer_load_dwordx4 {v(20+4*n,4)}, v5, {srd(SWM)}, s58 offen")
            if n < 9: A(f"s_add_u32 s58, s58, {16*7680}")
        for n in range(10):
            A(f"buffer_load_ushort {v(10+n)}, v6, {srd(SC)}, 0 offen offset:{32*n}")
        self.srd_build([b for b in self.ALL_SRD if b not in (SWM, SC)])
        self.ts(6, 40); self.ts(7, 40)
        A("s_cmp_le_u32 s55, 1"); A("s_cbranch_scc0 L_gv_notrig")
        self.trig_states()
        A("s_branch L_gv_pre_done0")
        A.label("L_gv_notrig")
        A("s_cmp_eq_u32 s55, 2"); A("s_cbranch_scc0 L_gv_pre_done0")
        self.g_gen()
        A.label("L_gv_nog")
        A("s_waitcnt vmcnt(10)")
        A("s_branch L_gv_go")
        A.label("L_gv_pre_done0")
        A("s_waitcnt vmcnt(0)")
        A.label("L_gv_go")
        self.ts(6, 41)
        n0 = len(A.lines)
        super().p1_gemv()
        L = A.lines
        i0 = next(k for k in range(n0, len(L)) if L[k] == "L_gv_pre_done:")
        i1 = next(k for k in range(i0, len(L)) if L[k] == "s_waitcnt vmcnt(0)")
        del L[n0:i1 + 1]
        j = next(k for k in range(n0, len(L)) if L[k] == "L_gv_late:")
        assert L[j + 1] == f"s_mov_b32 {s(sRET)}, 2" and L[j + 2] == "s_branch L_consts"
        L[j + 1:j + 3] = ["s_branch L_arr1"]
    def consts_split(self):
        A = self.A
        A(f"s_cmp_ge_u32 {s(sI)}, 28"); A("s_cbranch_scc1 L_cs_end")
        A("v_and_b32 v4, 15, v1"); A("v_lshrrev_b32 v5, 4, v1")
        A("v_lshlrev_b32 v6, 2, v5"); A("v_cvt_f32_u32 v6, v6"); A("v_mul_f32 v6, 0x3a000000, v6")
        A(f"s_and_b32 s56, {s(sW)}, 1"); A("s_cmp_eq_u32 s56, 0"); A(f"s_cselect_b32 s57, {s(sOFF1)}, {s(sOFF2)}")
        A(f"s_lshr_b32 s56, {s(sW)}, 1"); A("s_cmp_eq_u32 s56, 0")
        A("s_mov_b32 s60, 0x42800000")
        A("s_cselect_b32 s58, 1.0, s60")
        A("s_cselect_b32 s59, s60, 1.0")
        A("s_cselect_b32 s61, 0, 0x3a000000")
        A("s_cselect_b32 s62, 1.0, 0")
        A("v_cvt_f32_u32 v9, s57")
        A("v_mul_f32 v18, s61, v9"); A("v_mul_f32 v9, s62, v9")
        for jj in range(8):
            o_ = 16 * (jj >> 2) + (jj & 3)
            if o_ == 0: A(f"v_fma_f32 {v(10+jj)}, v6, s58, v18")
            else:
                A(f"v_add_f32 {v(10+jj)}, {hex(f2u(o_ / 2048.0))}, v6")
                A(f"v_fma_f32 {v(10+jj)}, {v(10+jj)}, s58, v18")
        A("v_cvt_f32_u32 v7, v4"); A("v_add_f32 v8, 0x41800000, v7")
        A(f"s_lshl_b32 s56, {s(sW)}, 12"); A(f"s_add_u32 s56, s56, {self.CST}")
        A("v_lshlrev_b32 v46, 4, v1"); A("v_add_u32 v47, s56, v46")
        for tl in range(2):
            A(f"v_fma_f32 v19, {v(7+tl)}, s59, v9")
            for jj in range(8): A(f"v_mul_f32 {v(20+jj)}, v19, {v(10+jj)}")
            for jj in range(8): A(f"v_sin_f32 {v(28+jj)}, {v(20+jj)}")
            for jj in range(8): A(f"v_cos_f32 {v(20+jj)}, {v(20+jj)}")
            b = 36 if tl == 0 else 48
            for k in range(4): A(f"v_cvt_pk_bf16_f32 {v(b+k)}, {v(20+2*k)}, {v(21+2*k)}")
            for k in range(4): A(f"v_cvt_pk_bf16_f32 {v(b+4+k)}, {v(28+2*k)}, {v(29+2*k)}")
            A(f"ds_write_b128 v47, {v(b,4)} offset:{2048*tl}")
            A(f"ds_write_b128 v47, {v(b+4,4)} offset:{2048*tl+1024}")
        if self.o.get("p1v", 0) == 0:
            A("s_waitcnt lgkmcnt(0)"); A("s_barrier")
            A(f"s_cmp_eq_u32 {s(sW)}, 3"); A("s_cbranch_scc1 L_cs_end")
            A(f"v_add_u32 v46, {self.CST}, v46")
            for k in range(16): A(f"ds_read_b128 {a(160+4*k,4)}, v46 offset:{1024*k}")
        A.label("L_cs_end")
    def consts_read(self):
        A = self.A
        A(f"s_cmp_ge_u32 {s(sI)}, 28"); A("s_cbranch_scc1 L_cr_end")
        A(f"s_cmp_eq_u32 {s(sW)}, 3"); A("s_cbranch_scc1 L_cr_end")
        A("v_lshlrev_b32 v46, 4, v1"); A(f"v_add_u32 v46, {self.CST}, v46")
        for k in range(16): A(f"ds_read_b128 {a(160+4*k,4)}, v46 offset:{1024*k}")
        A.label("L_cr_end")
    def arrive1(self):
        if self.o.get("p1v", 0) == 0: return super().arrive1()
        A = self.A
        A.label("L_arr1")
        self.stamp(1)
        A("v_mov_b32 v3, 0")
        aw = 3 if self.o.get("bar", 0) == 2 else 0
        def wbegin():
            lab = A.newlabel("L_naw")
            A(f"s_cmp_lg_u32 {s(sW)}, {aw}"); A(f"s_cbranch_scc1 {lab}")
            return lab
        lab = wbegin()
        A(f"buffer_load_dword v2, v3, {srd(SDBG)}, 0 offen sc1")
        A.label(lab)
        self.consts_split()
        A("s_waitcnt vmcnt(0) lgkmcnt(0)")
        A("s_barrier")
        lab = wbegin()
        lp = A.newlabel("L_ini"); ok = A.newlabel("L_iniok")
        A("s_mov_b32 s49, 0")
        A.label(lp)
        A("v_readfirstlane_b32 s48, v2")
        A("s_cmp_ge_u32 s48, 8"); A(f"s_cbranch_scc1 {ok}")
        A("s_add_u32 s49, s49, 1"); A(f"s_cmp_gt_u32 s49, {POLL_MAX}"); A(f"s_cbranch_scc1 {ok}")
        A(f"buffer_load_dword v2, v3, {srd(SDBG)}, 0 offen sc1")
        A("s_waitcnt vmcnt(0)")
        A(f"s_branch {lp}")
        A.label(ok)
        self.gb_arrive(0)
        A.label(lab)
        self.consts_read()
    def ra_shard(self, S):
        A = self.A
        if self.o.get("barmap", 0): A(f"s_and_b32 s48, s2, {S-1}")
        else: A(f"s_lshr_b32 s48, s2, {(256 // S).bit_length() - 1}")
    def ra_arrive(self, idx):
        A = self.A
        S = self.o.get("barS", 8)
        self.ra_shard(S)
        A("s_lshl_b32 s48, s48, 8"); A(f"s_add_u32 s48, s48, {hex(BAR_OFF + idx * 0x8000)}")
        A("v_mov_b32 v30, 1"); A("v_mov_b32 v31, 0")
        A("s_mov_b64 s[50:51], exec"); A("s_mov_b64 exec, 1")
        A(f"buffer_atomic_add v30, v31, {srd(SWS)}, s48 offen sc0 sc1")
        A("s_mov_b64 exec, s[50:51]")
    def ra_release(self, idx):
        A = self.A
        S = self.o.get("barS", 8)
        lab = A.newlabel("L_norel")
        A("v_readfirstlane_b32 s49, v30")
        A(f"s_cmp_lg_u32 s49, {256 // S - 1}"); A(f"s_cbranch_scc1 {lab}")
        self.ra_shard(S)
        A("s_lshl_b32 s48, s48, 2"); A(f"s_add_u32 s48, s48, {hex(BAR_OFF + idx * 0x8000 + 0x1000)}")
        A("v_mov_b32 v30, 1"); A("v_lshlrev_b32 v31, 8, v1")
        A("s_mov_b64 s[50:51], exec"); A("s_mov_b64 exec, 0xff")
        A(f"buffer_store_dword v30, v31, {srd(SWS)}, s48 offen sc1")
        A("s_mov_b64 exec, s[50:51]")
        A.label(lab)
    def poll(self, vaddr, soff, expect, vt=2, off=0):
        if self.o.get("psl", 0) and soff == "s48" and vaddr == 3:
            A = self.A
            n0 = len(A.lines)
            super().poll(vaddr, soff, expect, vt, off)
            j = max(k for k in range(n0, len(A.lines)) if A.lines[k].startswith("s_branch L_poll"))
            A.lines.insert(j, f"s_sleep {self.o['psl']}")
            return
        if not (self.o.get("pm", 0) and soff == "s48" and vaddr == 3): return super().poll(vaddr, soff, expect, vt, off)
        A = self.A
        lp = A.newlabel("L_poll"); ex = A.newlabel("L_pexit")
        A("s_mov_b32 s49, 0")
        A("s_mov_b64 s[50:51], exec"); A("s_mov_b64 exec, 0xffff")
        A.label(lp)
        A("s_add_u32 s49, s49, 1"); A(f"s_cmp_gt_u32 s49, {POLL_MAX}"); A(f"s_cbranch_scc1 {ex}")
        o = f" offset:{off}" if off else ""
        A(f"buffer_load_dword {v(vt)}, {v(vaddr)}, {srd(SWS)}, {soff} offen{o} sc1")
        A("s_waitcnt vmcnt(0)")
        A(f"v_cmp_gt_u32 vcc, {expect}, {v(vt)}")
        A("s_mov_b64 exec, vcc")
        A(f"s_cbranch_execnz {lp}")
        A.label(ex)
        A("s_mov_b64 exec, s[50:51]")
    def bar_sr(self, idx):
        return self.o.get(f"barS{idx}", self.o.get("barS", 16)), self.o.get(f"barR{idx}", self.o.get("barR", 8))
    def gb_arrive(self, idx):
        if self.o.get("bar", 0) == 2: return self.ra_arrive(idx)
        S, R = self.bar_sr(idx)
        if (S, R) == (16, 8):
            super().gb_arrive(idx)
            gate = self.o.get(f"gate{idx}", -1)
            if gate >= 0:
                A = self.A
                lab = A.newlabel("L_ngate")
                A(f"s_cmp_lg_u32 s2, {gate}"); A(f"s_cbranch_scc1 {lab}")
                A(f"s_mov_b32 s48, {hex(BAR_OFF + idx * 0x8000 + 128)}")
                A("s_mov_b64 exec, 0xff")
                A(f"buffer_store_dword v2, v3, {srd(SWS)}, s48 offen sc1")
                A("s_mov_b64 exec, s[50:51]")
                A.label(lab)
            return
        A = self.A
        sh = (256 // S).bit_length() - 1
        A(f"s_lshr_b32 s48, s2, {sh}"); A("s_lshl_b32 s48, s48, 8"); A(f"s_add_u32 s48, s48, {hex(BAR_OFF + idx * 0x8000)}")
        A(f"v_mul_u32_u24 v3, {S*256}, v1"); A("v_mov_b32 v2, 1")
        A("s_mov_b64 s[50:51], exec"); A(f"s_mov_b64 exec, {hex((1 << R) - 1) if R < 64 else -1}" if R != 32 else "s_mov_b32 exec_hi, 0")
        A(f"buffer_atomic_add v2, v3, {srd(SWS)}, s48 offen sc1")
        A("s_mov_b64 exec, s[50:51]")
    def gb_poll(self, idx):
        S, R = self.bar_sr(idx)
        A = self.A
        if self.o.get("bar", 0) == 2:
            S = self.o.get("barS", 8)
            A(f"v_and_b32 v3, {S-1}, v1"); A("v_lshlrev_b32 v3, 2, v3")
            A(f"s_lshl_b32 s48, {s(sXC)}, 8"); A(f"s_add_u32 s48, s48, {hex(BAR_OFF + idx * 0x8000 + 0x1000)}")
            self.poll(3, "s48", 1)
            return
        if self.o.get(f"gate{idx}", -1) >= 0:
            A("v_mov_b32 v3, 0")
            A(f"s_lshl_b32 s48, {s(sXC)}, 12"); A(f"s_add_u32 s48, s48, {hex(BAR_OFF + idx * 0x8000 + 128)}")
            self.poll(3, "s48", 1)
        A(f"v_and_b32 v3, {S-1}, v1"); A("v_lshlrev_b32 v3, 8, v3")
        A(f"s_and_b32 s48, s2, {R-1}"); A(f"s_mul_i32 s48, s48, {S*256}"); A(f"s_add_u32 s48, s48, {hex(BAR_OFF + idx * 0x8000)}")
        self.poll(3, "s48", min(256 // S, 64) if 256 // S <= 64 else "s52")
    def gb_wait(self, idx):
        S, R = self.bar_sr(idx)
        if 256 // S > 64 and self.o.get("bar", 0) != 2: self.A(f"s_mov_b32 s52, {256 // S}")
        if idx != 0 or self.o.get("p1v", 0) == 0:
            A = self.A
            lab = self.wave0_begin()
            self.gb_poll(idx)
            A.label(lab)
            A("s_waitcnt vmcnt(0)")
            A("s_barrier")
            return
        A = self.A
        pw = self.o.get("pw", 3)
        if self.o.get("pb", 0): A("s_barrier")
        lab = A.newlabel("L_nw3")
        A(f"s_cmp_lg_u32 {s(sW)}, {pw}"); A(f"s_cbranch_scc1 {lab}")
        if self.o.get("psl0", 0): A(f"s_sleep {self.o['psl0']}")
        self.gb_poll(idx)
        A.label(lab)
        if self.o.get("pv0", 0): A("s_waitcnt vmcnt(0)")
        A("s_barrier")
    def b1_dead(self):
        A = self.A
        self.rp13_issue()
        A(f"s_cmp_ge_u32 {s(sI)}, 28"); A("s_cbranch_scc1 L_b1_now")
        A(f"s_cmp_eq_u32 {s(sW)}, 3"); A("s_cbranch_scc1 L_b1_now")
        A("s_mov_b32 s58, 642")
        self.p2_wloads()
        A.label("L_b1_now")
        if self.o.get("bar", 0) == 2:
            lab = A.newlabel("L_nw3r"); la = A.newlabel("L_r0"); lb = A.newlabel("L_r1")
            A(f"s_cmp_lg_u32 {s(sW)}, 3"); A(f"s_cbranch_scc1 {lab}")
            A("s_cmp_ge_u32 s2, 216"); A(f"s_cbranch_scc1 {la}")
            A("s_waitcnt vmcnt(5)"); A(f"s_branch {lb}")
            A.label(la); A("s_waitcnt vmcnt(0)"); A.label(lb)
            self.ra_release(0)
            A.label(lab)
        self.stamp(3)
        if self.o.get("p1v", 0) == 0:
            self.consts_split()
            A("s_waitcnt lgkmcnt(0)")
        self.stamp(4)
    def uv_tile(self, tl, vm):
        A = self.A
        b = 40 if tl % 2 == 0 else 80
        A("s_cmp_lt_u32 s2, 216"); A("s_cselect_b32 s63, s62, 0x7000000")
        self.rp13_read(6, 7, b, extra=32 * tl)
        A("s_lshr_b32 s52, s2, 3"); A("s_and_b32 s53, s2, 7")
        A("s_lshl_b32 s54, s52, 2"); A(f"s_add_u32 s54, s54, {tl}")
        A("s_mul_i32 s55, s54, 9363"); A("s_lshr_b32 s55, s55, 16")
        A("s_mul_i32 s56, s55, 7"); A("s_sub_u32 s56, s54, s56")
        A("s_mul_i32 s53, s53, 5")
        A("s_mul_i32 s52, s53, 3"); A("s_add_u32 s52, s52, s56")
        A("s_mul_i32 s54, s56, 40"); A("s_add_u32 s54, s54, s53")
        A("s_cmp_lt_u32 s56, 3"); A("s_cselect_b32 s52, s52, s54"); A("s_movk_i32 s54, 0x400"); A("s_cselect_b32 s53, 3072, s54")
        A("s_lshl_b32 s52, s52, 10"); A(f"s_mul_i32 s55, s55, {W13_FS}"); A("s_add_u32 s52, s52, s55"); A(f"s_add_u32 s52, s52, {hex(W13S_OFF)}")
        A("s_cmp_lt_u32 s2, 216"); A("s_cselect_b32 s52, s52, 0x7000000")
        if tl == 0: A(f"s_waitcnt vmcnt({vm.wait(('uvl', 0))})")
        A("s_waitcnt lgkmcnt(0)")
        for k5 in range(5):
            A(f"v_mfma_f32_32x32x16_bf16 v[64:79], {v(120+4*k5,4)}, {v(b+4*k5,4)}, {'0' if k5 == 0 else 'v[64:79]'}")
            A(f"buffer_store_dwordx4 {v(b+4*k5,4)}, v2, {srd(SWS)}, s52 offen sc1"); vm.add(("w13", tl))
            if k5 < 4: A("s_add_u32 s52, s52, s53")
        A("s_mov_b64 s[66:67], exec"); A("s_mov_b32 exec_hi, 0")
        A(f"buffer_store_dwordx2 v[64:65], v12, {srd(SWS)}, s63 offen offset:{256*tl} sc1"); vm.add(("uvs", tl))
        A("s_mov_b64 exec, s[66:67]")
    def p3_small(self):
        A = self.A
        self.p35_roles()
        A("v_and_b32 v4, 15, v1"); A("v_lshrrev_b32 v5, 4, v1")
        A("v_mul_u32_u24 v6, 0xa000, v4"); A("v_lshl_add_u32 v6, v5, 3, v6")
        A(f"s_lshl_b32 s56, {s(sW)}, 9"); A("s_add_u32 s56, s56, s54"); A("s_mul_i32 s56, s56, 1280"); A("s_mul_i32 s57, s55, 160"); A("s_add_u32 s56, s56, s57")
        for dt in range(5):
            A(f"buffer_load_dwordx2 {v(200+2*dt,2)}, v6, {srd(SX)}, s56 offen offset:{32*dt}")
        A("v_lshlrev_b32 v7, 4, v5")
        A("s_mul_i32 s56, s55, 320"); A(f"s_add_u32 s57, s56, {hex(GA_OFF)}"); A(f"s_add_u32 s58, s56, {hex(CB1F_OFF)}")
        for dt in range(5):
            A(f"buffer_load_dwordx4 {v(160+4*dt,4)}, v7, {srd(SWS)}, s57 offen offset:{64*dt} sc1")
            A(f"buffer_load_dwordx4 {v(180+4*dt,4)}, v7, {srd(SWS)}, s58 offen offset:{64*dt} sc1")
    def p3_gdma(self):
        A = self.A
        self.p35_roles()
        A("v_lshlrev_b32 v2, 4, v1")
        A("s_mul_i32 s56, s55, 107520"); A(f"s_lshl_b32 s57, {s(sW)}, 10"); A("s_add_u32 s56, s56, s57"); A(f"s_add_u32 s56, s56, {hex(GP_OFF)}")
        for k in range(27):
            A(f"s_add_u32 m0, s57, {k*4096}")
            A(f"buffer_load_dwordx4 v2, {srd(SWS)}, s56 offen sc1 lds")
            if k < 26: A("s_add_u32 s56, s56, 4096")
    def b2(self):
        A = self.A
        g3 = self.o.get("g3", 0)
        self.p3_small()
        if g3 == 2:
            l6 = A.newlabel("L_b2r")
            A(f"s_cmp_lg_u32 {s(sW)}, 3"); A(f"s_cselect_b32 s48, {s(sI)}, 28"); A("s_cmp_lt_u32 s48, 28"); A(f"s_cbranch_scc1 {l6}")
        self.rp2_issue()
        if g3 == 2: A.label(l6)
        if self.o.get("c3late", 0) == 2: self.p3_consts()
        self.stamp(8)
        if g3:
            l3 = A.newlabel("L_b2w3"); l3b = A.newlabel("L_b2w3b")
            A(f"s_cmp_lg_u32 {s(sW)}, 3"); A(f"s_cselect_b32 s48, 28, {s(sI)}"); A("s_cmp_lt_u32 s48, 28"); A(f"s_cbranch_scc1 {l3}")
        A("s_waitcnt vmcnt(15)")
        if g3 == 1: A.label(l3)
        if g3 == 2:
            A(f"s_branch {l3b}")
            A.label(l3); A("s_waitcnt vmcnt(63)"); A.label(l3b)
        A("s_barrier")
        lab = self.wave0_begin()
        self.gb_arrive(1)
        A.label(lab)
        self.stamp(9)
        if g3:
            l4 = A.newlabel("L_b2g"); l5 = A.newlabel("L_b2h")
            A(f"s_cmp_lt_u32 {s(sI)}, 28"); A(f"s_cbranch_scc1 {l4}")
        self.p3_gdma()
        A("s_waitcnt vmcnt(27)")
        if g3:
            A(f"s_branch {l5}")
            A.label(l4)
            if g3 == 2:
                A(f"s_cmp_lg_u32 {s(sW)}, 3"); A(f"s_cbranch_scc1 {l5}")
            A("s_waitcnt vmcnt(0)"); A.label(l5)
        if self.o.get("bar", 0) == 2:
            lab = self.wave0_begin()
            self.ra_release(1)
            A.label(lab)
        self.rp2_finish()
        if not self.o.get("c3late", 0): self.p3_consts()
        self.stamp(20) if self.o.get("ts") == 1 else None
        self.gb_wait(1)


    def rp13_finish(self):
        A = self.A
        A("s_cmp_ge_u32 s2, 216"); A("s_cbranch_scc1 L_rp13_done")
        A("s_lshr_b32 s52, s2, 3"); A("s_and_b32 s53, s2, 7")
        self.rp13_addr(6, 7)
        A(f"s_lshl_b32 s54, {s(sW)}, 5"); A("v_add_u32 v6, s54, v6"); A("v_add_u32 v7, s54, v7")
        self.rp13_read(6, 7, 40)
        A("s_lshl_b32 s54, s52, 2"); A(f"s_add_u32 s54, s54, {s(sW)}")
        A("s_mul_i32 s55, s54, 9363"); A("s_lshr_b32 s55, s55, 16")
        A("s_mul_i32 s56, s55, 7"); A("s_sub_u32 s56, s54, s56")
        A("s_mul_i32 s57, s53, 5")
        A("s_mul_i32 s58, s57, 3"); A("s_add_u32 s58, s58, s56")
        A("s_mul_i32 s59, s56, 40"); A("s_add_u32 s59, s59, s57")
        A("s_cmp_lt_u32 s56, 3"); A("s_cselect_b32 s58, s58, s59"); A("s_movk_i32 s60, 0x400"); A("s_cselect_b32 s59, 3072, s60")
        A("s_lshl_b32 s58, s58, 10"); A(f"s_mul_i32 s55, s55, {W13_FS}"); A("s_add_u32 s54, s58, s55"); A(f"s_add_u32 s54, s54, {hex(W13S_OFF)}")
        A("v_lshlrev_b32 v8, 4, v1")
        for k5 in range(5):
            A(f"s_waitcnt lgkmcnt({8-2*k5})")
            A(f"buffer_store_dwordx4 {v(40+4*k5,4)}, v8, {srd(SWS)}, s54 offen sc1")
            if k5 < 4: A("s_add_u32 s54, s54, s59")
        A.label("L_rp13_done")
    def tile_of(self, dst, n, tmp):
        A = self.A
        t0, t1 = tmp
        A(f"s_lshr_b32 {s(t0)}, {s(n)}, 4"); A(f"s_and_b32 {s(t1)}, {s(n)}, 15")
        A(f"s_mul_i32 {s(t1)}, {s(t1)}, 7"); A(f"s_add_u32 {s(dst)}, {s(t0)}, {s(t1)}")
        A(f"s_sub_u32 {s(t0)}, {s(n)}, 48")
        A(f"s_mul_i32 {s(t1)}, {s(t0)}, 4370"); A(f"s_lshr_b32 {s(t1)}, {s(t1)}, 16")
        A(f"s_mul_i32 s48, {s(t1)}, 15"); A(f"s_sub_u32 {s(t0)}, {s(t0)}, s48")
        A(f"s_mul_i32 {s(t0)}, {s(t0)}, 7"); A(f"s_add_u32 {s(t0)}, {s(t0)}, {s(t1)}"); A(f"s_add_u32 {s(t0)}, {s(t0)}, 3")
        A(f"s_cmp_lt_u32 {s(n)}, 48"); A(f"s_cselect_b32 {s(dst)}, {s(dst)}, {s(t0)}")
    def rp2_issue(self, vt=(4, 5), sfx=""):
        A = self.A
        x, y = v(vt[0]), v(vt[1])
        self.rp2_unit()
        A("s_cmp_ge_u32 s63, 540"); A(f"s_cbranch_scc1 L_rp2_i_done{sfx}")
        A(f"v_lshrrev_b32 {x}, 3, v1"); A(f"v_and_b32 {y}, 7, v1")
        A(f"v_mul_u32_u24 {x}, 1280, {x}"); A(f"v_lshl_add_u32 {x}, {y}, 4, {x}")
        A(f"s_lshl_b32 s54, {s(sW)}, 12"); A(f"s_add_u32 s54, s54, {self.STG2}")
        A("s_lshl_b32 s58, s56, 7")
        for half in range(2):
            A("s_lshl_b32 s60, s55, 1")
            if half: A("s_add_u32 s60, s60, 1")
            self.tile_of(59, 60, (61, 62))
            A(f"s_mul_i32 s57, s59, {16*1280}"); A("s_add_u32 s57, s57, s58")
            for n in range(2):
                A(f"s_add_u32 m0, s54, {(2*half+n)*1024}")
                A(f"buffer_load_dwordx4 {x}, {srd(SW2)}, s57 offen lds")
                if n == 0: A(f"s_add_u32 s57, s57, {8*1280}")
        A.label(f"L_rp2_i_done{sfx}")
    def p4_roles(self):
        A = self.A
        A(f"s_lshr_b32 s54, {s(sI)}, 3"); A("s_lshl_b32 s54, s54, 2"); A(f"s_lshr_b32 s55, {s(sXC)}, 1"); A("s_add_u32 s54, s54, s55")
        A(f"s_and_b32 s55, {s(sXC)}, 1"); A("s_lshl_b32 s55, s55, 3"); A(f"s_and_b32 s56, {s(sI)}, 7"); A("s_add_u32 s55, s55, s56")
    ROT = 7
    EXT = 157696
    def ring_m0(self, R):
        return ((R + self.ROT) % 9) * 16384
    def ring_pos(self, e):
        return (e + 16 * self.ROT) % 144
    def dma_ops(self, R):
        L = []
        for j in range(4):
            l = [f"buffer_load_dwordx4 v2, {srd(SWS)}, {s(sDW)} offen" + (f" offset:{1024*j}" if j else "") + " sc1 lds"]
            if j == 3:
                if R == 17: l.append(f"s_mov_b32 {s(sDW)}, {s(sW2)}")
                else: l.append(f"s_add_u32 {s(sDW)}, {s(sDW)}, 16384")
                l.append(f"s_add_u32 m0, {s(sM0)}, {self.ring_m0(R + 1)}")
            L.append(l)
        return L
    def ring_setup(self):
        A = self.A
        self.p4_roles()
        A(f"s_lshl_b32 {s(sM0)}, {s(sW)}, 12")
        A(f"s_mul_i32 {s(sDW)}, s55, {W13_FS}"); A(f"s_add_u32 {s(sDW)}, {s(sDW)}, {s(sM0)}"); A(f"s_add_u32 {s(sDW)}, {s(sDW)}, {hex(W13S_OFF)}")
        A(f"s_and_b32 s56, {s(sI)}, 7"); A(f"s_mul_i32 s56, s56, {54*5120}"); A(f"s_add_u32 s56, s56, {s(sM0)}"); A(f"s_add_u32 {s(sW2)}, s56, {hex(W2P_OFF)}")
        A(f"s_add_u32 m0, {s(sM0)}, {self.ring_m0(0)}")

    def p2_main(self):
        n0 = len(self.A.lines)
        super().p2_main()
        L = self.A.lines
        i0 = next(i for i in range(n0, len(L)) if L[i].startswith("s_cmp_ge_u32 s2, 216") and L[i+1].startswith("s_cbranch_scc1 L_p2_done") and L[i+2].startswith("s_waitcnt vmcnt(0)"))
        i1 = next(i for i in range(i0, len(L)) if L[i] == "L_p2_done:")
        del L[i0:i1 + 1]
        A = self.A
        if self.o.get("g3", 0) == 2:
            j = next(k for k in range(n0, len(L)) if L[k] == "s_barrier" and L[k + 1] == "s_waitcnt vmcnt(0)")
            tail = L[j + 2:]
            del L[j + 2:]
            self.rp2_issue(vt=(10, 11), sfx="_a")
            L.extend(tail)

        if self.o.get("g3", 0):
            if self.o.get("g3", 0) == 1: A("s_waitcnt vmcnt(0)")
            self.p35_roles()
            A("s_mul_i32 s56, s55, 107520"); A(f"s_add_u32 s56, s56, {hex(GP_OFF)}")
            for r in range(27):
                A(f"s_mov_b32 m0, {r*4096}")
                for j in range(4 if r < 26 else 1):
                    A(f"buffer_load_dwordx4 v2, {srd(SWS)}, s56 offen" + (f" offset:{1024*j}" if j else "") + " sc1 lds")
                if r < 26: A("s_add_u32 s56, s56, 4096")
        A.label("L_p2_done")

    def p3_main(self):
        A = self.A
        PF = self.o.get("p3pf", 6)
        NPRE = self.o.get("npre", 8)
        self.ring_setup()
        self.p35_roles()
        A("v_and_b32 v4, 15, v1"); A("v_lshrrev_b32 v5, 4, v1")
        A("v_lshrrev_b32 v6, 2, v4"); A("v_lshlrev_b32 v6, 8, v6"); A("v_lshrrev_b32 v7, 1, v5"); A("v_lshl_add_u32 v6, v7, 7, v6")
        A("v_and_b32 v7, 3, v4"); A("v_lshl_add_u32 v6, v7, 5, v6"); A("v_and_b32 v7, 1, v5"); A("v_lshl_add_u32 v6, v7, 4, v6")
        A("s_mul_i32 s56, s54, 86016"); A(f"s_lshl_b32 s57, {s(sW)}, 10"); A("s_add_u32 s56, s56, s57"); A(f"s_add_u32 s56, s56, {hex(A3_OFF)}")
        vm = VM()
        nl = [0]
        def ld():
            if nl[0] >= 21: return False
            A(f"buffer_load_dwordx4 {a(4*nl[0],4)}, v6, {srd(SWS)}, s56 offen sc1"); vm.add(("a3", nl[0]))
            if nl[0] < 20: A("s_add_u32 s56, s56, 4096")
            nl[0] += 1
            return True
        for k in range(PF): ld()
        if self.o.get("c3late", 0) == 1:
            A("v_mov_b32 v30, v6")
            self.p3_consts()
            A("v_mov_b32 v6, v30"); A("v_and_b32 v4, 15, v1"); A("v_lshrrev_b32 v5, 4, v1")
            self.p35_roles()
            A("s_mul_i32 s56, s54, 86016"); A(f"s_lshl_b32 s57, {s(sW)}, 10"); A("s_add_u32 s56, s56, s57"); A(f"s_add_u32 s56, s56, {hex(A3_OFF + PF*4096)}")
        A("v_lshlrev_b32 v2, 4, v1"); A("v_add_u32 v3, 56320, v2")
        self.rp2_unit()
        A("s_lshl_b32 s62, s56, 8"); A(f"s_add_u32 s62, s62, {hex(F2_OFF)}")
        A("s_cmp_ge_u32 s63, 540"); A("s_cselect_b32 s62, 0x7000000, s62")
        self.atomic_inc_lane0("s62", vt=(8, 9)); vm.add(("f2", 0))
        A("v_lshrrev_b32 v7, 5, v0"); A("v_and_b32 v8, 31, v0")
        A("v_lshlrev_b32 v9, 8, v7"); A("v_lshl_add_u32 v9, v8, 3, v9")
        extra = []
        self.p4_roles()
        A("s_mul_i32 s58, s55, 1792"); A(f"s_add_u32 s58, s58, {hex(UVP_OFF)}")
        self.p35_roles()
        A("s_mul_i32 s56, s54, 86016"); A(f"s_lshl_b32 s57, {s(sW)}, 10"); A("s_add_u32 s56, s56, s57"); A(f"s_add_u32 s56, s56, {hex(A3_OFF + PF*4096)}")
        for p in range(8):
            l = [f"buffer_load_dwordx2 {v(120+2*p,2)}, v9, {srd(SWS)}, s58 offen sc1"]
            if p < 7: l.append(f"s_add_u32 s58, s58, {108*256}")
            extra.append((l, ("uv", p)))
        for R in range(2):
            for l in self.dma_ops(R): extra.append((l, ("dma", R)))
        def ex():
            if ld(): return
            if extra:
                l, tag = extra.pop(0)
                for x in l: A(x)
                vm.add(tag)
        def rd(tau):
            ad = "v2" if tau < 11 else "v3"; o = (tau if tau < 11 else tau - 11) * 5120
            for dt in range(5):
                A(f"ds_read_b128 {v(60+20*(tau&1)+4*dt,4)}, {ad} offset:{o+dt*1024}")
        rd(0)
        for tau in range(21):
            if tau < 20:
                rd(tau + 1); A(f"s_waitcnt vmcnt({vm.wait(('a3', tau))}) lgkmcnt(5)")
            else:
                A(f"s_waitcnt vmcnt({vm.wait(('a3', tau))}) lgkmcnt(0)")
            for dt in range(5):
                d = v(40 + 4 * dt, 4)
                A(f"v_mfma_f32_16x16x32_bf16 {d}, {a(4*tau,4)}, {v(60+20*(tau&1)+4*dt,4)}, {'0' if tau == 0 else d}")
                if dt == 1 or (dt == 3 and nl[0] >= 21): ex()
        while extra: ex()
        XB = self.XB
        A(f"s_lshr_b32 s56, {s(sW)}, 1"); A("s_mul_i32 s56, s56, 5120"); A(f"s_and_b32 s57, {s(sW)}, 1"); A("s_lshl_b32 s57, s57, 3")
        A("s_add_u32 s56, s56, s57"); A(f"s_add_u32 s56, s56, {XB}")
        A("v_add_u32 v8, s56, v2")
        for dt in range(5):
            A(f"v_cvt_pk_bf16_f32 {v(60+2*dt)}, {v(40+4*dt)}, {v(41+4*dt)}")
            A(f"v_cvt_pk_bf16_f32 {v(61+2*dt)}, {v(42+4*dt)}, {v(43+4*dt)}")
            A(f"ds_write_b64 v8, {v(60+2*dt,2)} offset:{dt*1024}")
        A("s_waitcnt lgkmcnt(0)"); A("s_barrier")
        pend = []
        for R in range(2, 9):
            for l in self.dma_ops(R): pend.append((l, ("dma", R)))
        def dm(n=1):
            while n > 0 and pend:
                l, tag = pend.pop(0)
                for x in l: A(x)
                vm.add(tag); n -= 1
        npre = [NPRE]
        def dmp():
            if npre[0] > 0: dm(); npre[0] -= 1
        A(f"v_add_u32 v8, {XB}, v2")
        for u in range(2):
            for dt in range(5):
                A(f"ds_read_b128 {v(60+20*u+4*dt,4)}, v8 offset:{(5*u+dt)*1024}")
        dmp()
        X1 = self.X1
        for dt in range(5):
            for h in range(2):
                xr = 200 + 2 * dt + h
                A(f"v_lshlrev_b32 {v(X1+4*dt+2*h)}, 16, {v(xr)}")
                A(f"v_and_b32 {v(X1+4*dt+2*h+1)}, 0xffff0000, {v(xr)}")
            if dt in (1, 3): dmp()
        A("s_waitcnt lgkmcnt(5)")
        for dt in range(5):
            A(f"v_mfma_f32_16x16x32_bf16 {v(100+4*dt,4)}, {v(60+4*dt,4)}, v[210:213], 0")
        dmp()
        A("s_waitcnt lgkmcnt(0)")
        for dt in range(5):
            A(f"v_mfma_f32_16x16x32_bf16 {v(100+4*dt,4)}, {v(80+4*dt,4)}, v[214:217], {v(100+4*dt,4)}")
        dmp()
        A("v_lshrrev_b32 v6, 1, v5"); A("v_and_b32 v7, 1, v5")
        A("v_lshlrev_b32 v8, 10, v6"); A("v_lshl_add_u32 v8, v7, 9, v8"); A("v_lshl_add_u32 v8, v4, 4, v8")
        A("v_lshlrev_b32 v10, 9, v6"); A("v_lshl_add_u32 v10, v4, 4, v10"); A("v_lshl_add_u32 v10, v7, 3, v10"); A("v_add_u32 v10, 4096, v10")
        A("s_lshl_b32 s56, s54, 1"); A(f"s_lshr_b32 s57, {s(sW)}, 1"); A("s_add_u32 s56, s56, s57"); A("s_mul_i32 s56, s56, 40960")
        A("s_mul_i32 s57, s55, 5120"); A("s_add_u32 s56, s56, s57")
        A(f"s_and_b32 s57, {s(sW)}, 1"); A("s_lshl_b32 s57, s57, 8"); A("s_add_u32 s56, s56, s57"); A(f"s_add_u32 s56, s56, {hex(X1C_OFF)}")
        dmp()
        for dt in range(5):
            for h in (0, 2):
                A(f"v_pk_fma_f32 {v(X1+4*dt+h,2)}, {v(160+4*dt+h,2)}, {v(100+4*dt+h,2)}, {v(X1+4*dt+h,2)}")
        dmp()
        for dt in range(5):
            for h in (0, 2):
                A(f"v_pk_mul_f32 {v(100+4*dt+h,2)}, {v(X1+4*dt+h,2)}, {v(180+4*dt+h,2)}")
        dmp()
        while npre[0] > 0: dmp()
        for dt in range(5):
            A(f"v_cvt_pk_bf16_f32 {v(60+2*dt)}, {v(100+4*dt)}, {v(101+4*dt)}")
            A(f"v_cvt_pk_bf16_f32 {v(61+2*dt)}, {v(102+4*dt)}, {v(103+4*dt)}")
        A(f"buffer_store_dwordx4 v[60:63], v8, {srd(SWS)}, s56 offen sc1"); vm.add(("st", 0))
        A(f"buffer_store_dwordx4 v[64:67], v8, {srd(SWS)}, s56 offen offset:2048 sc1"); vm.add(("st", 1))
        A(f"buffer_store_dwordx2 v[68:69], v10, {srd(SWS)}, s56 offen sc1"); vm.add(("st", 2))
        A(f"v_pk_add_f32 v[20:21], {v(X1,2)}, {v(X1+2,2)}")
        A(f"v_pk_mul_f32 v[22:23], {v(X1,2)}, {v(X1,2)}")
        A(f"v_pk_fma_f32 v[22:23], {v(X1+2,2)}, {v(X1+2,2)}, v[22:23]")
        for k in range(2, 10):
            A(f"v_pk_add_f32 v[20:21], v[20:21], {v(X1+2*k,2)}")
            A(f"v_pk_fma_f32 v[22:23], {v(X1+2*k,2)}, {v(X1+2*k,2)}, v[22:23]")
        A("v_add_f32 v20, v20, v21"); A("v_add_f32 v21, v22, v23")
        for sw in ("v_permlane16_swap_b32", "v_permlane32_swap_b32"):
            A("v_mov_b32 v22, v20"); A("v_mov_b32 v23, v21")
            A(f"{sw} v20, v22"); A(f"{sw} v21, v23")
            A("v_add_f32 v20, v20, v22"); A("v_add_f32 v21, v21, v23")
        A("s_lshl_b32 s56, s55, 14"); A("s_lshl_b32 s57, s54, 9"); A("s_add_u32 s56, s56, s57"); A(f"s_lshl_b32 s57, {s(sW)}, 7"); A("s_add_u32 s56, s56, s57")
        A(f"s_add_u32 s56, s56, {hex(ST2_OFF)}")
        A("v_lshlrev_b32 v8, 3, v4")
        A("s_mov_b64 s[60:61], exec"); A("s_mov_b64 exec, 0xffff")
        A(f"buffer_store_dwordx2 v[20:21], v8, {srd(SWS)}, s56 offen sc1"); vm.add(("st", 3))
        A("s_mov_b64 exec, s[60:61]")
        A("s_lshl_b32 s76, s54, 1"); A(f"s_lshr_b32 s57, {s(sW)}, 1"); A("s_add_u32 s76, s76, s57"); A("s_lshl_b32 s76, s76, 8")
        A("s_lshl_b32 s57, s55, 3"); A("s_add_u32 s76, s76, s57"); A(f"s_and_b32 s57, {s(sW)}, 1"); A("s_lshl_b32 s57, s57, 2"); A("s_add_u32 s76, s76, s57")
        A(f"s_add_u32 s76, s76, {hex(S3_OFF)}")
        self.vm3 = vm; self.pend3 = pend; self.dm3 = dm

    def p4_pre(self):
        A = self.A
        vm = self.vm3; dm = self.dm3
        NMID = self.o.get("nmid", 6)
        dm(NMID // 2)
        A(f"s_waitcnt vmcnt({vm.wait(('uv', 7))})")
        for p in range(1, 8):
            A(f"v_pk_add_f32 v[120:121], v[120:121], {v(120+2*p,2)}")
        for x, dst in ((120, 26), (121, 27)):
            A(f"v_cvt_pk_bf16_f32 v11, {v(x)}, {v(x)}"); A("v_lshlrev_b32 v14, 16, v11")
            A(f"v_sub_f32 v14, {v(x)}, v14")
            A(f"v_cvt_pk_bf16_f32 v14, v14, v14")
            A("v_and_b32 v11, 0xffff, v11"); A(f"v_lshl_or_b32 {v(dst)}, v14, 16, v11")
        A("v_mov_b32 v28, 0"); A("v_mov_b32 v29, 0")
        A("v_lshrrev_b32 v4, 5, v0"); A("v_and_b32 v5, 31, v0")
        A("v_lshlrev_b32 v6, 9, v4"); A("v_lshl_add_u32 v6, v5, 4, v6"); A(f"v_add_u32 v6, {self.EXT}, v6")
        A("v_cmp_gt_u32 vcc, 224, v0"); A("s_and_saveexec_b64 s[60:61], vcc")
        A("ds_write_b128 v6, v[26:29]")
        A("s_mov_b64 exec, s[60:61]")
        dm(NMID - NMID // 2)
        self.p4_roles()
        A("s_lshl_b32 s57, s54, 2"); A(f"s_add_u32 s57, s57, {s(sW)}")
        A(f"s_mul_i32 {s(sTOK)}, s57, 40960"); A(f"s_add_u32 {s(sTOK)}, {s(sTOK)}, {hex(X1C_OFF)}")
        A(f"s_lshl_b32 {s(sST)}, s57, 8"); A(f"s_add_u32 {s(sST)}, {s(sST)}, {hex(ST2_OFF)}")
        A(f"s_lshl_b32 {s(sS3)}, s57, 8"); A(f"s_add_u32 {s(sS3)}, {s(sS3)}, {hex(S3_OFF)}")
        A(f"s_lshl_b32 {s(sF4P)}, s57, 9"); A("s_lshl_b32 s58, s55, 2"); A(f"s_add_u32 {s(sF4P)}, {s(sF4P)}, s58"); A(f"s_add_u32 {s(sF4P)}, {s(sF4P)}, {hex(S4_OFF)}")
        A("s_mul_i32 s58, s57, 110592"); A(f"s_add_u32 s58, s58, {hex(HP_OFF)}")
        for t in range(7):
            n0 = 16 * t if t < 3 else 48 + 15 * (t - 3)
            A(f"s_add_u32 s59, s55, {n0}")
            A("s_and_b32 s60, s59, 1"); A("s_lshl_b32 s60, s60, 9")
            A("s_bfe_u32 s61, s59, 0x10001"); A("s_mul_i32 s61, s61, 55296")
            A("s_lshr_b32 s59, s59, 2"); A("s_lshl_b32 s59, s59, 11")
            A("s_add_u32 s60, s60, s61"); A("s_add_u32 s60, s60, s59"); A(f"s_add_u32 {s(sHS+t)}, s60, s58")
            if t >= 3:
                A("s_cmp_eq_u32 s55, 15"); A(f"s_cselect_b32 {s(sHS+t)}, 0x7000000, {s(sHS+t)}")
        A(f"s_waitcnt vmcnt({vm.wait(('st', 3))})")
        self.flag_store_lane0("s76", vt=(8, 9)); vm.add(("flag", 0))
        self.stamp(12)
        dm(99)
        self.p35_roles()
        A("s_lshl_b32 s57, s54, 1"); A(f"s_lshr_b32 s58, {s(sW)}, 1"); A("s_add_u32 s57, s57, s58")
        A(f"s_lshl_b32 {s(sF4C)}, s57, 9"); A(f"s_add_u32 {s(sF4C)}, {s(sF4C)}, {hex(S4_OFF)}")
        A(f"s_mul_i32 {s(sH)}, s57, 110592"); A(f"s_and_b32 s58, {s(sW)}, 1"); A("s_mul_i32 s59, s58, 55296"); A(f"s_add_u32 {s(sH)}, {s(sH)}, s59")
        A(f"s_add_u32 {s(sH)}, {s(sH)}, {hex(HP_OFF)}")
        A("s_waitcnt lgkmcnt(0)")
        A("v_lshrrev_b32 v5, 4, v1"); A("v_lshlrev_b32 v7, 4, v5")
        A("s_mul_i32 s56, s55, 320"); A(f"s_add_u32 s57, s56, {hex(GB_OFF)}")
        for dt in range(5):
            A(f"buffer_load_dwordx4 {v(20+4*dt,4)}, v7, {srd(SWS)}, s57 offen offset:{64*dt} sc1"); vm.add(("gb", dt))
        A("s_mul_i32 s60, s55, 5"); A("s_add_u32 s61, s60, 4"); A("s_lshr_b32 s60, s60, 2"); A("s_lshr_b32 s61, s61, 2")
        A("v_and_b32 v17, 1, v1"); A("v_add_u32 v17, s60, v17"); A("v_min_u32 v17, s61, v17"); A("v_lshlrev_b32 v17, 8, v17")
        A("v_lshlrev_b32 v2, 4, v1"); A("v_add_u32 v3, 0x10000, v2"); A("v_add_u32 v4, 0x20000, v2")
        A("v_and_b32 v5, 31, v1"); A("v_lshlrev_b32 v5, 4, v5"); A(f"v_add_u32 v5, {self.EXT}, v5")
        A("v_bfe_u32 v6, v1, 4, 1"); A("v_lshlrev_b32 v6, 10, v6"); A("v_lshrrev_b32 v7, 5, v1"); A("v_lshl_add_u32 v6, v7, 8, v6")
        A("v_and_b32 v7, 15, v1"); A("v_lshl_add_u32 v6, v7, 4, v6")
        A("v_mov_b32 v7, 0x40000000"); A("v_cmp_eq_u32 vcc, 0, v1"); A("v_cndmask_b32 v7, v7, 0, vcc")
        A("v_mov_b32 v8, 1")
        A(f"s_mul_i32 s58, s58, 5120")
        A("v_add_u32 v13, s58, v2"); A("v_add_u32 v14, 0x10000, v13"); A("v_add_u32 v15, 0x20000, v13")
        A(f"s_and_b32 s58, {s(sW)}, 1"); A("s_xor_b32 s58, s58, 1"); A(f"s_mul_i32 s58, s58, {139*1024}"); A("v_add_u32 v16, s58, v2")
        self.stamp(13)
        A("v_and_b32 v18, 15, v1"); A("v_lshlrev_b32 v18, 2, v18")
        late = self.o.get("s3late", 2)
        if not late: A(f"buffer_load_dword v19, v18, {srd(SWS)}, {s(sS3)} offen sc1")
        A("s_waitcnt vmcnt(0) lgkmcnt(0)")
        if self.o.get("ts") == 13: self.stamp(21)
        if late == 1: A(f"buffer_load_dword v19, v18, {srd(SWS)}, {s(sS3)} offen sc1")
        A("s_barrier")
        if late == 2: A(f"buffer_load_dword v19, v18, {srd(SWS)}, {s(sS3)} offen sc1")
        if late: A("s_waitcnt vmcnt(0)")
        if self.o.get("ts") == 13:
            self.stamp(22)
            A("v_cmp_gt_u32 vcc, 1, v19"); A("s_nop 4"); A("s_and_b32 s88, vcc_lo, 0xffff"); A("s_or_b32 s88, s88, 0x10000"); A("v_writelane_b32 v252, s88, 23")
            A("s_mov_b32 s49, 0")
        self.check_lines(18, 19, s(sS3), 1)
        if self.o.get("ts") == 13:
            A("s_add_u32 s88, s49, 1"); A("v_writelane_b32 v252, s88, 24")

    def p45(self):
        A = self.A; o = self.o
        vm = VM()
        self.log = []
        evn = [0]; cur = [0]
        def ev(kind, name, fn):
            on = (o.get("ts") == 8 and kind in ("fl", "cmp")) or (o.get("ts") == 9 and kind == "sync") or (o.get("ts") == 10 and kind == "h0") or (o.get("ts") == 11 and kind == "h1") or (o.get("ts") == 12 and kind == "tok")
            if on and evn[0] < 20:
                self.stamp(20 + 2 * evn[0]); fn(); self.stamp(21 + 2 * evn[0]); self.log.append((cur[0], ("EV", evn[0], name))); evn[0] += 1
            else: fn()
        NB = 6; WB = 144; T = 176
        SACC = {0: 40, 1: 56, 2: 72, 3: 88, 4: 40, 5: 56, 6: 72}
        PACC = 104
        NT0 = o.get("nt0", 10)
        LA4 = 3; LA5 = o.get("la5", 3)
        def hreg(i): return 164 + 8 * i if i <= 10 else 8 * (i - 11)
        def ringrd(e, p5=False):
            pos = self.ring_pos(e)
            if not p5:
                return ("v2", "v3", "v4")[pos // 64], (pos % 64) * 1024
            if pos >= 139: return "v16", (pos - 139) * 1024
            return ("v13", "v14", "v15")[pos // 64], (pos % 64) * 1024
        nodes = []
        def add(**k): nodes.append(k); return len(nodes) - 1
        tile_end = {}; tile_start = {}
        for e in range(120):
            k, tl = divmod(e, 3)
            n = add(ph=4, acc=SACC[tl], b=a(4*k, 4), zero=(k == 0), rd=ringrd(e), entry=e, tok=k)
            if k == 0: tile_start[tl] = n
        for tl in range(3):
            tile_end[tl] = add(ph=4, acc=SACC[tl], b=a(160, 4), zero=False, rd=("v5", 512 * tl), entry=None, tok=None, ext=True)
        for t in range(3, 7):
            for k in range(40):
                e = 120 + 40 * (t - 3) + k
                n = add(ph=4, acc=SACC[t], b=a(4*k, 4), zero=(k == 0), rd=ringrd(e), entry=e, tok=None)
                if k == 0: tile_start[t] = n
            tile_end[t] = add(ph=4, acc=SACC[t], b=a(160, 4), zero=False, rd=("v5", 512 * t), entry=None, tok=None, ext=True)
        N4 = len(nodes)
        for i in range(27):
            for ct in range(5):
                for tt in range(2):
                    add(ph=5, acc=PACC + 8 * ct + 4 * tt, b=a(hreg(i) + 4 * tt, 4), zero=(i == 0), rd=(ringrd(288 + 10 * i + ct, True) if tt == 0 else None),
                        entry=288 + 10 * i + ct, step=i, ct=ct, tt=tt)
        N = len(nodes)
        reads = [n for n in range(N) if nodes[n]["rd"] is not None]
        ridx = {n: r for r, n in enumerate(reads)}
        for n in range(N):
            nodes[n]["buf"] = ridx[n] % NB if n in ridx else nodes[n - 1]["buf"]
        r4 = sum(1 for n in reads if n < N4)
        issue_at = {}
        for r, n in enumerate(reads):
            if n < N4:
                pos = n - LA4
                issue_at.setdefault(max(pos, -1), []).append(r)
            else:
                rr = r - LA5
                if rr < r4: issue_at.setdefault("T0", []).append(r)
                else: issue_at.setdefault(reads[rr], []).append(r)
        syncs = {}
        for j in range(1, 9):
            n = next(n for n in range(N4) if nodes[n]["entry"] == 32 * j)
            syncs[ridx[n]] = ("p4", 2 * j + 1)
        SP5 = o.get("sp5", 3)
        for i in range(0, 27, SP5):
            n = next(n for n in range(N4, N) if nodes[n]["step"] == i)
            last = min(270, 10 * (i + SP5)) - 1
            syncs[ridx[n]] = ("p5", 18 + last // 16, i)
        C4 = o.get("c4", 35); C5 = o.get("c5", 26); SEAM = o.get("seam", 450)
        def tm(n): return C4 * n if n < N4 else C4 * N4 + SEAM + C5 * (n - N4)
        def node_at(t):
            if t <= C4 * (N4 - 1): return max(0, -(-t // C4))
            return N4 + max(0, -(-(t - C4 * N4 - SEAM) // C5))
        LAT = o.get("lat", 1200)
        ops = []
        def op(rel, dl, lines, tag, **k): ops.append(dict(rel=rel, dl=dl, lines=lines, tag=tag, **k))
        def tokop(k):
            l = [f"buffer_load_dwordx4 {a(4*k,4)}, v2, {srd(SWS)}, {s(sTOK)} offen" + (f" offset:{1024*(k&3)}" if k & 3 else "") + " sc1"]
            if k & 3 == 3: l.append(f"s_add_u32 {s(sTOK)}, {s(sTOK)}, 4096")
            return l
        def hop(i, tt):
            q = (2 * i + tt) & 3
            l = [f"buffer_load_dwordx4 {a(hreg(i)+4*tt,4)}, v2, {srd(SWS)}, {s(sH)} offen" + (f" offset:{1024*q}" if q else "") + " sc1"]
            if q == 3: l.append(f"s_add_u32 {s(sH)}, {s(sH)}, 4096")
            return l
        dmaq = []
        for R in range(9, 35):
            for l in self.dma_ops(R): dmaq.append((R, l))
        allowed = [8]
        rd_node = {}
        for key, lst in issue_at.items():
            for r in lst: rd_node[r] = (N4 - 1 if key == "T0" else key)
        need_at = {}
        for r in sorted(syncs):
            for R in range(0, syncs[r][1] + 1): need_at.setdefault(R, rd_node[r])
        for k in range(NT0):
            for l in tokop(k): A(l)
            vm.add(("tok", k))
        A("v_and_b32 v10, 31, v1"); A("v_lshlrev_b32 v10, 3, v10")
        for c in range(8):
            A(f"buffer_load_dwordx2 {v(PACC+2*c,2)}, v10, {srd(SWS)}, {s(sST)} offen sc1"); vm.add(("st", c))
            if c < 7: A(f"s_add_u32 {s(sST)}, {s(sST)}, 16384")
        self.mov_s(sF2, F2_OFF)
        A(f"buffer_load_dword v19, v17, {srd(SWS)}, {s(sF2)} offen sc1"); vm.add(("f2", 0))
        A("v_and_b32 v9, 15, v1"); A("v_lshlrev_b32 v9, 2, v9")
        for k in range(NT0, 40): op(max(0, int(o.get("tokr", 2) * (k - NT0))), tm(3 * k) - LAT, tokop(k), ("tok", k), seq="tok")
        fifo = []
        def stats_ops():
            L = []
            b = PACC
            for c in range(1, 8):
                L.append(f"v_add_f32 {v(b)}, {v(b)}, {v(b+2*c)}"); L.append(f"v_add_f32 {v(b+1)}, {v(b+1)}, {v(b+2*c+1)}")
            L += [f"v_mul_f32 {v(b)}, 0x3acccccd, {v(b)}", f"v_mul_f32 {v(b+1)}, 0x3acccccd, {v(b+1)}",
                  f"v_fma_f32 {v(b+1)}, -{v(b)}, {v(b)}, {v(b+1)}", f"v_max_f32 {v(b+1)}, 0, {v(b+1)}",
                  f"v_cvt_pk_bf16_f32 {v(b+1)}, {v(b+1)}, {v(b+1)}", f"v_lshlrev_b32 {v(b+1)}, 16, {v(b+1)}",
                  f"v_add_f32 {v(b+1)}, 0x3727c5ac, {v(b+1)}",
                  f"v_cvt_pk_bf16_f32 {v(b+1)}, {v(b+1)}, {v(b+1)}", f"v_lshlrev_b32 {v(b+1)}, 16, {v(b+1)}",
                  f"v_sqrt_f32 {v(b+1)}, {v(b+1)}",
                  f"v_cvt_pk_bf16_f32 {v(b+3)}, -{v(b)}, -{v(b)}",
                  f"v_cvt_pk_bf16_f32 {v(b+2)}, {v(b+1)}, {v(b+1)}",
                  f"v_lshlrev_b32 {v(b+1)}, 16, {v(b+2)}",
                  "v_cmp_gt_u32 vcc, 32, v1",
                  f"v_mul_f32 v12, {v(b+1)}, {v(b+1)}",
                  f"v_rcp_f32 {v(b+1)}, {v(b+1)}",
                  f"v_cndmask_b32 {v(b+3)}, 0, {v(b+3)}, vcc", f"v_cndmask_b32 {v(b+2)}, 0, {v(b+2)}, vcc",
                  f"v_mov_b32 {v(b+4)}, 0",
                  f"v_mul_f32 v11, 0xbfb8aa3b, {v(b+1)}",
                  f"v_accvgpr_write_b32 a160, {v(b+3)}", f"v_accvgpr_write_b32 a161, {v(b+2)}",
                  f"v_accvgpr_write_b32 a162, {v(b+4)}", f"v_accvgpr_write_b32 a163, {v(b+4)}"]
            return L
        TR = ("v_exp_f32", "v_rcp_f32", "v_sqrt_f32")
        cost = lambda l: 8 if l.startswith(TR) else 4
        ST0 = 3 * NT0 + 6
        for l in stats_ops(): fifo.append((ST0, cost(l), l))
        def epi(t):
            b = SACC[t]; L = []
            st = lambda h: [[f"v_mul_f32 {v(T+h)}, {v(b+h)}, v11", f"v_mul_f32 {v(b+8+h)}, {v(b+h)}, {v(b+8+h)}"],
                            [f"v_exp_f32 {v(T+h)}, {v(T+h)}"], [f"v_fma_f32 {v(T+h)}, {v(T+h)}, v12, v12"], [f"v_rcp_f32 {v(T+h)}, {v(T+h)}"],
                            [f"v_mul_f32 {v(b+8+h)}, {v(b+8+h)}, {v(T+h)}"]]
            for j in range(8 + 5):
                for sg in range(5):
                    h = j - sg
                    if 0 <= h < 8: L += st(h)[sg]
                h = j - 5
                if 0 <= h < 8 and h & 1: L.append(f"v_cvt_pk_bf16_f32 {v(b+(h>>1))}, {v(b+8+h-1)}, {v(b+8+h)}")
            return L
        for t in range(6):
            for l in epi(t): fifo.append((tile_end[t] + 4, cost(l), l))
            fifo.append((0, 0, ("store", t)))
        cls = [0]*4 + [1]*4 + [2]*4 + [3]*3 + [4]*4 + [5]*4 + [6]*4
        FLT = o.get("flt", 1100)
        VIS = o.get("vis", 1500)
        CKT = o.get("ckt", 900)
        F2N = o.get("f2n", 150)
        slow = []
        def check_emit(kind, t):
            lab = A.newlabel("L_slow"); back = A.newlabel("L_back")
            if kind == "cls":
                slow.append((lab, back, f"buffer_load_dword {v(184+t)}, v9, {srd(SWS)}, {s(sF4C)} offen offset:{64*t} sc1", f"v_cmp_eq_u32 vcc, 0, {v(184+t)}"))
                cmp_ = f"v_cmp_eq_u32 vcc, 0, {v(184+t)}"
            else:
                slow.append((lab, back, f"buffer_load_dword v19, v17, {srd(SWS)}, {s(sF2)} offen sc1", "v_cmp_gt_u32 vcc, 54, v19"))
                cmp_ = "v_cmp_gt_u32 vcc, 54, v19"
            return cmp_, [f"s_cbranch_vccnz {lab}", back + ":"]
        events = {}
        def at(n, f): events.setdefault(min(n, N - 1), []).append(f)
        gate_open = {("cls", t): False for t in range(7)}; gate_open["f2"] = False
        ckbusy = [False]
        def sched_cmp(kind, t, n):
            def f():
                if ckbusy[0]:
                    at(cur[0] + 1, f); return
                ckbusy[0] = True
                tag = ("ck", t) if kind == "cls" else ("f2", 0)
                if kind == "cls": assert ("fl", t) in vm.q, ("check before own flag", t)
                ev("cmp", ("w", kind, t), lambda: A(f"s_waitcnt vmcnt({vm.wait(tag)})"))
                c, br = check_emit(kind, t); self.log.append((cur[0], ("CMP", kind, t)))
                A(c)
                def g():
                    def _b():
                        for l in br: A(l)
                    ev("cmp", ("br", kind, t), _b)
                    gate_open[("cls", t) if kind == "cls" else "f2"] = True
                    ckbusy[0] = False
                at(cur[0] + (2 if nodes[min(cur[0], N-1)]["ph"] == 4 else 3), g)
            at(n, f)
        def mk_check(t, rel):
            def oi(n):
                sched_cmp("cls", t, node_at(tm(n) + CKT))
            op(rel, -2, [f"buffer_load_dword {v(184+t)}, v9, {srd(SWS)}, {s(sF4C)} offen offset:{64*t} sc1"], ("ck", t), on_issue=oi)
        gate_open[None] = True
        sched_cmp("f2", 0, F2N)
        step_node = {i: next(n for n in range(N4, N) if nodes[n]["step"] == i) for i in range(27)}
        for i in range(27):
            for tt in range(2):
                op(0 if i <= 10 else N4, tm(step_node[i]) - LAT, hop(i, tt), ("h", i, tt), gate=("cls", cls[i]), seq="h")
        JIT0 = o.get("jit0", 2)
        JM = o.get("jm", 300)
        def jit(t):
            if t < JIT0: return 0
            i0 = cls.index(t)
            return node_at(tm(step_node[i0]) - LAT - CKT - JM)
        lastvm = [-9]
        nrd = [0]
        def emit_read(r):
            if r in syncs:
                sy = syncs[r]
                tgt = sy[1]
                idx = [x for x in vm.q if x[0] == "dma" and x[1] <= tgt]
                miss = [R for R, l in dmaq if R <= tgt]
                assert not miss, ("round not issued before its sync", r, sy, miss)
                def _s():
                    if idx: A(f"s_waitcnt vmcnt({vm.wait(lambda x: x[0] == 'dma' and x[1] <= tgt)})")
                    A("s_barrier")
                ev("sync", sy, _s); self.log.append((cur[0], ("SYNC", sy)))
                n = cur[0]
                if sy[0] == "p4":
                    done = [nodes[m]["entry"] for m in range(0, n + 1) if nodes[m]["entry"] is not None]
                    c = max(done) + 1
                else:
                    c = 288 + max(0, 10 * (sy[2] - 1))
                allowed[0] = max(allowed[0], c // 16 - 1 + 9)
                new = [x for x in dmaq if x[0] <= allowed[0] and not any(oo.get("dq") is x for oo in ops)]
                for j, x in enumerate(new):
                    op(n + 1, tm(need_at[x[0]]) - LAT, x[1], ("dma", x[0]), dq=x, seq="dma", gate=("f2" if x[0] >= 18 else None))
            n = reads[r]
            ad, off = nodes[n]["rd"]
            A(f"ds_read_b128 {v(WB+4*nodes[n]['buf'],4)}, {ad} offset:{off}")
            nrd[0] = r + 1
        def try_vm(n):
            ok = []; seen = set()
            for x in ops:
                sq = x.get("seq")
                if sq:
                    if sq in seen: continue
                    seen.add(sq)
                if x["rel"] > n or not gate_open[x.get("gate")]: continue
                ok.append(x)
            if not ok: return 0
            x = min(ok, key=lambda y: y["dl"])
            ops.remove(x)
            if x.get("pre"): x["pre"]()
            skip = (o.get("xdma") and x["tag"][0] == "dma" and x["tag"][1] >= o["xdma"]) or (o.get("xh") and x["tag"][0] == "h" and x["tag"][1] >= o["xh"] - 1)
            for l in x["lines"]:
                if skip and l.startswith("buffer_load"): l = "s_nop 0"
                A(l)
            if x.get("dq"): dmaq.remove(x["dq"])
            lastvm[0] = n
            if skip:
                vm.dropped = getattr(vm, "dropped", set()) | {x["tag"]}
                return 4
            vm.add(x["tag"]); self.log.append((n, x["tag"]))
            if x.get("on_issue"): x["on_issue"](n)
            return 16 + 4 * (len(x["lines"]) - 1)
        def store_op(t, n):
            b = SACC[t]
            A(f"buffer_store_dwordx4 {v(b,4)}, v6, {srd(SWS)}, {s(sHS+t)} offen sc1"); vm.add(("hs", t)); self.log.append((n, ("hs", t)))
            lastvm[0] = n
            op(node_at(tm(n) + FLT), -3, [f"buffer_store_dword v8, v7, {srd(SWS)}, {s(sF4P)} offen offset:{64*t} sc1"], ("fl", t),
               pre=lambda t=t: ev("fl", ("fl", t), lambda: A(f"s_waitcnt vmcnt({vm.wait(('hs', t))})")),
               on_issue=lambda n2, t=t: mk_check(t, max(node_at(tm(n2) + VIS), jit(t))))
        BUD = o.get("bud", 28)
        def run_fifo(n, budget):
            while fifo and budget > 0:
                e, c, l = fifo[0]
                if e > n: break
                if isinstance(l, tuple):
                    if lastvm[0] == n or budget < 8: break
                    fifo.pop(0); store_op(l[1], n); budget -= 16
                    continue
                if c > budget: break
                fifo.pop(0); A(l); budget -= c
        waited = [-1]
        def pre_waits(n):
            nd = nodes[n]; w = []
            if nd["rd"] is not None:
                r = ridx[n]
                if r > waited[0]:
                    tgt = min(r + 1, nrd[0] - 1)
                    if nd["ph"] == 5 and o.get("w5", 2) == 1: tgt = r
                    w.append(f"lgkmcnt({nrd[0] - 1 - tgt})"); waited[0] = tgt
            if nd.get("tok") is not None and n % 3 == 0:
                w.insert(0, f"vmcnt({vm.wait(('tok', nd['tok']))})")
                if o.get("ts") == 12 and n % 6 == 0:
                    w0 = w.pop(0)
                    ev("tok", ("tok", nd["tok"]), lambda: A("s_waitcnt " + w0))
            if nd["ph"] == 5 and nd["ct"] == 0 and nd["tt"] == 0:
                i = nd["step"]
                if ("h", i, 1) not in getattr(vm, "dropped", set()):
                    assert ("h", i, 1) in vm.q, ("h not issued", i)
                    w.insert(0, f"vmcnt({vm.wait(('h', i, 1))})")
                    if o.get("ts") in (10, 11) and (i < 20) == (o.get("ts") == 10):
                        w0 = w.pop(0)
                        ev("h0" if i < 20 else "h1", ("h", i), lambda: A("s_waitcnt " + w0))
            if w: A("s_waitcnt " + " ".join(w))
            return 4 if w else 0
        for r in issue_at.get(-1, []): emit_read(r)
        for n in range(N):
            cur[0] = n
            nd = nodes[n]
            if n == N4:
                cur[0] = N4 - 1
                for r in issue_at.get("T0", []): emit_read(r)
                self.stamp(15)
                cur[0] = n
                rest6 = [x[2] for x in fifo]; fifo.clear()
                for l in rest6:
                    if isinstance(l, tuple): store_op(l[1], n)
                    else: A(l)
                e6 = epi(6)
                for j, l in enumerate(e6):
                    A(l)
                    if j % 12 == 11: try_vm(n)
                store_op(6, n)
            for t, st_ in tile_start.items():
                if st_ == n and t >= 4:
                    assert not any(isinstance(x[2], tuple) and x[2][1] == t - 4 for x in fifo), ("acc set still busy", t)
            used = pre_waits(n)
            d = v(nd["acc"], 16 if nd["ph"] == 4 else 4)
            opn = "v_mfma_f32_32x32x16_bf16" if nd["ph"] == 4 else "v_mfma_f32_16x16x32_bf16"
            A(f"{opn} {d}, {v(WB+4*nd['buf'],4)}, {nd['b']}, {'0' if nd['zero'] else d}")
            budget = (BUD if nd["ph"] == 4 else 8) - (used if nd["ph"] == 4 else 0)
            for r in issue_at.get(n, []):
                emit_read(r); budget -= 4
            for f in events.pop(n, []):
                f(); budget -= 4
            if nd["ph"] == 4:
                if n - lastvm[0] >= o.get("vgap", 2): budget -= try_vm(n)
                run_fifo(n, budget)
            else:
                if nd["tt"] == 1: try_vm(n)
            if o.get("ts") == 4:
                if "tsl" in o:
                    a0, st_ = (int(x) for x in str(o["tsl"]).split("_"))
                    L_ = [a0 + st_ * j for j in range(40)]
                else:
                    L_ = [30, 60, 90, 122, 163, 204, 245, 286, N4 + 30, N4 + 60, N4 + 90, N4 + 120, N4 + 150, N4 + 180, N4 + 210, N4 + 240]
                if n in L_: self.stamp(20 + L_.index(n))
        assert not events, events.keys()
        assert all(x["tag"][0] in ("fl", "ck") for x in ops), [x["tag"] for x in ops]
        assert not ops, [x["tag"] for x in ops]
        self.slow45 = slow
    def p45_tail(self):
        A = self.A
        PACC = 104
        self.p35_roles()
        if not self.o.get("tnb", 0): A("s_barrier")
        A(f"s_mul_i32 s56, {s(sW)}, 5120"); A("v_add_u32 v5, s56, v2")
        A(f"s_xor_b32 s57, {s(sW)}, 1"); A("s_mul_i32 s57, s57, 5120"); A("v_add_u32 v6, s57, v2")
        A(f"s_and_b32 s58, {s(sW)}, 1"); A("s_cmp_eq_u32 s58, 0"); A("s_cbranch_scc0 L_p5_kh1")
        for ct in range(5): A(f"ds_write_b128 v5, {v(PACC+4+8*ct,4)} offset:{ct*1024}")
        for ct in range(5):
            for r in range(4): A(f"v_mov_b32 {v(40+4*ct+r)}, {v(PACC+8*ct+r)}")
        A("s_branch L_p5_c")
        A.label("L_p5_kh1")
        for ct in range(5): A(f"ds_write_b128 v5, {v(PACC+8*ct,4)} offset:{ct*1024}")
        for ct in range(5):
            for r in range(4): A(f"v_mov_b32 {v(40+4*ct+r)}, {v(PACC+4+8*ct+r)}")
        A.label("L_p5_c")
        A("s_waitcnt lgkmcnt(0)"); A("s_barrier")
        for ct in range(5): A(f"ds_read_b128 {v(60+4*ct,4)}, v6 offset:{ct*1024}")
        A("v_and_b32 v4, 15, v1"); A("v_lshrrev_b32 v5, 4, v1")
        A("v_mul_u32_u24 v6, 0xa000, v4")
        A("v_and_b32 v7, 1, v5"); A("v_lshl_add_u32 v8, v7, 5, v6"); A("v_lshrrev_b32 v7, 1, v5"); A("v_lshl_add_u32 v8, v7, 4, v8")
        A("v_lshl_add_u32 v9, v5, 3, v6")
        A(f"s_lshl_b32 s56, {s(sW)}, 9"); A("s_add_u32 s56, s56, s54"); A("s_mul_i32 s56, s56, 1280"); A("s_mul_i32 s57, s55, 160"); A("s_add_u32 s56, s56, s57")
        A("s_waitcnt lgkmcnt(0)")
        X1 = self.X1
        for k in range(10):
            A(f"v_pk_add_f32 {v(40+2*k,2)}, {v(40+2*k,2)}, {v(60+2*k,2)}")
            A(f"v_pk_fma_f32 {v(40+2*k,2)}, {v(40+2*k,2)}, {v(20+2*k,2)}, {v(X1+2*k,2)}")
        for dt in range(5):
            A(f"v_cvt_pk_bf16_f32 {v(60+2*dt)}, {v(40+4*dt)}, {v(41+4*dt)}")
            A(f"v_cvt_pk_bf16_f32 {v(61+2*dt)}, {v(42+4*dt)}, {v(43+4*dt)}")
        for p in range(2):
            A(f"v_permlane16_swap_b32 {v(60+4*p)}, {v(62+4*p)}")
            A(f"v_permlane16_swap_b32 {v(61+4*p)}, {v(63+4*p)}")
        fl = {0: "", 1: " sc1", 2: " nt", 3: " sc0 sc1", 4: " sc1 nt"}[self.o.get("ofl", 0)]
        A(f"buffer_store_dwordx4 v[60:63], v8, {srd(SOUT)}, s56 offen{fl}")
        A(f"buffer_store_dwordx4 v[64:67], v8, {srd(SOUT)}, s56 offen offset:64{fl}")
        A(f"buffer_store_dwordx2 v[68:69], v9, {srd(SOUT)}, s56 offen offset:128{fl}")
    def slow_paths(self):
        A = self.A
        for lab, back, ld, cmp_ in getattr(self, "slow45", []):
            lp = A.newlabel("L_sl")
            A.label(lab)
            A("s_mov_b32 s49, 0")
            A.label(lp)
            A("s_add_u32 s49, s49, 1"); A(f"s_cmp_gt_u32 s49, {POLL_MAX}"); A(f"s_cbranch_scc1 {back}")
            A(ld); A("s_waitcnt vmcnt(0)"); A(cmp_)
            A(f"s_cbranch_vccnz {lp}")
            A(f"s_branch {back}")
    def rest(self):
        st = self.stamp
        self.b2(); st(10); self.p3_main(); st(11)
        if self.end_if_stop(3): return
        self.p4_pre(); st(14); self.p45(); st(18); self.p45_tail(); st(19)
    def build(self):
        A = self.A
        st = self.stamp
        self.prologue()
        self.p1()
        self.arrive1(); st(2)
        self.b1_dead(); st(5)
        self.gb_wait(0); st(6)
        if not self.end_if_stop(1):
            self.p2_main(); st(7)
            if not self.end_if_stop(2):
                self.rest()
        self.ts_flush()
        A.label("L_end")
        A("s_endpgm")
        self.slow_paths()
        A.label("L_code_end")
        A("s_endpgm")
        return self.text()

if __name__ == "__main__":
    out = sys.argv[1]; stop = int(sys.argv[2]) if len(sys.argv) > 2 else 99
    opts = {}
    for kv in sys.argv[3:]:
        k, _, val = kv.partition("=")
        opts[k] = int(val) if val.lstrip("-").isdigit() else (val or 1)
    g = Gen3(stop, opts)
    open(out, "w").write(g.build())
    if opts.get("log"):
        for n, t in g.log:
            if t[0] not in ("tok",): print(n, t)
```
